```python
import torch

def _softmax(x, axis=-1):
    return torch.softmax(x, dim=axis)
def _gelu(x):
    return torch.nn.functional.gelu(x, approximate="tanh")
def _silu(x):
    return torch.nn.functional.silu(x)
def _sigmoid(x):
    return torch.sigmoid(x)
def _layernorm(x, axis=-1, eps=1e-5):
    m = x.mean(dim=axis, keepdim=True)
    v = x.var(dim=axis, keepdim=True, unbiased=False)
    return (x - m) / torch.sqrt(v + eps)
def _scatter_add(tgt, idx, src, axis=0):
    return tgt.clone().index_add_(axis, idx, src)
def _segment_sum(src, seg, n):
    out = torch.zeros((n,) + src.shape[1:], dtype=src.dtype)
    return out.index_add_(0, seg, src)
def _pad(x, pw):
    flat = tuple(v for pair in reversed(pw) for v in pair)
    return torch.nn.functional.pad(x, flat)

kernel_name = 'standalone__linear_kernel_performer__prompt'

def setup_inputs():

    _w = (lambda a: (lambda t: t.to(torch.bfloat16) if t.is_floating_point() else t)(torch.as_tensor(a)))
    B, H, S, D = 1, 32, 2048, 192
    M = D
    return {
        "q": _w((lambda *s: torch.randn(*s, dtype=torch.bfloat16) * 0.05)(B, H, S, D)),
        "k": _w((lambda *s: torch.randn(*s, dtype=torch.bfloat16) * 1.6)(B, H, S, D)),
        "v": _w((lambda *s: torch.randn(*s, dtype=torch.bfloat16) * 1.6)(B, H, S, D)),
        "proj": _w((lambda *s: torch.randn(*s, dtype=torch.bfloat16) * 1.6)(M, D)),
    }

def reference(q, k, v, proj):
    B, H, S, D = q.shape
    M = proj.shape[0]
    scale = D ** -0.25
    qs = q * scale
    ks = k * scale
    qw = torch.einsum("bhsd,md->bhsm", qs, proj)
    kw = torch.einsum("bhsd,md->bhsm", ks, proj)
    qn = torch.einsum("bhsd,bhsd->bhs", qs, qs)[..., None] * 0.5
    kn = torch.einsum("bhsd,bhsd->bhs", ks, ks)[..., None] * 0.5
    inv_sqrt_m = M ** -0.5
    phi_q = torch.exp(qw - qn) * inv_sqrt_m
    phi_k = torch.exp(kw - kn) * inv_sqrt_m
    kv = torch.einsum("bhsm,bhsd->bhmd", phi_k, v)
    ksum = torch.einsum("bhsm->bhm", phi_k)
    num = torch.einsum("bhsm,bhmd->bhsd", phi_q, kv)
    den = torch.einsum("bhsm,bhm->bhs", phi_q, ksum)[..., None] + 1e-6
    return num / den
```

```python
import re

def vr(a, n=1):
    return f"v{a}" if n == 1 else f"v[{a}:{a+n-1}]"
def sr(a, n=1):
    return f"s{a}" if n == 1 else f"s[{a}:{a+n-1}]"

_VRE = re.compile(r"^-?(?:abs\()?v(\d+)\)?$|^-?v\[(\d+):(\d+)\]$")
_SRE = re.compile(r"^s(\d+)$|^s\[(\d+):(\d+)\]$")
def vset(op):
    m = _VRE.match(op.strip())
    if not m: return set()
    if m.group(1) is not None: return {int(m.group(1))}
    return set(range(int(m.group(2)), int(m.group(3)) + 1))
def sset(op):
    op = op.strip()
    if op == "vcc": return {"vcc"}
    if op == "exec": return {"exec"}
    if op == "m0": return {"m0"}
    m = _SRE.match(op)
    if not m: return set()
    if m.group(1) is not None: return {int(m.group(1))}
    return set(range(int(m.group(2)), int(m.group(3)) + 1))

TRANS = ("v_exp_f32", "v_rcp_f32", "v_log_f32", "v_rsq_f32", "v_sqrt_f32")

class Ins:
    __slots__ = ("text", "op", "kind", "vw", "vr", "sw", "sr", "ws", "passes", "srcC", "dpp", "isD")
    def __init__(self, text):
        self.text = text
        t = text.split(";")[0].strip()
        self.op = t.split()[0] if t else ""
        rest = t[len(self.op):].strip()
        ops = [o.strip() for o in re.split(r",(?![^\[]*\])", rest)] if rest else []
        flat = []
        mods = ""
        for i, o in enumerate(ops):
            parts = o.split()
            if not parts: continue
            flat.append(parts[0])
            if len(parts) > 1: mods += " " + " ".join(parts[1:])
        self.vw = set(); self.vr = set(); self.sw = set(); self.sr = set()
        self.ws = 1; self.passes = 0; self.srcC = set(); self.dpp = False
        op = self.op
        k = "other"
        if op.endswith(":") or op.startswith("."):
            k = "label"; self.ws = 0
        elif op == "s_nop":
            k = "nop"; self.ws = int(flat[0], 0) + 1
        elif op.startswith("v_mfma"):
            k = "mfma"; self.passes = 8 if "32x32x16" in op else (2 if "4x4x4" in op else 4)
            self.vw = vset(flat[0]); self.vr = vset(flat[1]) | vset(flat[2]); self.srcC = vset(flat[3])
        elif op.startswith("v_cmp"):
            k = "valu"; self.sw = sset(flat[0])
            for o in flat[1:]: self.vr |= vset(o); self.sr |= sset(o)
        elif op in ("v_readfirstlane_b32", "v_readlane_b32"):
            k = "rdlane"; self.sw = sset(flat[0]); self.vr = vset(flat[1])
        elif op.startswith("v_permlane"):
            k = "perml"; self.vw = vset(flat[0]) | vset(flat[1]); self.vr = set(self.vw)
        elif op.startswith("v_"):
            k = "valu"
            if op in TRANS or op.replace("_e32", "") in TRANS: k = "trans"
            if op.startswith("v_dot2"): k = "dot"
            self.vw = vset(flat[0])
            srcs = flat[1:]
            if op.startswith(("v_add_co", "v_addc_co", "v_sub_co")):
                self.sw = sset(flat[1]); srcs = flat[2:]
            for o in srcs: self.vr |= vset(o); self.sr |= sset(o)
            if op.startswith(("v_fmac", "v_dot2c")): self.vr |= self.vw
            if op.startswith("v_cndmask") and len(flat) == 3: self.sr |= {"vcc"}
            if "quad_perm" in t or "row_" in t or "_dpp" in op: self.dpp = True
        elif op.startswith("ds_read") or op.startswith("ds_bpermute") or op.startswith("ds_swizzle"):
            k = "dsr"; self.vw = vset(flat[0])
            for o in flat[1:]: self.vr |= vset(o)
        elif op.startswith("ds_add_rtn"):
            k = "dsr"; self.vw = vset(flat[0])
            for o in flat[1:]: self.vr |= vset(o)
        elif op.startswith("ds_"):
            k = "dsw"
            for o in flat: self.vr |= vset(o)
        elif op.startswith("buffer_load") or op.startswith("global_load"):
            if " lds" in (" " + t) and op.startswith("buffer"):
                k = "dma"
                for o in flat: self.vr |= vset(o); self.sr |= sset(o)
                self.sr |= {"m0"}
            else:
                k = "vload"; self.vw = vset(flat[0])
                for o in flat[1:]: self.vr |= vset(o); self.sr |= sset(o)
        elif op.startswith("buffer_store") or op.startswith("global_store"):
            k = "vstore"
            for o in flat: self.vr |= vset(o); self.sr |= sset(o)
            if op.startswith("buffer_store"): self.srcC = vset(flat[0])
            else: self.srcC = vset(flat[1])
            self.passes = len(self.srcC)
        elif op.startswith("buffer_atomic") or op.startswith("global_atomic"):
            k = "vatom"
            for o in flat: self.vr |= vset(o); self.sr |= sset(o)
            if "sc0" in mods:
                self.vw = vset(flat[0])
        elif op.startswith("s_"):
            k = "salu"
            if op.startswith(("s_cmp", "s_cbranch", "s_branch", "s_waitcnt", "s_barrier", "s_endpgm", "s_sleep", "s_setprio", "s_bitcmp")):
                for o in flat: self.sr |= sset(o)
            elif flat:
                self.sw = sset(flat[0])
                for o in flat[1:]: self.sr |= sset(o)
                if "saveexec" in op: self.sw |= {"exec"}
        self.kind = k

VALUK = ("valu", "trans", "dot", "rdlane", "perml")
MEMK = ("dsr", "dsw", "dma", "vload", "vstore", "vatom")

def required(prod, cons):
    need = 0
    pk, ck = prod.kind, cons.kind
    cons_r = cons.vr | (cons.srcC if ck == "mfma" else set())
    if pk in VALUK and ck == "mfma" and (prod.vw & cons_r): need = max(need, 2)
    if pk == "mfma":
        big = {8: 12, 4: 8, 2: 5}[prod.passes]; ovl = {8: 10, 4: 6, 2: 4}[prod.passes]; war = {8: 7, 4: 3, 2: 1}[prod.passes]
        if ck == "mfma":
            if prod.vw & cons.vr: need = max(need, big)
            if prod.vw & cons.srcC:
                if not (prod.vw == cons.srcC and prod.passes == cons.passes): need = max(need, ovl)
                elif prod.passes == 2: need = max(need, 2)
            if (prod.vw & cons.vw) and not (prod.vw == cons.srcC):
                need = max(need, ovl)
        elif ck in VALUK:
            if prod.vw & (cons.vr | cons.vw): need = max(need, big)
            if prod.srcC & cons.vw: need = max(need, war)
        elif ck in MEMK:
            if prod.vw & (cons.vr | cons.vw): need = max(need, big)
            if prod.srcC & cons.vw: need = max(need, war)
    if pk == "trans" and ck in VALUK + ("mfma",) and ck != "trans" and (prod.vw & cons_r): need = max(need, 1)
    if pk == "trans" and ck == "trans" and (prod.vw & cons.vr): need = max(need, 0)
    if pk in VALUK and cons.dpp and (prod.vw & cons.vr): need = max(need, 2)
    if pk in VALUK and ck == "perml" and (prod.vw & cons.vr): need = max(need, 2)
    if pk in VALUK and ck == "rdlane" and (prod.vw & cons.vr): need = max(need, 1)
    if pk in VALUK and prod.sw:
        if ck in VALUK and (prod.sw & cons.sr): need = max(need, 2)
        if ck in MEMK and (prod.sw & cons.sr): need = max(need, 5)
        if ck == "salu" and (prod.sw & cons.sr): need = max(need, 1)
    if pk == "salu" and "m0" in prod.sw and ck == "dma": need = max(need, 1)
    if pk == "vstore" and prod.passes >= 3 and (prod.srcC & cons.vw):
        need = max(need, 2 if ck in VALUK else 1)
    if pk == "dot" and (prod.vw & (cons.vr | cons.vw)):
        if not (ck == "dot" and cons.op == prod.op and not (prod.vw & (cons.vr - cons.vw))): need = max(need, 3)
    return need

class Asm:
    def __init__(self):
        self.items = []
    def e(self, s):
        for line in s.split("\n"):
            line = line.strip()
            if line: self.items.append(line)
    def label(self, name): self.items.append(name + ":")
    def c(self, s): self.items.append("; " + s)

    def finalize(self, maxlook=24):
        out = []
        for line in self.items:
            if line.startswith(";") or line.startswith("."):
                out.append((line, None)); continue
            ins = Ins(line)
            if ins.kind == "label":
                out.append((line, ins)); continue
            need_pad = 0; dist = 0
            for (t, p) in reversed(out):
                if p is None or p.kind == "label": continue
                if p.op in ("s_endpgm", "s_branch"): break
                r = required(p, ins)
                if r > dist: need_pad = max(need_pad, r - dist)
                dist += p.ws
                if dist >= maxlook: break
            while need_pad > 0:
                n = min(need_pad, 16)
                nop = Ins(f"s_nop {n-1}")
                out.append((nop.text, nop)); need_pad -= n
            out.append((line, ins))
        labels = {t[:-1]: i for i, (t, p) in enumerate(out) if p is not None and p.kind == "label"}
        problems = []
        for i, (t, p) in enumerate(out):
            if p is None or not p.op.startswith(("s_cbranch", "s_branch")): continue
            tgt = t.split()[1]
            if tgt not in labels: continue
            j = labels[tgt]
            after = []; d = 0; k = j
            while k < len(out) and d < maxlook:
                q = out[k][1]
                if q is not None and q.kind != "label":
                    after.append((q, d)); d += q.ws
                    if q.op in ("s_endpgm", "s_branch"): break
                k += 1
            d0 = 1
            k = i - 1
            while k >= 0 and d0 < maxlook:
                q = out[k][1]
                if q is not None and q.kind != "label":
                    if q.op in ("s_endpgm", "s_branch"): break
                    for (c_, dd) in after:
                        r = required(q, c_)
                        if r > d0 + dd:
                            problems.append(f"hazard across branch {t}: [{q.text}] -> [{c_.text}] need {r} have {d0+dd}")
                    d0 += q.ws
                k -= 1
        if problems:
            raise RuntimeError("\n".join(problems))
        return "\n".join(("  " + t if (p is not None and p.kind != "label") else t) for t, p in out) + "\n"
```

```python
import struct, sys
from asmlib import Asm, vr, sr

def f32hex(x): return "0x%08x" % struct.unpack("<I", struct.pack("<f", x))[0]
SCALE = f32hex(192 ** -0.25)
LOG2E = f32hex(1.4426950408889634)
EPS = f32hex(0.75e-6)

L_V = 0
L_XS = 0x18000
L_XN = L_XS + 0x3000
L_KS = 0x1B080
L_PHI = 0x20000
LDS_BYTES = 0x27000
PART_SZ = 73728
WS_KSP = 0x1400000
WS_FIN = 0x1800000
NT = "nt"

S_Q, S_K, S_V, S_P = 8, 10, 12, 14
S_OUT, S_DBG, S_WS = 16, 18, 20
S_HEAD, S_CHUNK, S_WAVE, S_ROWOFF = 22, 23, 24, 25
SRD_X, SRD_V, SRD_P, SRD_O, SRD_W, SRD_K2 = 28, 32, 36, 40, 44, 48
S_SCALE, S_MASK, S_LOG2E, S_TOG = 52, 53, 54, 55
S_T, S_T0, S_T1, S_T2, S_T3 = 56, 57, 58, 59, 60

V_LANE = 1
V_A = 2
V_XN = 6
V_VE, V_VO = 7, 8
V_DMA = 9
V_L16 = 11
V_M = 12
V_PHR = 13
V_PHW = 14
V_TMP = 15
V_P = 16
V_ACC = 64
V_ACCS = 160
V_D1 = 176
V_KN = 192
V_PHI = 208
V_AF = 216
V_BF = 232
V_ONES = 248
V_PQ = 64
V_RAW = 112

def prologue(a, nwg=256):
    a.e(f"""s_cmp_ge_u32 s2, {nwg}
s_cbranch_scc1 L_end_{a.kname}
s_load_dwordx8 s[8:15], s[0:1], 0
s_load_dwordx4 s[16:19], s[0:1], 32
s_load_dwordx2 s[20:21], s[0:1], 48
v_lshrrev_b32 v1, 6, v0
s_and_b32 s{S_HEAD}, s2, 31
s_lshr_b32 s{S_CHUNK}, s2, 5
v_readfirstlane_b32 s{S_WAVE}, v1
v_and_b32 v{V_LANE}, 63, v0
s_mul_i32 s{S_ROWOFF}, s{S_HEAD}, 786432
s_mul_i32 s26, s{S_CHUNK}, 98304
s_add_u32 s{S_ROWOFF}, s{S_ROWOFF}, s26
s_mov_b32 s{S_SCALE}, {SCALE}
s_mov_b32 s{S_MASK}, 0xffff0000
s_mov_b32 s{S_LOG2E}, {LOG2E}
s_mov_b32 s{S_TOG}, 0x4000
s_waitcnt lgkmcnt(0)""")

def srd(a, d, ptr, off, size):
    if off is None:
        a.e(f"s_mov_b32 s{d}, s{ptr}\ns_and_b32 s{d+1}, s{ptr+1}, 0xffff")
    else:
        a.e(f"s_add_u32 s{d}, s{ptr}, s{off}\ns_addc_u32 s{d+1}, s{ptr+1}, 0\ns_and_b32 s{d+1}, s{d+1}, 0xffff")
    a.e(f"s_mov_b32 s{d+2}, {size}\ns_mov_b32 s{d+3}, 0x20000")

def producer(a, pickup):
    n = a.kname
    NB = 4
    a.c("producer setup")
    a.e(f"""s_sub_u32 s{S_T0}, s{S_WAVE}, 6
s_lshl_b32 s{S_T0}, s{S_T0}, 4
v_lshrrev_b32 v7, 3, v{V_LANE}
v_and_b32 v8, 7, v{V_LANE}
v_add_u32 v9, s{S_T0}, v7
v_mul_u32_u24 v10, 384, v9
v_lshl_add_u32 v2, v8, 4, v10""")
    for T in range(NB):
        a.e(f"s_mov_b32 s{S_T1}, {T*12288}")
        for g in range(2):
            for cb in range(3):
                r = V_RAW + 24*T + 12*g + 4*cb
                a.e(f"buffer_load_dwordx4 {vr(r,4)}, v2, s[{SRD_X}:{SRD_X+3}], s{S_T1} offen offset:{g*3072+cb*128} {NT}")
    a.e(f"""v_lshrrev_b32 v11, 1, v7
v_xor_b32 v11, v11, v8
v_lshlrev_b32 v12, 4, v11
v_add_u32 v3, v10, v12
v_add_u32 v3, {L_XS}, v3
v_xor_b32 v11, 4, v11
v_lshlrev_b32 v12, 4, v11
v_add_u32 v4, v10, v12
v_add_u32 v4, {L_XS + 3072}, v4
v_lshlrev_b32 v5, 2, v9
v_add_u32 v5, {L_XN}, v5
v_add_u32 v6, 32, v5
s_mov_b32 s{S_T}, 0""")
    if pickup:
        a.e(f"""s_and_b32 s{S_T0}, s{S_WAVE}, 1
s_lshl_b32 s{S_T0}, s{S_T0}, 14
s_add_u32 s{S_T0}, s{S_T0}, {L_PHI}
v_lshlrev_b32 v{V_PHR}, 4, v{V_LANE}
v_add_u32 v{V_PHR}, s{S_T0}, v{V_PHR}""")
    a.label(f"L_prod_loop_{n}")
    TMP = 208
    for u in range(NB):
        b = V_RAW + 24*u
        a.e("s_waitcnt vmcnt(18)")
        for g in range(2):
            nreg = TMP + 8 + g
            a.e(f"v_mov_b32 v{nreg}, 0")
            for i in range(12):
                x = b + 12*g + i
                t0 = TMP + 2*(i % 4); t1 = t0 + 1
                a.e(f"""v_lshlrev_b32 v{t0}, 16, v{x}
v_and_b32 v{t1}, s{S_MASK}, v{x}
v_mul_f32 v{t0}, s{S_SCALE}, v{t0}
v_mul_f32 v{t1}, s{S_SCALE}, v{t1}
v_cvt_pk_bf16_f32 v{x}, v{t0}, v{t1}
v_dot2c_f32_bf16 v{nreg}, v{x}, v{x}""")
                if i % 4 == 3:
                    cb = i // 4
                    a.e(f"ds_write_b128 v{3+g}, {vr(b+12*g+4*cb,4)} offset:{cb*128}")
        for perm in ("quad_perm:[1,0,3,2]", "quad_perm:[2,3,0,1]", "row_half_mirror"):
            for g in range(2):
                nreg = TMP + 8 + g
                a.e(f"v_add_f32_dpp v{nreg}, v{nreg}, v{nreg} {perm} row_mask:0xf bank_mask:0xf")
        for g in range(2):
            a.e(f"v_cvt_pk_bf16_f32 v{TMP+8+g}, 0, v{TMP+8+g}")
        for g in range(2):
            a.e(f"v_mul_f32 v{TMP+8+g}, -0.5, v{TMP+8+g}")
        for g in range(2):
            a.e(f"ds_write_b32 v{5+g}, v{TMP+8+g}")
        a.e(f"s_add_u32 s{S_T1}, s{S_T}, {NB}\ns_mul_i32 s{S_T1}, s{S_T1}, 12288")
        a.e("s_waitcnt lgkmcnt(0)")
        for g in range(2):
            for cb in range(3):
                r = b + 12*g + 4*cb
                a.e(f"buffer_load_dwordx4 {vr(r,4)}, v2, s[{SRD_X}:{SRD_X+3}], s{S_T1} offen offset:{g*3072+cb*128} {NT}")
        for r in (3, 4, 5, 6):
            a.e(f"v_xor_b32 v{r}, s{S_TOG}, v{r}")
        a.e("s_barrier")
        if pickup:
            a.e(f"s_add_u32 s{S_T2}, s{S_WAVE}, 1\ns_cmp_eq_u32 s{S_T}, s{S_T2}\ns_cbranch_scc0 L_ppk_{n}_{u}")
            do_pickup(a)
            a.e("s_waitcnt lgkmcnt(0)")
            a.label(f"L_ppk_{n}_{u}")
        a.e(f"s_add_u32 s{S_T}, s{S_T}, 1")
    a.e(f"s_cmp_lt_u32 s{S_T}, 8\ns_cbranch_scc1 L_prod_loop_{n}")
    a.e("s_waitcnt vmcnt(0)")

def do_pickup(a):
    for f in range(12):
        a.e(f"ds_read_b128 {vr(V_PQ+4*f,4)}, v{V_PHR} offset:{f*1024}")

def compute_setup(a):
    a.e(f"""v_and_b32 v20, 31, v{V_LANE}
v_lshrrev_b32 v21, 5, v{V_LANE}
s_lshl_b32 s{S_T0}, s{S_WAVE}, 5
v_add_u32 v22, s{S_T0}, v20
v_mul_u32_u24 v22, 384, v22
v_lshl_add_u32 v{V_TMP}, v21, 4, v22""")
    srd(a, SRD_P, S_P, None, 73728)
    a.e(f"v_mov_b32 v176, v20\nv_mov_b32 v177, v21")
    for j in range(12):
        a.e(f"buffer_load_dwordx4 {vr(V_P+4*j,4)}, v{V_TMP}, s[{SRD_P}:{SRD_P+3}], 0 offen offset:{j*32}")
    a.e(f"""v_lshrrev_b32 v178, 1, v176
v_and_b32 v178, 7, v178
v_mul_u32_u24 v179, 384, v176
v_add_u32 v179, {L_XS}, v179""")
    for k in range(4):
        a.e(f"""v_add_u32 v180, {2*k}, v177
v_xor_b32 v180, v180, v178
v_lshl_add_u32 v{V_A+k}, v180, 4, v179""")
    a.e(f"v_lshlrev_b32 v{V_L16}, 4, v{V_LANE}")

def exp_stage(a, kn_of):
    D = V_D1
    for r in range(16): a.e(f"v_cvt_pk_bf16_f32 v{D+r}, 0, v{D+r}")
    for r in range(16): a.e(f"v_add_f32 v{D+r}, v{D+r}, v{kn_of(r)}")
    for r in range(16): a.e(f"v_cvt_pk_bf16_f32 v{D+r}, 0, v{D+r}")
    for r in range(16): a.e(f"v_fma_f32 v{D+r}, v{D+r}, s{S_LOG2E}, -4.0")
    for r in range(16): a.e(f"v_exp_f32 v{D+r}, v{D+r}")
    for r in range(8): a.e(f"v_cvt_pk_bf16_f32 v{V_PHI+r}, v{D+2*r}, v{D+2*r+1}")

def gemm13(a, p1, pre=None):
    for j in range(4):
        a.e(f"ds_read_b128 {vr(V_AF+4*j,4)}, v{V_A+j} offset:0")
    for j in range(12):
        rem = min(3, 11 - j)
        a.e(f"s_waitcnt lgkmcnt({rem})")
        fa = vr(V_AF+4*(j % 4), 4); fp = vr(V_P+4*j, 4)
        c = "0" if j == 0 else vr(V_D1, 16)
        if p1: a.e(f"v_mfma_f32_32x32x16_bf16 {vr(V_D1,16)}, {fa}, {fp}, {c}")
        else:  a.e(f"v_mfma_f32_32x32x16_bf16 {vr(V_D1,16)}, {fp}, {fa}, {c}")
        if j + 4 < 12:
            jn = j + 4
            a.e(f"ds_read_b128 {fa}, v{V_A+(jn&3)} offset:{(jn>>2)*128}")

def k1(a):
    n = a.kname
    PD = 3
    prologue(a)
    a.e(f"s_cmp_ge_u32 s{S_WAVE}, 6\ns_cbranch_scc1 L_prod_{n}")
    srd(a, SRD_V, S_V, S_ROWOFF, 98304)
    for e in range(2):
        a.e(f"""s_lshl_b32 s{S_T0}, s{S_WAVE}, 1
s_add_u32 s{S_T0}, s{S_T0}, {e}
s_mul_i32 s{S_T1}, s{S_T0}, 43
s_lshr_b32 s{S_T1}, s{S_T1}, 7
s_mul_i32 s{S_T2}, s{S_T1}, 3
s_sub_u32 s{S_T2}, s{S_T0}, s{S_T2}
s_lshl_b32 s{S_T2}, s{S_T2}, 6
s_lshl_b32 s{S_T1}, s{S_T1}, 3
v_add_u32 v20, s{S_T2}, v{V_LANE}
v_mul_u32_u24 v21, 2731, v20
v_lshrrev_b32 v21, 16, v21
v_mul_u32_u24 v22, 24, v21
v_sub_u32 v22, v20, v22
v_lshlrev_b32 v23, 1, v21
v_and_b32 v23, 4, v23
v_xor_b32 v22, v22, v23
v_add_u32 v21, s{S_T1}, v21
v_mul_u32_u24 v21, 384, v21
v_lshl_add_u32 v{V_DMA+e}, v22, 4, v21""")
    a.e(f"s_lshl_b32 s61, s{S_WAVE}, 11")
    def vdma(tile_sgpr_off):
        for e in range(2):
            a.e(f"s_add_u32 m0, s61, s{tile_sgpr_off}" if e == 0 else f"s_add_u32 m0, m0, 1024")
            a.e(f"buffer_load_dwordx4 v{V_DMA+e}, s[{SRD_V}:{SRD_V+3}], s{tile_sgpr_off} offen {NT} lds")
    compute_setup(a)
    for t in range(PD):
        a.e(f"s_mov_b32 s{S_T1}, {t*12288}")
        vdma(S_T1)
    a.e(f"""v_lshlrev_b32 v{V_XN}, 4, v177
v_add_u32 v{V_XN}, {L_XN}, v{V_XN}
v_and_b32 v178, 15, v{V_LANE}
v_lshrrev_b32 v179, 2, v178
v_lshl_add_u32 v179, v177, 2, v179
v_mul_u32_u24 v179, 384, v179
v_bfe_u32 v180, v{V_LANE}, 4, 1
v_lshl_add_u32 v179, v180, 5, v179
v_and_b32 v180, 3, v178
v_lshl_add_u32 v179, v180, 3, v179
v_bfe_u32 v180, v178, 3, 1
v_lshl_add_u32 v{V_VE}, v180, 6, v179
v_xor_b32 v180, 1, v180
v_lshl_add_u32 v{V_VO}, v180, 6, v179""")
    for r in range(4): a.e(f"v_mov_b32 v{V_ONES+r}, 0x3f803f80")
    for r in range(112): a.e(f"v_mov_b32 v{V_ACC+r}, 0")
    a.e(f"s_mov_b32 s{S_T}, 0")
    a.label(f"L_p1_{n}")
    a.e(f"""s_cmp_gt_u32 s{S_T}, {8-PD}
s_cbranch_scc1 L_p1w0_{n}
s_waitcnt vmcnt({2*(PD-1)})
s_branch L_p1w1_{n}""")
    a.label(f"L_p1w0_{n}")
    a.e("s_waitcnt vmcnt(0)")
    a.label(f"L_p1w1_{n}")
    a.e("s_barrier")
    a.e(f"s_cmp_ge_u32 s{S_T}, {8-PD}\ns_cbranch_scc1 L_p1nd_{n}")
    a.e(f"s_add_u32 s{S_T1}, s{S_T}, {PD}\ns_mul_i32 s{S_T1}, s{S_T1}, 12288")
    vdma(S_T1)
    a.label(f"L_p1nd_{n}")
    for q in range(4):
        a.e(f"ds_read_b128 {vr(V_KN+4*q,4)}, v{V_XN} offset:{q*32}")
    gemm13(a, True)
    def vread(idx):
        jj, dt = idx // 6, idx % 6
        base = V_VE if dt % 2 == 0 else V_VO
        for u in range(2):
            off = (dt >> 1)*128 + (16*jj + 8*u)*384
            a.e(f"ds_read_b64_tr_b16 {vr(V_BF+4*(idx%4)+2*u,2)}, v{base} offset:{off}")
    for idx in range(4): vread(idx)
    exp_stage(a, lambda r: V_KN + r)
    for jj in range(2):
        a.e(f"v_mfma_f32_32x32x16_bf16 {vr(V_ACCS,16)}, {vr(V_PHI+4*jj,4)}, {vr(V_ONES,4)}, {vr(V_ACCS,16)}")
    for idx in range(12):
        jj, dt = idx // 6, idx % 6
        rem = min(3, 11 - idx)
        a.e(f"s_waitcnt lgkmcnt({2*rem})")
        a.e(f"v_mfma_f32_32x32x16_bf16 {vr(V_ACC+16*dt,16)}, {vr(V_PHI+4*jj,4)}, {vr(V_BF+4*(idx%4),4)}, {vr(V_ACC+16*dt,16)}")
        if idx + 4 < 12: vread(idx + 4)
    for r in list(range(V_A, V_A+4)) + [V_XN]:
        a.e(f"v_xor_b32 v{r}, s{S_TOG}, v{r}")
    a.e(f"v_add_u32 v{V_VE}, 12288, v{V_VE}\nv_add_u32 v{V_VO}, 12288, v{V_VO}")
    a.e(f"s_add_u32 s{S_T}, s{S_T}, 1\ns_cmp_lt_u32 s{S_T}, 8\ns_cbranch_scc1 L_p1_{n}")
    a.e(f"""s_lshl_b32 s{S_T0}, s{S_HEAD}, 3
s_add_u32 s{S_T0}, s{S_T0}, s{S_CHUNK}
s_mul_i32 s{S_T1}, s{S_T0}, {PART_SZ}""")
    srd(a, SRD_W, S_WS, S_T1, PART_SZ)
    a.e(f"s_mul_i32 s{S_T1}, s{S_T0}, 768\ns_add_u32 s{S_T1}, s{S_T1}, {WS_KSP}")
    srd(a, SRD_K2, S_WS, S_T1, 768)
    a.e(f"s_lshl_b32 s{S_T2}, s{S_WAVE}, 11")
    for dt in range(6):
        for jj in range(2):
            tb = V_AF + 4*((dt*2+jj) % 4)
            for i in range(4):
                a.e(f"v_cvt_pk_bf16_f32 v{tb+i}, v{V_ACC+16*dt+8*jj+2*i}, v{V_ACC+16*dt+8*jj+2*i+1}")
            a.e(f"buffer_store_dwordx4 {vr(tb,4)}, v{V_L16}, s[{SRD_W}:{SRD_W+3}], s{S_T2} offen offset:{jj*1024}")
        if dt < 5: a.e(f"s_add_u32 s{S_T2}, s{S_T2}, 12288")
    a.e(f"""v_lshrrev_b32 v{V_M}, 5, v{V_LANE}
v_lshlrev_b32 v{V_M}, 6, v{V_M}
s_lshl_b32 s{S_T2}, s{S_WAVE}, 7
s_mov_b32 exec_lo, 1
s_mov_b32 exec_hi, 1""")
    for q in range(4):
        a.e(f"buffer_store_dwordx4 {vr(V_ACCS+4*q,4)}, v{V_M}, s[{SRD_K2}:{SRD_K2+3}], s{S_T2} offen offset:{q*16}")
    a.e("s_endpgm")
    a.label(f"L_prod_{n}")
    srd(a, SRD_X, S_K, S_ROWOFF, 98304)
    producer(a, False)
    a.label(f"L_end_{n}")
    a.e("s_endpgm")

def k2(a):
    n = a.kname
    prologue(a)
    a.e(f"""s_mul_i32 s{S_T0}, s{S_CHUNK}, 9
s_add_u32 s{S_T0}, s{S_T0}, s{S_WAVE}
s_lshl_b32 s{S_T0}, s{S_T0}, 10
s_mul_i32 s{S_T1}, s{S_HEAD}, {8*PART_SZ}
v_lshlrev_b32 v2, 4, v{V_LANE}""")
    srd(a, SRD_W, S_WS, S_T1, 8*PART_SZ)
    a.e(f"s_mul_i32 s{S_T1}, s{S_HEAD}, {PART_SZ}\ns_add_u32 s{S_T1}, s{S_T1}, {WS_FIN}")
    srd(a, SRD_O, S_WS, S_T1, PART_SZ)
    a.e(f"s_mov_b32 s{S_T2}, s{S_T0}")
    for c in range(8):
        a.e(f"buffer_load_dwordx4 {vr(8+4*c,4)}, v2, s[{SRD_W}:{SRD_W+3}], s{S_T2} offen")
        if c < 7: a.e(f"s_add_u32 s{S_T2}, s{S_T2}, {PART_SZ}")
    for c in range(8):
        a.e(f"s_waitcnt vmcnt({7-c})")
        for i in range(4):
            x = 8 + 4*c + i
            if c == 0:
                a.e(f"v_lshlrev_b32 v{40+2*i}, 16, v{x}\nv_and_b32 v{41+2*i}, s{S_MASK}, v{x}")
            else:
                a.e(f"v_lshlrev_b32 v48, 16, v{x}\nv_and_b32 v49, s{S_MASK}, v{x}\nv_add_f32 v{40+2*i}, v{40+2*i}, v48\nv_add_f32 v{41+2*i}, v{41+2*i}, v49")
    for i in range(4):
        a.e(f"v_cvt_pk_bf16_f32 v{52+i}, v{40+2*i}, v{41+2*i}")
    a.e(f"buffer_store_dwordx4 v[52:55], v2, s[{SRD_O}:{SRD_O+3}], s{S_T0} offen")
    a.label(f"L_end_{n}")
    a.e("s_endpgm")

def p2b(a):
    n = a.kname
    V_O = 112
    V_DEN = 128
    V_F = 144
    V_T = 160
    a.c("P2b")
    srd(a, SRD_O, S_OUT, S_ROWOFF, 98304)
    a.e(f"""v_and_b32 v2, 31, v{V_LANE}
v_lshrrev_b32 v3, 5, v{V_LANE}
s_lshl_b32 s{S_T0}, s{S_WAVE}, 5
v_add_u32 v4, s{S_T0}, v2
v_mul_u32_u24 v4, 384, v4
v_lshl_add_u32 v4, v3, 4, v4
v_lshlrev_b32 v5, 4, v3
v_add_u32 v5, {L_KS}, v5
v_lshlrev_b32 v6, 4, v{V_LANE}""")
    for f in range(4): a.e(f"ds_read_b128 {vr(V_F+4*f,4)}, v5 offset:{f*32}")
    for f in range(12):
        rem = min(3, 11 - f)
        a.e(f"s_waitcnt lgkmcnt({rem})")
        c = "0" if f == 0 else vr(V_DEN, 16)
        a.e(f"v_mfma_f32_32x32x16_bf16 {vr(V_DEN,16)}, {vr(V_F+4*(f%4),4)}, {vr(V_PQ+4*f,4)}, {c}")
        if f + 4 < 12: a.e(f"ds_read_b128 {vr(V_F+4*(f%4),4)}, v5 offset:{(f+4)*32}")
    for f in range(4): a.e(f"ds_read_b128 {vr(V_F+4*f,4)}, v6 offset:{f*1024}")
    a.e(f"v_add_f32 v{V_DEN}, {EPS}, v{V_DEN}")
    a.e(f"v_rcp_f32 v{V_DEN}, v{V_DEN}")
    a.e(f"s_mov_b32 s{S_T}, 0")
    a.label(f"L_p2b_{n}")
    for f in range(12):
        a.e(f"s_waitcnt lgkmcnt(3)")
        c = "0" if f == 0 else vr(V_O, 16)
        a.e(f"v_mfma_f32_32x32x16_bf16 {vr(V_O,16)}, {vr(V_F+4*(f%4),4)}, {vr(V_PQ+4*f,4)}, {c}")
        fn = f + 4
        a.e(f"ds_read_b128 {vr(V_F+4*(f%4),4)}, v6 offset:{fn*1024}")
    a.e(f"v_add_u32 v6, 12288, v6")
    for r in range(16): a.e(f"v_mul_f32 v{V_O+r}, v{V_O+r}, v{V_DEN}")
    for r in range(8): a.e(f"v_cvt_pk_bf16_f32 v{V_T+r}, v{V_O+2*r}, v{V_O+2*r+1}")
    for qp in range(2):
        b = V_T + 4*qp
        a.e(f"v_permlane32_swap_b32 v{b}, v{b+2}\nv_permlane32_swap_b32 v{b+1}, v{b+3}")
    for qp in range(2):
        b = V_T + 4*qp
        a.e(f"buffer_store_dwordx4 {vr(b,4)}, v4, s[{SRD_O}:{SRD_O+3}], s{S_T} offen offset:{qp*32}")
    a.e(f"s_add_u32 s{S_T}, s{S_T}, 64\ns_cmp_lt_u32 s{S_T}, 384\ns_cbranch_scc1 L_p2b_{n}")
    a.e("s_waitcnt lgkmcnt(0)")

def k3(a):
    n = a.kname
    prologue(a)
    a.e(f"s_mul_i32 s{S_T1}, s{S_HEAD}, {PART_SZ}\ns_add_u32 s{S_T1}, s{S_T1}, {WS_FIN}")
    srd(a, SRD_W, S_WS, S_T1, PART_SZ)
    a.e(f"v_lshlrev_b32 v{V_L16}, 4, v{V_LANE}\ns_mul_i32 s{S_T1}, s{S_WAVE}, 9216")
    for i in range(9):
        a.e(f"s_mov_b32 m0, s{S_T1}")
        a.e(f"buffer_load_dwordx4 v{V_L16}, s[{SRD_W}:{SRD_W+3}], s{S_T1} offen lds")
        if i < 8: a.e(f"s_add_u32 s{S_T1}, s{S_T1}, 1024")
    a.e(f"s_cmp_ge_u32 s{S_WAVE}, 6\ns_cbranch_scc1 L_prod_{n}")
    a.e(f"s_cmp_lg_u32 s{S_WAVE}, 0\ns_cbranch_scc1 L_noks_{n}")
    a.e(f"s_mul_i32 s{S_T1}, s{S_HEAD}, {8*768}\ns_add_u32 s{S_T1}, s{S_T1}, {WS_KSP}")
    srd(a, SRD_K2, S_WS, S_T1, 8*768)
    a.e("s_mov_b32 exec_lo, -1\ns_mov_b32 exec_hi, 0xffff")
    for c in range(8):
        a.e(f"s_mov_b32 s{S_T2}, {c*768}")
        a.e(f"buffer_load_dwordx4 {vr(176+4*c,4)}, v{V_L16}, s[{SRD_K2}:{SRD_K2+3}], s{S_T2} offen")
    a.e("s_waitcnt vmcnt(0)")
    for c in range(1, 8):
        for i in range(4): a.e(f"v_add_f32 v{176+i}, v{176+i}, v{176+4*c+i}")
    a.e(f"""v_cvt_pk_bf16_f32 v176, v176, v177
v_cvt_pk_bf16_f32 v177, v178, v179
v_lshrrev_b32 v180, 3, v{V_LANE}
v_lshlrev_b32 v180, 6, v180
v_bfe_u32 v181, v{V_LANE}, 1, 1
v_lshl_add_u32 v180, v181, 5, v180
v_bfe_u32 v181, v{V_LANE}, 2, 1
v_lshl_add_u32 v180, v181, 4, v180
v_and_b32 v181, 1, v{V_LANE}
v_lshl_add_u32 v180, v181, 3, v180
v_add_u32 v180, {L_KS}, v180
ds_write_b64 v180, v[176:177]
s_mov_b64 exec, -1""")
    a.label(f"L_noks_{n}")
    compute_setup(a)
    a.e(f"""v_lshlrev_b32 v{V_XN}, 2, v176
v_add_u32 v{V_XN}, {L_XN}, v{V_XN}
s_lshl_b32 s{S_T0}, s{S_WAVE}, 11
s_add_u32 s{S_T0}, s{S_T0}, {L_PHI}
v_add_u32 v{V_PHW}, s{S_T0}, v{V_L16}
s_and_b32 s{S_T0}, s{S_WAVE}, 1
s_lshl_b32 s{S_T0}, s{S_T0}, 14
s_add_u32 s{S_T0}, s{S_T0}, {L_PHI}
v_add_u32 v{V_PHR}, s{S_T0}, v{V_L16}
s_mov_b32 s{S_T}, 0
s_waitcnt vmcnt(0) lgkmcnt(0)""")
    a.label(f"L_p2a_{n}")
    a.e("s_barrier")
    a.e(f"s_add_u32 s{S_T2}, s{S_WAVE}, 1\ns_cmp_eq_u32 s{S_T}, s{S_T2}\ns_cbranch_scc0 L_cpk_{n}")
    do_pickup(a)
    a.e("s_waitcnt lgkmcnt(0)")
    a.label(f"L_cpk_{n}")
    a.e(f"ds_read_b32 v{V_KN}, v{V_XN}")
    gemm13(a, False)
    exp_stage(a, lambda r: V_KN)
    for jj in range(2):
        a.e(f"ds_write_b128 v{V_PHW}, {vr(V_PHI+4*jj,4)} offset:{jj*1024}")
    for r in list(range(V_A, V_A+4)) + [V_XN, V_PHW]:
        a.e(f"v_xor_b32 v{r}, s{S_TOG}, v{r}")
    a.e(f"s_add_u32 s{S_T}, s{S_T}, 1\ns_cmp_lt_u32 s{S_T}, 8\ns_waitcnt lgkmcnt(0)\ns_cbranch_scc1 L_p2a_{n}")
    a.e(f"s_branch L_fin_{n}")
    a.label(f"L_prod_{n}")
    srd(a, SRD_X, S_Q, S_ROWOFF, 98304)
    producer(a, True)
    a.label(f"L_fin_{n}")
    a.e("s_barrier")
    a.e(f"s_cmp_eq_u32 s{S_WAVE}, 7\ns_cbranch_scc0 L_fpk_{n}")
    do_pickup(a)
    a.e("s_waitcnt lgkmcnt(0)")
    a.label(f"L_fpk_{n}")
    p2b(a)
    a.label(f"L_end_{n}")
    a.e("s_endpgm")

HEADER = open("standalone__linear_kernel_performer__prompt.s.ref").read().split("; Override launch")[0]

def kernel_text(name, fn):
    a = Asm(); a.kname = name
    fn(a)
    body = a.finalize()
    return f""".globl {name}
.p2align 8
.type {name},@function
{name}:
{body}"""

def kd(name, vgpr=256, sgpr=102):
    return f""".amdhsa_kernel {name}
  .amdhsa_next_free_vgpr {vgpr}
  .amdhsa_next_free_sgpr {sgpr}
  .amdhsa_accum_offset {vgpr}
  .amdhsa_group_segment_fixed_size 0
  .amdhsa_kernarg_size 56
  .amdhsa_user_sgpr_count 2
  .amdhsa_user_sgpr_kernarg_segment_ptr 1
  .amdhsa_system_sgpr_workgroup_id_x 1
  .amdhsa_float_denorm_mode_32 3
.end_amdhsa_kernel
"""

def main(path):
    for pp in range(192): assert (pp*2731) >> 16 == pp // 24
    txt = HEADER
    txt += f"; @launch kernel=pf1_kernel grid=(256,1,1) block=(512,1,1) lds={LDS_BYTES}\n"
    txt += f"; @launch kernel=pf2_kernel grid=(256,1,1) block=(576,1,1) lds=0\n"
    txt += f"; @launch kernel=pf3_kernel grid=(256,1,1) block=(512,1,1) lds={LDS_BYTES}\n"
    txt += '.amdgcn_target "amdgcn-amd-amdhsa--gfx950"\n.text\n'
    txt += kernel_text("pf1_kernel", k1) + kernel_text("pf2_kernel", k2) + kernel_text("pf3_kernel", k3)
    txt += '.section .rodata,"a"\n.p2align 6\n' + kd("pf1_kernel") + ".p2align 6\n" + kd("pf2_kernel", 64) + ".p2align 6\n" + kd("pf3_kernel")
    open(path, "w").write(txt)

if __name__ == "__main__":
    main(sys.argv[1] if len(sys.argv) > 1 else "standalone__linear_kernel_performer__prompt.s")
```

```python
import struct, sys
from asmlib import Asm, vr, sr

def f32hex(x): return "0x%08x" % struct.unpack("<I", struct.pack("<f", x))[0]
SCALE = f32hex(192 ** -0.25)
LOG2E = f32hex(1.4426950408889634)
EPS = f32hex(0.75e-6)

L_PHI = 73728
L_XS = 0x18000
XS_R = 3
L_XN = L_XS + 3*12288
L_KS = L_XN + 2048
L_CNT = L_KS + 512
L_SCR = L_CNT + 64
L_STG2 = L_XS
LDS_BYTES = L_SCR + 2048
PART_SZ = 73728
KSP_SZ = 1536
WS_KSP = 0x1400000
WS_FIN = 0x1800000
WS_FLG = 0x1C00000
WS_STAMP = 0x4000000

class Cfg:
    ROLEMAP = 0x75436210
    NT = "nt"
    STAMPS = 0
    PUB = "sc1"
    GET = "sc1"
    DEPTH = 7
    OUT_NT = ""
    NPRE = 4
    QROUND = False
    PROJ_NT = "nt"
    X_NOCONV = False
    X_NOEXP = False
cfg = Cfg()

S_Q, S_K, S_V, S_P = 8, 10, 12, 14
S_OUT, S_DBG, S_WS = 16, 18, 20
S_HEAD, S_CHUNK, S_WAVE, S_ROWOFF = 22, 23, 24, 25
S_FLG = 26
SRD_X, SRD_V, SRD_P, SRD_O, SRD_W, SRD_K2, SRD_Q, SRD_F = 28, 32, 36, 40, 44, 48, 64, 68
S_VG, S_CAND, S_NONCE, S_SLOT = 52, 53, 54, 55
S_T, S_T0, S_T1, S_T2, S_T3, S_VB, S_STATE, S_SPIN = 56, 57, 58, 59, 60, 61, 62, 63
S_DLT, S_SEEN = 72, 73
S_C12K, S_CM24K, S_CM12K = 82, 83, 84

V_LANE = 1
V_A = 2
V_XN = 6
V_VE, V_VO = 7, 8
V_DMA = 9
V_FL = 10
V_L16 = 11
V_KS4 = 12
V_PHR = 13
V_PHW = 14
V_P = 16
V_ACC = 64
V_D1 = 160
V_KN = 192
V_PHI = 208
V_FB = 216
V_L2E = 248
V_QN = 249
V_T0 = 250
V_ONES = 252
V_PQ = 64
V_RAW = 16
V_CNTA = 204
V_ADN = 205

class LQ:
    def __init__(self, a): self.a = a; self.q = []
    def issue(self, text, tag): self.a.e(text); self.q.append(tag)
    def wait(self, tag):
        if tag not in self.q: return
        i = len(self.q) - 1 - self.q[::-1].index(tag)
        n = len(self.q) - 1 - i
        assert n <= 15, (n, self.q)
        self.a.e(f"s_waitcnt lgkmcnt({n})")
        self.q = self.q[i+1:]

def _stamp(a, idx):
    a.e("s_memrealtime s[76:77]\ns_memtime s[80:81]\ns_waitcnt lgkmcnt(0)")
    a.e(f"s_mov_b32 m0, {idx}")
    a.e("v_writelane_b32 v255, s76, m0")
    a.e("v_writelane_b32 v254, s80, m0")
def stamp(a, idx, lvl=1):
    if cfg.STAMPS == 0 or (lvl > 1 and cfg.STAMPS != lvl and not (a.inprod and cfg.STAMPS > 1)): return
    _stamp(a, idx)
def stamp_idx(a, sreg, mul, add, lvl=2):
    if cfg.STAMPS == 0 or (lvl > 1 and cfg.STAMPS != lvl): return
    a.e(f"s_mul_i32 s78, s{sreg}, {mul}\ns_add_u32 s78, s78, {add}")
    _stamp(a, "s78")
def stamp_flush(a):
    if not cfg.STAMPS: return
    a.e(f"""s_mov_b64 exec, -1
s_lshl_b32 s72, s2, 3
s_add_u32 s72, s72, s{S_WAVE}
s_lshl_b32 s72, s72, 8
s_add_u32 s72, s72, {WS_STAMP}
s_add_u32 s74, s{S_WS}, s72
s_addc_u32 s75, s{S_WS+1}, 0
v_and_b32 v253, 63, v0
v_lshlrev_b32 v253, 2, v253
global_store_dword v253, v255, s[74:75]
s_add_u32 s74, s74, 0x100000
s_addc_u32 s75, s75, 0
global_store_dword v253, v254, s[74:75]""")

def srd(a, d, ptr, off, size):
    if off is None:
        a.e(f"s_mov_b32 s{d}, s{ptr}\ns_and_b32 s{d+1}, s{ptr+1}, 0xffff")
    else:
        a.e(f"s_add_u32 s{d}, s{ptr}, s{off}\ns_addc_u32 s{d+1}, s{ptr+1}, 0\ns_and_b32 s{d+1}, s{d+1}, 0xffff")
    a.e(f"s_mov_b32 s{d+2}, {size}\ns_mov_b32 s{d+3}, 0x20000")

def exp_list(D, kn_of, phi, rnd=True):
    L = []
    if cfg.X_NOEXP: return L
    if rnd:
        for r in range(16): L.append(f"v_cvt_pk_bf16_f32 v{D+r}, 0, v{D+r}")
    for r in range(16): L.append(f"v_add_f32 v{D+r}, v{D+r}, v{kn_of(r)}")
    if rnd:
        for r in range(16): L.append(f"v_cvt_pk_bf16_f32 v{D+r}, 0, v{D+r}")
    for r in range(16): L.append(f"v_fma_f32 v{D+r}, v{D+r}, v{V_L2E}, -4.0")
    for r in range(16): L.append(f"v_exp_f32 v{D+r}, v{D+r}")
    for r in range(8): L.append(f"v_cvt_pk_bf16_f32 v{phi+r}, v{D+2*r}, v{D+2*r+1}")
    return L

def slot_delta(a):
    a.e(f"""s_add_u32 s{S_SLOT}, s{S_SLOT}, 1
s_cmp_eq_u32 s{S_SLOT}, {XS_R}
s_cselect_b32 s{S_DLT}, s{S_CM24K}, s{S_C12K}
s_cselect_b32 s{S_SLOT}, 0, s{S_SLOT}""")

def do_pickup(a):
    for f in range(12):
        a.e(f"ds_read_b128 {vr(V_PQ+4*f,4)}, v{V_PHR} offset:{f*1024}")


P_SCHED = {
    "init": [("K",0), ("K",1), ("K",2), ("V",0), ("V",1)],
    ("c",0): [("K",3)], ("c",1): [("K",4)],
    ("b",2): [("V",2), ("K",5), ("V",3)],
    ("b",3): [("K",6), ("V",4)], ("b",4): [("K",7), ("V",5)], ("b",5): [("V",6), ("V",7)],
    ("b",6): [("Q",0), ("Q",1)], ("b",7): [("Q",2), ("Q",3)], ("b","7a"): [("Q",4), ("Q",5)], ("b","7b"): [("Q",6), ("Q",7)],
}

def producer(a):
    a.inprod = True
    TMP = 208; VSC = 224; VMK = 226; VDM = 227
    issued = []
    a.label("L_prod")
    srd(a, SRD_X, S_K, S_ROWOFF, 98304)
    a.e(f"""s_sub_u32 s{S_T0}, s{S_WAVE}, 6
s_lshl_b32 s{S_VG}, s{S_T0}, 1
s_lshl_b32 s{S_T0}, s{S_T0}, 4
v_lshrrev_b32 v7, 3, v{V_LANE}
v_and_b32 v8, 7, v{V_LANE}
v_add_u32 v9, s{S_T0}, v7
v_mul_u32_u24 v10, 384, v9
v_lshl_add_u32 v2, v8, 4, v10""")
    def issue(tok):
        kind, t = tok
        issued.append(tok)
        if kind in "KQ":
            srdn = SRD_X if kind == "K" else SRD_Q
            a.e(f"s_mov_b32 s{S_T1}, {t*12288}")
            for g in range(2):
                for cb in range(3):
                    r = V_RAW + 24*t + 12*g + 4*cb
                    a.e(f"buffer_load_dwordx4 {vr(r,4)}, v2, s[{srdn}:{srdn+3}], s{S_T1} offen offset:{g*3072+cb*128} {cfg.NT}")
        else:
            for e in range(2):
                for cb in range(3):
                    a.e(f"s_add_u32 m0, s{S_VB}, {t*12288 + cb*4096 + e*1024}\ns_add_u32 s{S_T1}, s{S_VG}, {t*12288 + e*3072 + cb*128}")
                    a.e(f"buffer_load_dwordx4 v{VDM}, s[{SRD_V}:{SRD_V+3}], s{S_T1} offen {cfg.NT} lds")
    def wait_for(tok):
        n = 6 * (len(issued) - 1 - issued.index(tok))
        assert n <= 63, n
        a.e(f"s_waitcnt vmcnt({n})")
    def ev(key):
        for tok in P_SCHED.get(key, []): issue(tok)
    for tok in P_SCHED["init"][:3]: issue(tok)
    srd(a, SRD_V, S_V, S_ROWOFF, 98304)
    a.e(f"""v_mul_u32_u24 v11, 384, v7
v_lshrrev_b32 v12, 2, v{V_LANE}
v_and_b32 v12, 4, v12
v_xor_b32 v12, v12, v8
v_lshl_add_u32 v{VDM}, v12, 4, v11
s_lshl_b32 s{S_VB}, s{S_VG}, 10
s_mul_i32 s{S_VG}, s{S_VG}, 3072""")
    for tok in P_SCHED["init"][3:]: issue(tok)
    srd(a, SRD_Q, S_Q, S_ROWOFF, 98304)
    a.e(f"""v_lshrrev_b32 v11, 1, v7
v_xor_b32 v11, v11, v8
v_lshlrev_b32 v12, 4, v11
v_lshlrev_b32 v10, 7, v9
v_add_u32 v3, v10, v12
v_xor_b32 v4, 64, v3
v_add_u32 v4, 1024, v4
v_lshlrev_b32 v5, 2, v9
v_add_u32 v5, {L_XN}, v5
v_mov_b32 v{VSC}, {SCALE}
v_mov_b32 v{VSC+1}, {SCALE}
v_mov_b32 v{VMK}, 0xffff0000
v_add_u32 v13, {L_XS}, v3
v_add_u32 v14, {L_XS}, v4""")
    def convert(kind, t):
        T = t if kind == "K" else 8 + t
        b = V_RAW + 24*t
        wait_for((kind, t))
        stamp(a, 2 + 3*T, 2)
        if kind == "K": A0, A1, off = 13, 14, (t % 3)*12288
        else:
            A0, A1, off = 3, 4, 0
        for g in range(2):
            nreg = TMP + 8 + g
            a.e(f"v_mov_b32 v{nreg}, 0\nv_mov_b32 v{nreg+2}, 0")
            for c4 in range(3):
                xs_ = [b + 12*g + 4*c4 + i for i in range(4)]
                if not cfg.X_NOCONV:
                    for i, x in enumerate(xs_): a.e(f"v_lshlrev_b32 v{TMP+2*i}, 16, v{x}")
                    for i, x in enumerate(xs_): a.e(f"v_and_b32 v{TMP+2*i+1}, v{VMK}, v{x}")
                    for i, x in enumerate(xs_): a.e(f"v_pk_mul_f32 v[{TMP+2*i}:{TMP+2*i+1}], v[{TMP+2*i}:{TMP+2*i+1}], v[{VSC}:{VSC+1}]")
                    for i, x in enumerate(xs_): a.e(f"v_cvt_pk_bf16_f32 v{x}, v{TMP+2*i}, v{TMP+2*i+1}")
                    for i, x in enumerate(xs_): a.e(f"v_dot2c_f32_bf16 v{nreg + 2*(i&1)}, v{x}, v{x}")
                a.e(f"ds_write_b128 v{A0+g}, {vr(b+12*g+4*c4,4)} offset:{off + c4*4096}")
            a.e(f"v_add_f32 v{nreg}, v{nreg}, v{nreg+2}")
        for perm in ("quad_perm:[1,0,3,2]", "quad_perm:[2,3,0,1]", "row_half_mirror"):
            for g in range(2):
                nreg = TMP + 8 + g
                a.e(f"v_add_f32_dpp v{nreg}, v{nreg}, v{nreg} {perm} row_mask:0xf bank_mask:0xf")
        for g in range(2): a.e(f"v_cvt_pk_bf16_f32 v{TMP+8+g}, 0, v{TMP+8+g}")
        for g in range(2): a.e(f"v_mul_f32 v{TMP+8+g}, -0.5, v{TMP+8+g}")
        for g in range(2): a.e(f"ds_write_b32 v5, v{TMP+8+g} offset:{T*128 + g*32}")
        if kind == "Q": a.e("v_add_u32 v3, 12288, v3\nv_add_u32 v4, 12288, v4")
        a.e("s_waitcnt lgkmcnt(0)")
        stamp(a, 3 + 3*T, 2)
    for T in range(8):
        convert("K", T)
        ev(("c", T))
        if T >= 2: wait_for(("V", T - 2))
        nb = {0: 0, 1: 0, 2: 3}.get(T, 1)
        for _ in range(nb): a.e("s_barrier")
        stamp(a, 4 + 3*T, 2)
        ev(("b", T))
    wait_for(("V", 6))
    a.e("s_barrier")
    ev(("b", "7a"))
    convert("Q", 0)
    wait_for(("V", 7))
    a.e("s_barrier")
    ev(("b", "7b"))
    convert("Q", 1)
    convert("Q", 2)
    a.e("s_barrier\ns_barrier\ns_barrier")
    for t in range(3, 8):
        convert("Q", t)
        a.e("s_barrier")
    a.e("s_barrier\ns_barrier")
    a.e("s_branch L_fin")
    a.inprod = False

def vdma(a, tile_sgpr, m0src=None):
    if m0src is None: a.e(f"s_add_u32 m0, s{S_VB}, s{tile_sgpr}")
    else: a.e(f"s_mov_b32 m0, s{m0src}")
    a.e(f"s_add_u32 s{S_T3}, s{S_VG}, s{tile_sgpr}")
    a.e(f"buffer_load_dwordx4 v{V_DMA}, s[{SRD_V}:{SRD_V+3}], s{S_T3} offen {cfg.NT} lds")
    a.e(f"s_add_u32 m0, m0, 1024\ns_add_u32 s{S_T3}, s{S_T3}, 3072")
    a.e(f"buffer_load_dwordx4 v{V_DMA}, s[{SRD_V}:{SRD_V+3}], s{S_T3} offen {cfg.NT} lds")

def FB(k): return V_FB + 4*(k % 8)

class Item:
    def __init__(self, tag, reads, mfma):
        self.tag = tag; self.reads = reads; self.mfma = mfma
def itemA(j, D, p1):
    def reads(b): return [f"ds_read_b128 {vr(b,4)}, v{V_A+(j&3)} offset:{(j>>2)*4096}"]
    def mfma(b):
        fp = vr(V_P+4*j, 4); c = "0" if j == 0 else vr(D, 16)
        return f"v_mfma_f32_32x32x16_bf16 {vr(D,16)}, {vr(b,4)}, {fp}, {c}" if p1 else f"v_mfma_f32_32x32x16_bf16 {vr(D,16)}, {fp}, {vr(b,4)}, {c}"
    return Item(("A", j), reads, mfma)
def itemB(idx):
    jj, dt = idx // 6, idx % 6
    base = V_VE if dt % 2 == 0 else V_VO
    def reads(b): return [f"ds_read_b64_tr_b16 {vr(b+2*u,2)}, v{base} offset:{(dt>>1)*4096+(16*jj+8*u)*128}" for u in range(2)]
    def mfma(b): return f"v_mfma_f32_32x32x16_bf16 {vr(V_ACC+16*dt,16)}, {vr(V_PHI+4*jj,4)}, {vr(b,4)}, {vr(V_ACC+16*dt,16)}"
    return Item(("B", idx), reads, mfma)

def issue_item(lq, it, k, uid):
    rs = it.reads(FB(k))
    for n, r in enumerate(rs): lq.issue(r, (uid, k, n))
    return (uid, k, len(rs)-1)

def run_stream(a, lq, items, nxt, side, k0=0, pend=None, depth=None):
    D = depth or cfg.DEPTH
    n = len(items)
    pend = dict(pend or {})
    out = {}
    for k in range(n):
        lq.wait(pend[k])
        a.e(items[k].mfma(FB(k0 + k)))
        kk = k + D
        if kk < n:
            pend[kk] = issue_item(lq, items[kk], k0 + kk, "c")
        elif nxt is not None and kk - n < len(nxt):
            out[kk - n] = issue_item(lq, nxt[kk - n], k0 + kk, "n")
        for x in side.get(k, []):
            if callable(x): x()
            else: a.e(x)
    return out

def prime(lq, items, k0=0, depth=None):
    D = depth or cfg.DEPTH
    return {k: issue_item(lq, items[k], k0 + k, "p") for k in range(D)}

def spread(L, lo, hi, side=None):
    side = side if side is not None else {}
    n = hi - lo
    k = 0
    for p in range(n):
        upto = (len(L) * (p + 1)) // n
        side.setdefault(lo + p, [])
        while k < upto:
            side[lo + p].append(L[k]); k += 1
    return side

def signal(a, lds_off, target, flag_off, name):
    a.e(f"""v_mov_b32 v{V_T0}, {L_CNT}
v_mov_b32 v{V_T0+1}, 1
s_mov_b32 exec_lo, 1
s_mov_b32 exec_hi, 0
ds_add_rtn_u32 v{V_T0+2}, v{V_T0}, v{V_T0+1} offset:{lds_off}
ds_read_b32 v{V_T0+3}, v{V_T0} offset:8
s_waitcnt lgkmcnt(0)
v_readfirstlane_b32 s{S_T0}, v{V_T0+2}
s_cmp_eq_u32 s{S_T0}, {target-1}
s_cbranch_scc0 L_sig_{name}
s_lshl_b32 s{S_T0}, s{S_CHUNK}, 2
s_add_u32 s{S_T0}, s{S_T0}, {flag_off}
v_mov_b32 v{V_T0}, s{S_T0}
global_store_dword v{V_T0}, v{V_T0+3}, s[{S_FLG}:{S_FLG+1}] sc1""")
    a.label(f"L_sig_{name}")
    a.e("s_mov_b64 exec, -1")

LAND = 112
def sb_off(a):
    a.e(f"""s_mul_i32 s{S_T0}, s{S_CHUNK}, 9216
s_mul_i32 s{S_T1}, s{S_WAVE}, 1536
s_add_u32 s{S_T2}, s{S_T0}, s{S_T1}
v_lshlrev_b32 v{V_T0}, 3, v{V_LANE}
v_add_u32 v{V_T0}, 1024, v{V_T0}""")
def sb_loads(a, p0):
    sb_off(a)
    if p0: a.e(f"s_add_u32 s{S_T2}, s{S_T2}, {p0*PART_SZ}")
    for p in range(p0, p0+4):
        a.e(f"buffer_load_dwordx4 {vr(LAND+6*p,4)}, v{V_L16}, s[{SRD_W}:{SRD_W+3}], s{S_T2} offen {cfg.GET}")
        a.e(f"buffer_load_dwordx2 {vr(LAND+6*p+4,2)}, v{V_T0}, s[{SRD_W}:{SRD_W+3}], s{S_T2} offen {cfg.GET}")
        if p < p0+3: a.e(f"s_add_u32 s{S_T2}, s{S_T2}, {PART_SZ}")
def sb_sum(a, p0):
    ACC = V_KN; TL, TH, MK = V_T0+1, V_T0+2, V_T0+3
    a.e(f"v_mov_b32 v{MK}, 0xffff0000")
    a.e(f"s_waitcnt vmcnt({8 if p0 == 0 else 0})")
    for p in range(p0, p0+4):
        for i in range(6):
            x = LAND + 6*p + i
            if p == 0:
                a.e(f"v_lshlrev_b32 v{ACC+2*i}, 16, v{x}\nv_and_b32 v{ACC+2*i+1}, v{MK}, v{x}")
            else:
                a.e(f"v_lshlrev_b32 v{TL}, 16, v{x}\nv_and_b32 v{TH}, v{MK}, v{x}\nv_add_f32 v{ACC+2*i}, v{ACC+2*i}, v{TL}\nv_add_f32 v{ACC+2*i+1}, v{ACC+2*i+1}, v{TH}")
    if p0 == 4:
        for i in range(6):
            a.e(f"v_cvt_pk_bf16_f32 v{LAND+i}, v{ACC+2*i}, v{ACC+2*i+1}")
        sb_off(a)
        a.e(f"buffer_store_dwordx4 {vr(LAND,4)}, v{V_L16}, s[{SRD_F}:{SRD_F+3}], s{S_T2} offen {cfg.PUB}")
        a.e(f"buffer_store_dwordx2 {vr(LAND+4,2)}, v{V_T0}, s[{SRD_F}:{SRD_F+3}], s{S_T2} offen {cfg.PUB}")

def poll_issue(a, flag_off):
    a.e(f"""s_mov_b32 exec_lo, 0xff
s_mov_b32 exec_hi, 0
v_lshlrev_b32 v{V_T0}, 2, v{V_LANE}
global_load_dword v{V_FL}, v{V_T0}, s[{S_FLG}:{S_FLG+1}] offset:{flag_off} sc1
s_mov_b64 exec, -1""")
def poll_check(a):
    a.e(f"""v_cmp_eq_u32 vcc, s{S_NONCE}, v{V_FL}
s_nop 1
s_and_b32 s{S_T3}, vcc_lo, 0xff
s_cmp_eq_u32 s{S_T3}, 0xff""")
def poll_block(a, flag_off, name):
    a.e(f"s_mov_b32 s{S_SPIN}, 0")
    a.label(f"L_poll_{name}")
    poll_issue(a, flag_off)
    a.e("s_waitcnt vmcnt(0)")
    poll_check(a)
    a.e(f"""s_cbranch_scc1 L_polld_{name}
s_sleep 1
s_add_u32 s{S_SPIN}, s{S_SPIN}, 1
s_cmp_lt_u32 s{S_SPIN}, 0x40000
s_cbranch_scc1 L_poll_{name}""")
    a.label(f"L_polld_{name}")
def set_done(a, val):
    a.e(f"v_mov_b32 v{V_T0+1}, {val}\nds_write_b32 v{V_CNTA}, v{V_T0+1} offset:12\ns_mov_b32 s{S_SEEN}, {val}")

def kv_loads(a):
    a.e(f"s_mul_i32 s{S_T2}, s{S_WAVE}, 9216")
    for i in range(9):
        a.e(f"buffer_load_dwordx4 {vr(LAND+4*i,4)}, v{V_L16}, s[{SRD_F}:{SRD_F+3}], s{S_T2} offen {cfg.GET}")
        if i < 8: a.e(f"s_add_u32 s{S_T2}, s{S_T2}, 1024")

def ks_loads(a):
    a.e(f"v_lshlrev_b32 v150, 2, v{V_LANE}\ns_lshl_b32 s{S_T2}, s{S_WAVE}, 8")
    for c in range(8):
        a.e(f"buffer_load_dword v{152+c}, v150, s[{SRD_K2}:{SRD_K2+3}], s{S_T2} offen {cfg.GET}")
        if c < 7: a.e(f"s_add_u32 s{S_T2}, s{S_T2}, {KSP_SZ}")

def xchg_step(a, name, blocking):
    n = name
    a.e(f"s_cmp_eq_u32 s{S_STATE}, 7\ns_cbranch_scc1 L_xd_{n}")
    if not blocking:
        a.e(f"s_cmp_lg_u32 s{S_WAVE}, 0\ns_cbranch_scc1 L_xp_{n}\ns_cmp_eq_u32 s{S_SEEN}, 0\ns_cbranch_scc1 L_xpa_{n}")
        a.e(f"s_cmp_lg_u32 s{S_SEEN}, 1\ns_cbranch_scc1 L_xp_{n}\ns_cmp_lt_u32 s{S_STATE}, 6\ns_cbranch_scc1 L_xp_{n}")
        a.e("s_waitcnt vmcnt(0)")
        poll_check(a)
        a.e(f"s_cbranch_scc0 L_xp_{n}")
        set_done(a, 2)
        a.e(f"s_branch L_xp_{n}")
        a.label(f"L_xpa_{n}")
        a.e("s_waitcnt vmcnt(0)")
        poll_check(a)
        a.e(f"s_cbranch_scc0 L_xp_{n}")
        set_done(a, 1)
        a.label(f"L_xp_{n}")
    a.e(f"s_cmp_eq_u32 s{S_STATE}, 6\ns_cbranch_scc1 L_x6_{n}")
    a.e(f"s_cmp_eq_u32 s{S_STATE}, 5\ns_cbranch_scc1 L_x5_{n}")
    a.e(f"s_cmp_eq_u32 s{S_STATE}, 4\ns_cbranch_scc1 L_x4_{n}")
    a.e(f"s_cmp_eq_u32 s{S_STATE}, 3\ns_cbranch_scc1 L_x3_{n}")
    a.e(f"s_cmp_eq_u32 s{S_STATE}, 2\ns_cbranch_scc1 L_x2_{n}")
    def wait_flag(val, lbl_go, flag_off, tag):
        a.e(f"s_cmp_lg_u32 s{S_WAVE}, 0\ns_cbranch_scc1 L_xr{tag}_{n}\ns_cmp_ge_u32 s{S_SEEN}, {val}\ns_cbranch_scc1 {lbl_go}")
        poll_block(a, flag_off, tag + n)
        set_done(a, val)
        a.e(f"s_branch {lbl_go}")
        a.label(f"L_xr{tag}_{n}")
        a.e(f"s_mov_b32 s{S_SPIN}, 0")
        a.label(f"L_xs{tag}_{n}")
        a.e(f"""ds_read_b32 v{V_ADN}, v{V_CNTA} offset:12
s_waitcnt lgkmcnt(0)
v_readfirstlane_b32 s{S_T3}, v{V_ADN}
s_cmp_ge_u32 s{S_T3}, {val}
s_cbranch_scc1 {lbl_go}
s_sleep 1
s_add_u32 s{S_SPIN}, s{S_SPIN}, 1
s_cmp_lt_u32 s{S_SPIN}, 0x1000000
s_cbranch_scc1 L_xs{tag}_{n}""")
    if blocking: wait_flag(1, f"L_xg_{n}", 0, "A")
    else: a.e(f"v_readfirstlane_b32 s{S_T3}, v{V_ADN}\ns_cmp_eq_u32 s{S_T3}, 0\ns_cbranch_scc1 L_xd_{n}")
    a.label(f"L_xg_{n}")
    sb_loads(a, 0)
    a.e(f"s_mov_b32 s{S_STATE}, 2")
    if not blocking: a.e(f"s_branch L_xd_{n}")
    a.label(f"L_x2_{n}")
    sb_loads(a, 4)
    a.e(f"s_mov_b32 s{S_STATE}, 3")
    if not blocking: a.e(f"s_branch L_xd_{n}")
    a.label(f"L_x3_{n}")
    sb_sum(a, 0)
    a.e(f"s_mov_b32 s{S_STATE}, 4")
    if not blocking: a.e(f"s_branch L_xd_{n}")
    a.label(f"L_x4_{n}")
    sb_sum(a, 4)
    a.e(f"s_mov_b32 s{S_STATE}, 5")
    if not blocking: a.e(f"s_branch L_xd_{n}")
    a.label(f"L_x5_{n}")
    a.e("s_waitcnt vmcnt(0)")
    signal(a, 4, 6, 128, "B" + n)
    ks_loads(a)
    a.e(f"s_mov_b32 s{S_STATE}, 6")
    if not blocking: a.e(f"s_branch L_xd_{n}")
    a.label(f"L_x6_{n}")
    if blocking: wait_flag(2, f"L_xk_{n}", 128, "B")
    else: a.e(f"v_readfirstlane_b32 s{S_T3}, v{V_ADN}\ns_cmp_lt_u32 s{S_T3}, 2\ns_cbranch_scc1 L_xd_{n}")
    a.label(f"L_xk_{n}")
    kv_loads(a)
    a.e(f"s_mov_b32 s{S_STATE}, 7")
    a.label(f"L_xd_{n}")

def kn_reads(lq):
    def f():
        for q in range(4):
            lq.issue(f"ds_read_b128 {vr(V_KN+4*q,4)}, v{V_XN} offset:{q*32}", ("K", q))
        lq.a.e(f"v_add_u32 v{V_XN}, 128, v{V_XN}")
    return f

def xs_adv(a):
    def f():
        slot_delta(a)
        for r in range(V_A, V_A+4): a.e(f"v_add_u32 v{r}, s{S_DLT}, v{r}")
    return f

def xs_addr(a, slot, base=L_XS):
    a.e(f"""v_and_b32 v176, 31, v{V_LANE}
v_lshrrev_b32 v177, 5, v{V_LANE}
v_lshrrev_b32 v178, 1, v176
v_and_b32 v178, 7, v178
v_lshlrev_b32 v179, 7, v176
v_add_u32 v179, {base + slot*12288}, v179""")
    for k in range(4):
        a.e(f"""v_add_u32 v180, {2*k}, v177
v_xor_b32 v180, v180, v178
v_lshl_add_u32 v{V_A+k}, v180, 4, v179""")

def compute(a):
    lq = LQ(a)
    D = cfg.DEPTH
    a.e("s_setprio 3")
    a.e(f"""v_lshrrev_b32 v160, 3, v{V_LANE}
v_and_b32 v161, 7, v{V_LANE}
v_mul_u32_u24 v162, 384, v160
v_lshrrev_b32 v164, 1, v160
v_xor_b32 v164, v164, v161
v_lshl_add_u32 v164, v164, 4, v162
v_xor_b32 v165, 64, v164
s_mul_i32 s{S_T1}, s{S_WAVE}, 12288""")
    srd(a, SRD_P, S_P, S_T1, 12288)
    a.e(f"s_add_u32 s{S_T2}, s{S_T1}, 24576")
    for cb in range(3):
        for G in range(4):
            a.e(f"s_add_u32 m0, s{S_T2}, {cb*4096+G*1024}\ns_mov_b32 s{S_T3}, {G*3072+cb*128}")
            a.e(f"buffer_load_dwordx4 v{164+(G&1)}, s[{SRD_P}:{SRD_P+3}], s{S_T3} offen {cfg.PROJ_NT} lds")
    a.e(f"""s_lshl_b32 s{S_T0}, s{S_HEAD}, 8
s_add_u32 s{S_T0}, s{S_T0}, {WS_FLG}
s_add_u32 s{S_FLG}, s{S_WS}, s{S_T0}
s_addc_u32 s{S_FLG+1}, s{S_WS+1}, 0
s_cmp_lg_u32 s{S_WAVE}, 0
s_cbranch_scc1 L_nofl
v_and_b32 v166, 7, v{V_LANE}
v_lshlrev_b32 v166, 2, v166
v_and_b32 v167, 8, v{V_LANE}
v_lshl_add_u32 v166, v167, 4, v166
s_mov_b32 exec_lo, 0xffff
s_mov_b32 exec_hi, 0
global_load_dword v{V_FL}, v166, s[{S_FLG}:{S_FLG+1}] sc1
s_mov_b64 exec, -1""")
    a.label("L_nofl")
    a.e("s_setprio 0")
    xs_addr(a, 0)
    a.e(f"""v_lshlrev_b32 v{V_L16}, 4, v{V_LANE}
v_lshlrev_b32 v{V_XN}, 4, v177
v_add_u32 v{V_XN}, {L_XN}, v{V_XN}
v_and_b32 v178, 15, v{V_LANE}
v_lshrrev_b32 v179, 2, v178
v_lshl_add_u32 v179, v177, 2, v179
v_lshlrev_b32 v179, 7, v179
v_bfe_u32 v180, v{V_LANE}, 4, 1
v_lshl_add_u32 v179, v180, 5, v179
v_and_b32 v180, 3, v178
v_lshl_add_u32 v179, v180, 3, v179
v_bfe_u32 v180, v178, 3, 1
v_lshl_add_u32 v{V_VE}, v180, 6, v179
v_xor_b32 v180, 1, v180
v_lshl_add_u32 v{V_VO}, v180, 6, v179
v_add_u32 v{V_VE}, {2*12288}, v{V_VE}
v_add_u32 v{V_VO}, {2*12288}, v{V_VO}
v_mov_b32 v{V_L2E}, {LOG2E}
v_mov_b32 v181, {L_CNT}
v_mov_b32 v182, 0
v_mov_b32 v183, 0
ds_write_b64 v181, v[182:183]
ds_write_b32 v181, v182 offset:12
s_mov_b32 s{S_SLOT}, 0""")
    for r in range(4): a.e(f"v_mov_b32 v{V_KS4+r}, 0")
    for r in range(96): a.e(f"v_mov_b32 v{V_ACC+r}, 0")
    for r in range(8): a.e(f"v_mov_b32 v{V_PHI+r}, 0")
    a.e(f"s_mul_i32 s{S_T1}, s{S_WAVE}, 12288\ns_add_u32 s{S_T1}, s{S_T1}, {24576 - L_XS}")
    for k in range(4): a.e(f"v_add_u32 v{184+k}, s{S_T1}, v{V_A+k}")
    a.e("s_waitcnt vmcnt(0)")
    for j in range(12):
        a.e(f"ds_read_b128 {vr(V_P+4*j,4)}, v{184+(j&3)} offset:{(j>>2)*4096}")
    a.e("s_waitcnt lgkmcnt(0)")
    stamp(a, 1)
    a.e("s_barrier")
    stamp(a, 2)
    A0 = [itemA(j, V_D1, True) for j in range(12)]
    pend = prime(lq, A0, 0)
    a.e(f"s_cmp_lg_u32 s{S_WAVE}, 0\ns_cbranch_scc1 L_nocas")
    a.e(f"""v_subrev_u32 v{V_KN}, 1, v{V_FL}
v_mov_b32 v{V_KN+1}, 1
v_lshlrev_b32 v{V_KN+1}, v{V_KN}, v{V_KN+1}
v_cmp_gt_u32 vcc, 32, v{V_KN}
s_nop 1
s_and_b32 vcc_lo, vcc_lo, 0xffff
s_mov_b32 vcc_hi, 0
v_cndmask_b32 v{V_KN+1}, 0, v{V_KN+1}, vcc
v_or_b32_dpp v{V_KN+1}, v{V_KN+1}, v{V_KN+1} row_shr:1 row_mask:0xf bank_mask:0xf
v_or_b32_dpp v{V_KN+1}, v{V_KN+1}, v{V_KN+1} row_shr:2 row_mask:0xf bank_mask:0xf
v_or_b32_dpp v{V_KN+1}, v{V_KN+1}, v{V_KN+1} row_shr:4 row_mask:0xf bank_mask:0xf
v_or_b32_dpp v{V_KN+1}, v{V_KN+1}, v{V_KN+1} row_shr:8 row_mask:0xf bank_mask:0xf
v_readlane_b32 s{S_CAND}, v{V_KN+1}, 15
s_not_b32 s{S_CAND}, s{S_CAND}
s_ff1_i32_b32 s{S_CAND}, s{S_CAND}
s_add_u32 s{S_CAND}, s{S_CAND}, 1
v_mov_b32 v{V_KN+2}, s{S_CAND}
v_mov_b32 v{V_KN+3}, 0
s_lshl_b32 s{S_T0}, s{S_HEAD}, 3
v_mov_b32 v251, s{S_T0}
s_mov_b32 exec_lo, 1
s_mov_b32 exec_hi, 0
global_atomic_cmpswap v250, v251, v[{V_KN+2}:{V_KN+3}], s[{S_DBG}:{S_DBG+1}] sc0 sc1
s_mov_b64 exec, -1""")
    a.label("L_nocas")
    a.e(f"v_mov_b32 v{V_ONES}, 0x3f803f80\nv_mov_b32 v{V_ONES+1}, 0x3f803f80")
    run_stream(a, lq, A0, None, {}, 0, pend)
    xs_adv(a)()
    a.e("s_barrier")
    a.e(f"s_mov_b32 s{S_T}, 0")
    Bs = [itemB(i) for i in range(12)]
    def vadv(delta):
        return [f"v_add_u32 v{V_VE}, {delta}, v{V_VE}", f"v_add_u32 v{V_VO}, {delta}, v{V_VO}"]
    ks4 = [f"v_mfma_f32_4x4x4_16b_bf16 {vr(V_KS4,4)}, {vr(V_ONES,2)}, {vr(V_PHI+2*r,2)}, {vr(V_KS4,4)}" for r in range(4)]
    def seqZ(par): return Bs + [itemA(j, V_D1 + 16*(1-par), True) for j in range(12)]
    KNPOS = 12
    kn_reads(lq)()
    pend = prime(lq, seqZ(0), 0)
    a.label("L_p1")
    for par in range(2):
        stamp_idx(a, S_T, 4, 3)
        a.e("s_barrier")
        stamp_idx(a, S_T, 4, 4)
        side = {}
        el = exp_list(V_D1 + 16*par, lambda r: V_KN + r, V_PHI)
        body, pack = (el[:-8], el[-8:]) if el else ([], [])
        el2 = body[:16] + [lambda: lq.wait(("K", 3))] + body[16:]
        for r in range(4): side.setdefault(1 + 3*r, []).append(ks4[r])
        spread(el2, 0, 22, side)
        spread(pack, 22, 24, side)
        if par == 0:
            side.setdefault(11 - D, []).extend([f"s_cmp_eq_u32 s{S_T}, 0", f"s_cselect_b32 s{S_T2}, s{S_CM24K}, s{S_C12K}", f"v_add_u32 v{V_VE}, s{S_T2}, v{V_VE}", f"v_add_u32 v{V_VO}, s{S_T2}, v{V_VO}"])
        else:
            side.setdefault(11 - D, []).extend(vadv(12288))
        side.setdefault(23 - D, []).append(xs_adv(a))
        side.setdefault(KNPOS, []).append(kn_reads(lq))
        pend = run_stream(a, lq, seqZ(par), seqZ(1-par), side, 0, pend)
        stamp_idx(a, S_T, 4, 6)
        a.e(f"s_add_u32 s{S_T}, s{S_T}, 1")
    a.e(f"s_cmp_lt_u32 s{S_T}, 8\ns_cbranch_scc1 L_p1")
    side = {}
    for r in range(4): side.setdefault(1 + 3*r, []).append(ks4[r])
    run_stream(a, lq, Bs, None, side, 0, pend)
    a.e("s_waitcnt lgkmcnt(0)")
    lq.q = []
    stamp(a, 40)
    a.e(f"""s_lshl_b32 s{S_T0}, s{S_HEAD}, 3
s_add_u32 s{S_T0}, s{S_T0}, s{S_CHUNK}
s_mul_i32 s{S_T1}, s{S_T0}, {PART_SZ}""")
    srd(a, SRD_O, S_WS, S_T1, PART_SZ)
    a.e(f"s_mul_i32 s{S_T1}, s{S_T0}, {KSP_SZ}\ns_add_u32 s{S_T1}, s{S_T1}, {WS_KSP}")
    srd(a, SRD_K2, S_WS, S_T1, KSP_SZ)
    a.e(f"s_lshl_b32 s{S_T2}, s{S_WAVE}, 11")
    for dt in range(6):
        for jj in range(2):
            tb = V_FB + 4*((dt*2+jj) % 8)
            for i in range(4):
                a.e(f"v_cvt_pk_bf16_f32 v{tb+i}, v{V_ACC+16*dt+8*jj+2*i}, v{V_ACC+16*dt+8*jj+2*i+1}")
            a.e(f"buffer_store_dwordx4 {vr(tb,4)}, v{V_L16}, s[{SRD_O}:{SRD_O+3}], s{S_T2} offen offset:{jj*1024} {cfg.PUB}")
        if dt < 5: a.e(f"s_add_u32 s{S_T2}, s{S_T2}, 12288")
    a.e(f"v_lshlrev_b32 v{V_T0+1}, 2, v{V_LANE}\ns_lshl_b32 s{S_T2}, s{S_WAVE}, 8")
    a.e(f"buffer_store_dword v{V_KS4}, v{V_T0+1}, s[{SRD_K2}:{SRD_K2+3}], s{S_T2} offen {cfg.PUB}")
    a.e(f"s_cmp_lg_u32 s{S_WAVE}, 0\ns_cbranch_scc1 L_nn")
    a.e(f"""v_readfirstlane_b32 s{S_NONCE}, v250
s_cmp_eq_u32 s{S_NONCE}, 0
s_cselect_b32 s{S_NONCE}, s{S_CAND}, s{S_NONCE}
v_mov_b32 v{V_T0+2}, {L_CNT}
v_mov_b32 v{V_T0+3}, s{S_NONCE}
ds_write_b32 v{V_T0+2}, v{V_T0+3} offset:8""")
    a.label("L_nn")
    a.e(f"s_mul_i32 s{S_T2}, s{S_HEAD}, {8*KSP_SZ}\ns_add_u32 s{S_T2}, s{S_T2}, {WS_KSP}")
    srd(a, SRD_K2, S_WS, S_T2, 8*KSP_SZ)
    a.e(f"s_mul_i32 s{S_T1}, s{S_HEAD}, {8*PART_SZ}")
    srd(a, SRD_W, S_WS, S_T1, 8*PART_SZ)
    a.e(f"s_mul_i32 s{S_T1}, s{S_HEAD}, {PART_SZ}\ns_add_u32 s{S_T1}, s{S_T1}, {WS_FIN}")
    srd(a, SRD_F, S_WS, S_T1, PART_SZ)
    xs_addr(a, 0, 0)
    a.e(f"""v_lshlrev_b32 v{V_XN}, 2, v176
v_add_u32 v{V_XN}, {L_XN + 8*128}, v{V_XN}
s_lshl_b32 s{S_T0}, s{S_WAVE}, 11
v_add_u32 v{V_PHW}, s{S_T0}, v{V_L16}
v_mov_b32 v{V_CNTA}, {L_CNT}
v_mov_b32 v{V_ADN}, 0
s_mov_b32 s{S_STATE}, -1
s_mov_b32 s{S_SEEN}, 0""")
    stamp(a, 41)
    a.e("s_barrier")
    stamp(a, 43)
    def qadv():
        for r in range(V_A, V_A+4): a.e(f"v_add_u32 v{r}, 12288, v{r}")
    Q0 = [itemA(j, V_D1, False) for j in range(12)]
    pend = prime(lq, Q0, 0)
    run_stream(a, lq, Q0, None, {}, 0, pend)
    qadv()
    a.e("s_barrier")
    def seqQ(par): return [itemA(j, V_D1 + 16*(1-par), False) for j in range(12)]
    pend = prime(lq, seqQ(0), 12)
    a.e("s_waitcnt vmcnt(0)")
    stamp(a, 42)
    signal(a, 0, 6, 0, "A")
    lq.q = []
    a.e(f"s_mov_b32 s{S_STATE}, 0\ns_mov_b32 s{S_T}, 0")
    a.label("L_p2a")
    for par in range(2):
        k0 = 12 if par == 0 else 0
        a.e("s_barrier")
        stamp_idx(a, S_T, 1, 44, 1)
        a.e(f"s_cmp_lg_u32 s{S_WAVE}, 0\ns_cbranch_scc1 L_np_{par}\ns_cmp_eq_u32 s{S_SEEN}, 0\ns_cbranch_scc1 L_npa_{par}")
        a.e(f"s_cmp_lg_u32 s{S_SEEN}, 1\ns_cbranch_scc1 L_np_{par}\ns_cmp_lt_u32 s{S_STATE}, 6\ns_cbranch_scc1 L_np_{par}")
        poll_issue(a, 128)
        a.e(f"s_branch L_np_{par}")
        a.label(f"L_npa_{par}")
        poll_issue(a, 0)
        a.label(f"L_np_{par}")
        lq.issue(f"ds_read_b32 v{V_QN}, v{V_XN}", ("K", 0))
        lq.issue(f"ds_read_b32 v{V_ADN}, v{V_CNTA} offset:12", ("K", 1))
        a.e(f"v_add_u32 v{V_XN}, 128, v{V_XN}")
        side = {}
        el = exp_list(V_D1 + 16*par, lambda r: V_QN, V_PHI, cfg.QROUND)
        nlead = 16 if cfg.QROUND else 0
        el2 = el[:nlead] + [lambda: lq.wait(("K", 1))] + el[nlead:]
        spread(el2, 0 if cfg.QROUND else 1, 12, side)
        side.setdefault(11 - D, []).append(qadv)
        pend = run_stream(a, lq, seqQ(par), seqQ(1-par), side, k0, pend)
        stamp_idx(a, S_T, 3, 3, 3)
        for jj in range(2):
            lq.issue(f"ds_write_b128 v{V_PHW}, {vr(V_PHI+4*jj,4)} offset:{jj*1024}", ("W", jj))
        a.e(f"v_add_u32 v{V_PHW}, 12288, v{V_PHW}")
        xchg_step(a, f"l{par}", False)
        stamp_idx(a, S_T, 3, 4, 3)
        a.e(f"s_add_u32 s{S_T}, s{S_T}, 1")
        lq.wait(("W", 1))
    a.e(f"s_cmp_lt_u32 s{S_T}, 8\ns_cbranch_scc1 L_p2a")
    a.e("s_waitcnt lgkmcnt(0)")
    stamp(a, 52)
    xchg_step(a, "x", True)
    stamp(a, 53)

def fin(a):
    a.label("L_fin")
    a.e("s_barrier")
    a.e(f"v_lshlrev_b32 v{V_L16}, 4, v{V_LANE}")
    a.e(f"s_cmp_lt_u32 s{S_WAVE}, 6\ns_cbranch_scc1 L_fkv")
    a.e(f"s_mul_i32 s{S_T1}, s{S_HEAD}, {PART_SZ}\ns_add_u32 s{S_T1}, s{S_T1}, {WS_FIN}")
    srd(a, SRD_F, S_WS, S_T1, PART_SZ)
    kv_loads(a)
    a.label("L_fkv")
    a.e(f"s_mul_i32 s{S_T0}, s{S_WAVE}, 12288\nv_add_u32 v{V_PHR}, s{S_T0}, v{V_L16}")
    do_pickup(a)
    stamp(a, 54)
    a.e(f"s_cmp_ge_u32 s{S_WAVE}, 6\ns_cbranch_scc1 L_noks")
    a.e("s_waitcnt vmcnt(9)")
    for c in range(1, 8): a.e(f"v_add_f32 v152, v152, v{152+c}")
    a.e(f"""v_mov_b32 v153, v152
v_permlane32_swap_b32 v152, v153
s_nop 1
v_add_f32 v152, v152, v153
v_cvt_pk_bf16_f32 v152, v152, v152
v_and_b32 v151, 31, v{V_LANE}
v_lshlrev_b32 v151, 1, v151
s_lshl_b32 s{S_T2}, s{S_WAVE}, 6
s_add_u32 s{S_T2}, s{S_T2}, {L_KS}
v_add_u32 v151, s{S_T2}, v151
ds_write_b16 v151, v152""")
    a.label("L_noks")
    a.e("s_waitcnt lgkmcnt(0)\ns_barrier")
    stamp(a, 55)
    a.e(f"s_mul_i32 s{S_T1}, s{S_WAVE}, 9216\nv_add_u32 v148, s{S_T1}, v{V_L16}")
    for i in range(9):
        a.e(f"s_waitcnt vmcnt({8-i})")
        a.e(f"ds_write_b128 v148, {vr(LAND+4*i,4)} offset:{i*1024}")
    a.e("s_waitcnt lgkmcnt(0)\ns_barrier")
    stamp(a, 56)
    p2b(a)
    stamp(a, 57)
    if cfg.STAMPS: a.e("s_waitcnt vmcnt(0)")
    stamp(a, 58)
    stamp_flush(a)

def p2b(a):
    lq = LQ(a)
    V_O = 112
    V_DEN = 144
    V_KF = 148
    V_T = 176
    V_R = 184
    srd(a, SRD_O, S_OUT, S_ROWOFF, 98304)
    a.e(f"""v_and_b32 v2, 31, v{V_LANE}
v_lshrrev_b32 v3, 5, v{V_LANE}
v_lshlrev_b32 v5, 3, v3
v_add_u32 v5, {L_KS}, v5
v_lshlrev_b32 v6, 4, v{V_LANE}
s_lshl_b32 s{S_T0}, s{S_WAVE}, 12
s_add_u32 s{S_T1}, s{S_T0}, {73728 + 4096}
s_add_u32 s{S_T2}, s{S_T0}, {L_STG2 - 5*4096}
s_cmp_ge_u32 s{S_WAVE}, 5
s_cselect_b32 s{S_T1}, s{S_T2}, s{S_T1}
v_lshlrev_b32 v7, 7, v2
v_lshl_add_u32 v7, v3, 3, v7
v_add_u32 v7, s{S_T1}, v7
v_and_b32 v9, 7, v2
v_lshrrev_b32 v10, 3, v{V_LANE}
v_and_b32 v11, 7, v{V_LANE}
v_xor_b32 v12, v11, v10
v_lshlrev_b32 v8, 7, v10
v_lshl_add_u32 v8, v12, 4, v8
v_add_u32 v8, s{S_T1}, v8
s_lshl_b32 s{S_T0}, s{S_WAVE}, 5
v_add_u32 v4, s{S_T0}, v10
v_mul_u32_u24 v4, 384, v4
v_lshl_add_u32 v4, v11, 4, v4
v_lshl_add_u32 v7, v9, 4, v7""")
    for g in range(1, 8):
        a.e(f"v_xor_b32 v{199+g}, {g<<4}, v7")
    WA = lambda g: 7 if g == 0 else 199 + g
    def itemF(f, O):
        def reads(b): return [f"ds_read_b128 {vr(b,4)}, v6 offset:{f*1024}"]
        def mfma(b):
            c = "0" if f == 0 else vr(O, 16)
            return f"v_mfma_f32_32x32x16_bf16 {vr(O,16)}, {vr(b,4)}, {vr(V_PQ+4*f,4)}, {c}"
        return Item(("F", f), reads, mfma)
    def itemFn(f):
        def reads(b): return [f"ds_read_b128 {vr(b,4)}, v6 offset:{12288+f*1024}"]
        return Item(("F", f), reads, None)
    seq = lambda O: [itemF(f, O) for f in range(12)]
    nxt = [itemFn(f) for f in range(12)]
    pend = prime(lq, seq(V_O), 0)
    for r in range(4): a.e(f"v_mov_b32 v{V_DEN+r}, 0")
    def kread(f):
        o = 8*(f >> 1) + 4*(f & 1)
        lq.issue(f"ds_read2_b64 {vr(V_KF+4*(f%3),4)}, v5 offset0:{o} offset1:{o+2}", ("K", f))
    kread(0); kread(1)
    side = {}
    for f in range(12):
        L = []
        L.append(lambda f=f: lq.wait(("K", f)))
        L.append(f"v_mfma_f32_4x4x4_16b_bf16 {vr(V_DEN,4)}, {vr(V_KF+4*(f%3),2)}, {vr(V_PQ+4*f,2)}, {vr(V_DEN,4)}")
        if f + 2 < 12: L.append(lambda f=f: kread(f + 2))
        L.append(f"v_mfma_f32_4x4x4_16b_bf16 {vr(V_DEN,4)}, {vr(V_KF+4*(f%3)+2,2)}, {vr(V_PQ+4*f+2,2)}, {vr(V_DEN,4)}")
        side[f] = L
    pend = run_stream(a, lq, seq(V_O), nxt, side, 0, pend)
    a.e(f"""v_add_u32 v6, 12288, v6
v_mov_b32 v{V_DEN+1}, v{V_DEN}
v_permlane32_swap_b32 v{V_DEN}, v{V_DEN+1}
s_nop 1
v_add_f32 v{V_DEN}, v{V_DEN}, v{V_DEN+1}
v_add_f32 v{V_DEN}, {EPS}, v{V_DEN}
v_rcp_f32 v{V_DEN}, v{V_DEN}""")
    def epi(O, odd):
        L = []
        for r in range(16): L.append(f"v_mul_f32 v{O+r}, v{O+r}, v{V_DEN}")
        for r in range(8): L.append(f"v_cvt_pk_bf16_f32 v{V_T+r}, v{O+2*r}, v{O+2*r+1}")
        for q in range(4):
            L.append(lambda q=q: lq.issue(f"ds_write_b64 v{WA(4*odd+q)}, {vr(V_T+2*q,2)}", ("W",)))
        if odd:
            for G in range(4):
                L.append(lambda G=G: lq.issue(f"ds_read_b128 {vr(V_R+4*G,4)}, v8 offset:{G*1024}", ("R", G)))
            for G in range(4):
                def st(G=G):
                    lq.wait(("R", G))
                    a.e(f"buffer_store_dwordx4 {vr(V_R+4*G,4)}, v4, s[{SRD_O}:{SRD_O+3}], s{S_T} offen {cfg.OUT_NT}")
                    a.e(f"s_add_u32 s{S_T}, s{S_T}, 3072" if G < 3 else f"s_sub_u32 s{S_T}, s{S_T}, {3*3072 - 128}")
                L.append(st)
        return L
    a.e(f"s_mov_b32 s{S_T}, 0\ns_mov_b32 s{S_T3}, 0")
    a.label("L_p2b")
    side = spread(epi(V_O, 0), 1, 12)
    pend = run_stream(a, lq, seq(V_O+16), nxt, side, 12, pend)
    a.e("v_add_u32 v6, 12288, v6")
    a.e(f"s_cmp_eq_u32 s{S_T3}, 2\ns_cbranch_scc1 L_p2b_end")
    side = spread(epi(V_O+16, 1), 1, 12)
    pend = run_stream(a, lq, seq(V_O), nxt, side, 0, pend)
    a.e("v_add_u32 v6, 12288, v6")
    a.e(f"s_add_u32 s{S_T3}, s{S_T3}, 1\ns_branch L_p2b")
    a.label("L_p2b_end")
    a.e("s_nop 7")
    for x in epi(V_O+16, 1):
        if callable(x): x()
        else: a.e(x)
    a.e("s_waitcnt lgkmcnt(0)")

NAME = "standalone__linear_kernel_performer__prompt_kernel"
def kernel(a):
    a.e(f"""s_cmp_ge_u32 s2, 256
s_cbranch_scc1 L_end
s_load_dwordx8 s[8:15], s[0:1], 0
s_load_dwordx4 s[16:19], s[0:1], 32
s_load_dwordx2 s[20:21], s[0:1], 48
v_lshrrev_b32 v1, 6, v0
s_and_b32 s{S_HEAD}, s2, 31
s_lshr_b32 s{S_CHUNK}, s2, 5
v_readfirstlane_b32 s{S_WAVE}, v1
v_and_b32 v{V_LANE}, 63, v0
s_mul_i32 s{S_ROWOFF}, s{S_HEAD}, 786432
s_mul_i32 s26, s{S_CHUNK}, 98304
s_add_u32 s{S_ROWOFF}, s{S_ROWOFF}, s26
s_mov_b32 s{S_C12K}, 12288
s_mov_b32 s{S_CM24K}, -24576
s_mov_b32 s{S_CM12K}, -12288
s_lshl_b32 s{S_T0}, s{S_WAVE}, 2
s_lshr_b32 s{S_WAVE}, {hex(cfg.ROLEMAP)}, s{S_T0}
s_and_b32 s{S_WAVE}, s{S_WAVE}, 15
s_cmp_ge_u32 s{S_WAVE}, 6
s_waitcnt lgkmcnt(0)""")
    if cfg.STAMPS:
        a.e("v_mov_b32 v255, 0\nv_mov_b32 v254, 0"); stamp(a, 0); a.e(f"s_cmp_ge_u32 s{S_WAVE}, 6")
    a.e("s_cbranch_scc1 L_prod")
    compute(a)
    a.e("s_branch L_fin")
    producer(a)
    fin(a)
    a.label("L_end")
    a.e("s_endpgm")

HEADER = open("standalone__linear_kernel_performer__prompt.s.ref").read().split("; Override launch")[0]

def main(path):
    a = Asm(); a.inprod = False; kernel(a)
    body = a.finalize()
    txt = HEADER + f"; @launch grid=(256,1,1) block=(512,1,1) lds={LDS_BYTES}\n"
    txt += f""".amdgcn_target "amdgcn-amd-amdhsa--gfx950"
.text
.globl {NAME}
.p2align 8
.type {NAME},@function
{NAME}:
{body}.section .rodata,"a"
.p2align 6
.amdhsa_kernel {NAME}
  .amdhsa_next_free_vgpr 256
  .amdhsa_next_free_sgpr 102
  .amdhsa_accum_offset 256
  .amdhsa_group_segment_fixed_size 0
  .amdhsa_kernarg_size 56
  .amdhsa_user_sgpr_count 2
  .amdhsa_user_sgpr_kernarg_segment_ptr 1
  .amdhsa_system_sgpr_workgroup_id_x 1
  .amdhsa_float_denorm_mode_32 3
.end_amdhsa_kernel
"""
    open(path, "w").write(txt)

if __name__ == "__main__":
    for arg in sys.argv[2:]:
        k, v = arg.split("=")
        cur = getattr(cfg, k)
        setattr(cfg, k, (v == "1") if isinstance(cur, bool) else (int(v, 0) if isinstance(cur, int) else v))
    main(sys.argv[1])
```

```python
import struct, sys
from asmlib import Asm, vr, sr

def f32hex(x): return "0x%08x" % struct.unpack("<I", struct.pack("<f", x))[0]
SCALE = f32hex(192 ** -0.25)
LOG2E = f32hex(1.4426950408889634)
EPS = f32hex(0.75e-6)

L_XS = 0x18000
XS_R = 3
L_XN = L_XS + 3*12288
L_KS = L_XN + 2048
L_CNT = L_KS + 512
LDS_BYTES = L_CNT + 64
PART_SZ = 73728
KSP_SZ = 1536
WS_FIN = 0x1800000
WS_FLG = 0x1C00000
WS_STAMP = 0x4000000

NAME = "standalone__linear_kernel_performer__prompt_kernel"
class Cfg:
    ROLEMAP = 0x75436210
    NT = "nt"
    STAMPS = 0
    GET = "sc1"
    DEPTH = 7
    OUT_NT = "sc1"
    QROUND = False
    CODEPF = True
    WAIT2 = True
    FASTEN = False
    QL1 = 1; QL2 = 2; QS = 3; QPB = 5
    X_NOEXP = False
cfg = Cfg()

S_Q, S_K, S_V, S_P = 8, 10, 12, 14
S_OUT, S_DBG, S_WS = 16, 18, 20
S_HEAD, S_CHUNK, S_WAVE, S_ROWOFF = 22, 23, 24, 25
S_FLG = 26
SRD_X, SRD_V, SRD_P, SRD_O, SRD_W, SRD_Q, SRD_F = 28, 32, 36, 40, 44, 64, 68
S_VG, S_CAND, S_NONCE, S_SLOT = 52, 53, 54, 55
S_T, S_T0, S_T1, S_T2, S_T3, S_VB, S_FAST, S_SPIN = 56, 57, 58, 59, 60, 61, 62, 63
S_DLT, S_XCC = 72, 73
S_C12K, S_CM24K = 82, 83

V_LANE = 1
V_A = 2
V_XN = 6
V_VE, V_VO = 7, 8
V_FL = 10
V_L16 = 11
V_KS4 = 12
V_PHR = 13
V_PHW = 14
V_P = 16
V_ACC = 64
V_D1 = 160
V_KN = 192
V_PHI = 208
V_FB = 216
V_L2E = 248
V_QN = 249
V_T0 = 250
V_ONES = 252
V_PQ = 64
V_RAW = 16
LAND = 112

class LQ:
    def __init__(self, a): self.a = a; self.q = []
    def issue(self, text, tag): self.a.e(text); self.q.append(tag)
    def wait(self, tag):
        if tag not in self.q: return
        i = len(self.q) - 1 - self.q[::-1].index(tag)
        n = len(self.q) - 1 - i
        assert n <= 15, (n, self.q)
        self.a.e(f"s_waitcnt lgkmcnt({n})")
        self.q = self.q[i+1:]

def _stamp(a, idx):
    a.e("s_memrealtime s[76:77]\ns_memtime s[80:81]\ns_waitcnt lgkmcnt(0)")
    a.e(f"s_mov_b32 m0, {idx}")
    a.e("v_writelane_b32 v255, s76, m0")
    a.e("v_writelane_b32 v254, s80, m0")
def stamp(a, idx, lvl=1):
    if cfg.STAMPS == 0 or (lvl > 1 and cfg.STAMPS != lvl and not (a.inprod and cfg.STAMPS > 1)): return
    _stamp(a, idx)
def stamp_idx(a, sreg, mul, add, lvl=2):
    if cfg.STAMPS == 0 or (lvl > 1 and cfg.STAMPS != lvl): return
    a.e(f"s_mul_i32 s78, s{sreg}, {mul}\ns_add_u32 s78, s78, {add}")
    _stamp(a, "s78")
def stamp_flush(a):
    if not cfg.STAMPS: return
    a.e(f"""s_mov_b64 exec, -1
s_lshl_b32 s72, s2, 3
s_add_u32 s72, s72, s{S_WAVE}
s_lshl_b32 s72, s72, 8
s_add_u32 s72, s72, {WS_STAMP}
s_add_u32 s74, s{S_WS}, s72
s_addc_u32 s75, s{S_WS+1}, 0
v_and_b32 v253, 63, v0
v_lshlrev_b32 v253, 2, v253
global_store_dword v253, v255, s[74:75]
s_add_u32 s74, s74, 0x100000
s_addc_u32 s75, s75, 0
global_store_dword v253, v254, s[74:75]""")

def srd(a, d, ptr, off, size):
    if off is None:
        a.e(f"s_mov_b32 s{d}, s{ptr}\ns_and_b32 s{d+1}, s{ptr+1}, 0xffff")
    else:
        a.e(f"s_add_u32 s{d}, s{ptr}, s{off}\ns_addc_u32 s{d+1}, s{ptr+1}, 0\ns_and_b32 s{d+1}, s{d+1}, 0xffff")
    a.e(f"s_mov_b32 s{d+2}, {size}\ns_mov_b32 s{d+3}, 0x20000")

def flag_base(a):
    a.e(f"""s_lshl_b32 s{S_T0}, s{S_HEAD}, 9
s_add_u32 s{S_T0}, s{S_T0}, {WS_FLG}
s_add_u32 s{S_FLG}, s{S_WS}, s{S_T0}
s_addc_u32 s{S_FLG+1}, s{S_WS+1}, 0""")

def exp_list(D, kn_of, phi, rnd=True):
    L = []
    if cfg.X_NOEXP: return L
    if rnd:
        for r in range(16): L.append(f"v_cvt_pk_bf16_f32 v{D+r}, 0, v{D+r}")
    for r in range(16): L.append(f"v_add_f32 v{D+r}, v{D+r}, v{kn_of(r)}")
    if rnd:
        for r in range(16): L.append(f"v_cvt_pk_bf16_f32 v{D+r}, 0, v{D+r}")
    for r in range(16): L.append(f"v_fma_f32 v{D+r}, v{D+r}, v{V_L2E}, -4.0")
    for r in range(16): L.append(f"v_exp_f32 v{D+r}, v{D+r}")
    for r in range(8): L.append(f"v_cvt_pk_bf16_f32 v{phi+r}, v{D+2*r}, v{D+2*r+1}")
    return L

def do_pickup(a):
    for f in range(12):
        a.e(f"ds_read_b128 {vr(V_PQ+4*f,4)}, v{V_PHR} offset:{f*1024}")

def kv_load_list():
    L = [f"s_mul_i32 s{S_T2}, s{S_WAVE}, 9216"]
    for i in range(9):
        L.append(f"buffer_load_dwordx4 {vr(LAND+4*i,4)}, v{V_L16}, s[{SRD_F}:{SRD_F+3}], s{S_T2} offen {cfg.GET}")
        if i < 8: L.append(f"s_add_u32 s{S_T2}, s{S_T2}, 1024")
    return L
def kv_write_list():
    L = [f"s_mul_i32 s{S_T1}, s{S_WAVE}, 9216", f"v_add_u32 v148, s{S_T1}, v{V_L16}"]
    for i in range(9):
        L.append(f"s_waitcnt vmcnt({8-i})")
        L.append(f"ds_write_b128 v148, {vr(LAND+4*i,4)} offset:{i*1024}")
    return L

P_SCHED = {
    "init": [("K",0), ("K",1), ("K",2), ("S",1), ("V",0), ("V",1)],
    ("c",0): [("K",3)], ("c",1): [("K",4)],
    ("b",2): [("S",3), ("V",2), ("K",5), ("V",3)],
    ("b",3): [("K",6), ("V",4)], ("b",4): [("K",7), ("V",5)], ("b",5): [("S",4), ("V",6), ("V",7)],
    ("b",6): [("Q",0), ("Q",1)], ("b",7): [("Q",2), ("Q",3)], ("b","7a"): [("Q",4), ("Q",5)], ("b","7b"): [("Q",6), ("Q",7)],
}

def producer(a):
    a.inprod = True
    TMP = 208; VSC = 224; VMK = 226; VDM = 227
    VS0, VS1, VS2, VS3 = 230, 232, 234, 236
    issued = []
    a.label("L_prod")
    srd(a, SRD_X, S_K, S_ROWOFF, 98304)
    a.e(f"""s_sub_u32 s{S_T0}, s{S_WAVE}, 6
s_lshl_b32 s{S_VG}, s{S_T0}, 1
s_lshl_b32 s{S_T0}, s{S_T0}, 4
v_lshrrev_b32 v7, 3, v{V_LANE}
v_and_b32 v8, 7, v{V_LANE}
v_add_u32 v9, s{S_T0}, v7
v_mul_u32_u24 v10, 384, v9
v_lshl_add_u32 v2, v8, 4, v10""")
    def sync_step(k):
        a.e(f"s_cmp_lg_u32 s{S_WAVE}, 6\ns_cbranch_scc1 L_sy{k}")
        if k == 1:
            flag_base(a)
            a.e(f"""v_lshlrev_b32 v{VS1}, 7, v7
v_lshl_add_u32 v{VS1}, v8, 2, v{VS1}
s_mov_b32 exec_lo, -1
s_mov_b32 exec_hi, 0
global_load_dword v{VS0}, v{VS1}, s[{S_FLG}:{S_FLG+1}] sc1
s_mov_b64 exec, -1""")
        elif k == 3:
            a.e(f"""v_subrev_u32 v{VS1}, 1, v{VS0}
v_mov_b32 v{VS1+1}, 1
v_lshlrev_b32 v{VS1+1}, v{VS1}, v{VS1+1}
v_mov_b32 v{VS2}, 0
v_mov_b32 v{VS2+1}, 0
v_cmp_gt_u32 vcc, 32, v{VS1}
s_nop 1
s_mov_b32 vcc_hi, 0
v_cndmask_b32 v{VS2}, 0, v{VS1+1}, vcc
v_subrev_u32 v{VS1}, 32, v{VS1}
v_cmp_gt_u32 vcc, 32, v{VS1}
s_nop 1
s_mov_b32 vcc_hi, 0
v_cndmask_b32 v{VS2+1}, 0, v{VS1+1}, vcc""")
            for r in (VS2, VS2+1):
                for sh in (1, 2, 4, 8):
                    a.e(f"v_or_b32_dpp v{r}, v{r}, v{r} row_shr:{sh} row_mask:0xf bank_mask:0xf")
            a.e(f"""v_readlane_b32 s74, v{VS2}, 15
v_readlane_b32 s{S_T0}, v{VS2}, 31
v_readlane_b32 s75, v{VS2+1}, 15
v_readlane_b32 s{S_T1}, v{VS2+1}, 31
s_or_b32 s74, s74, s{S_T0}
s_or_b32 s75, s75, s{S_T1}
s_ff0_i32_b64 s{S_CAND}, s[74:75]
s_add_u32 s{S_CAND}, s{S_CAND}, 1
s_getreg_b32 s{S_XCC}, hwreg(HW_REG_XCC_ID, 0, 4)
s_and_b32 s{S_XCC}, s{S_XCC}, 7
s_lshl_b32 s{S_XCC}, s{S_XCC}, 2
s_lshl_b32 s{S_T0}, 1, s{S_XCC}
v_mov_b32 v{VS2}, s{S_CAND}
v_mov_b32 v{VS2+1}, 0
s_lshl_b32 s{S_T1}, s{S_HEAD}, 3
v_mov_b32 v{VS3}, s{S_T1}
v_mov_b32 v{VS3+1}, s{S_T0}
s_mov_b32 exec_lo, 1
s_mov_b32 exec_hi, 0
global_atomic_cmpswap v{VS1}, v{VS3}, v[{VS2}:{VS2+1}], s[{S_DBG}:{S_DBG+1}] sc0 sc1
global_atomic_add v{VS3}, v{VS3+1}, s[{S_DBG}:{S_DBG+1}] offset:4 sc1
s_mov_b64 exec, -1""")
        elif k == 4:
            a.e(f"""s_lshl_b32 s{S_T1}, s{S_HEAD}, 3
v_mov_b32 v{VS3}, s{S_T1}
s_mov_b32 exec_lo, 1
s_mov_b32 exec_hi, 0
global_load_dword v{VS0}, v{VS3}, s[{S_DBG}:{S_DBG+1}] offset:4 sc1
s_mov_b64 exec, -1""")
        elif k == 5:
            a.e(f"""v_readfirstlane_b32 s{S_NONCE}, v{VS1}
v_readfirstlane_b32 s{S_T0}, v{VS0}
s_cmp_eq_u32 s{S_NONCE}, 0
s_cselect_b32 s{S_NONCE}, s{S_CAND}, s{S_NONCE}
s_lshl_b32 s{S_T1}, 8, s{S_XCC}
s_cmp_eq_u32 s{S_T0}, s{S_T1}
s_cselect_b32 s{S_FAST}, {1 if cfg.FASTEN else 0}, 0
v_mov_b32 v{VS2}, s{S_NONCE}
v_mov_b32 v{VS2+1}, s{S_FAST}
v_mov_b32 v{VS3}, {L_CNT}
ds_write_b64 v{VS3}, v[{VS2}:{VS2+1}] offset:8
s_waitcnt lgkmcnt(0)""")
        a.label(f"L_sy{k}")
    def issue(tok):
        kind, t = tok
        if kind == "S":
            sync_step(t); return
        issued.append(tok)
        if kind in "KQ":
            srdn = SRD_X if kind == "K" else SRD_Q
            a.e(f"s_mov_b32 s{S_T1}, {t*12288}")
            for g in range(2):
                for cb in range(3):
                    r = V_RAW + 24*t + 12*g + 4*cb
                    a.e(f"buffer_load_dwordx4 {vr(r,4)}, v2, s[{srdn}:{srdn+3}], s{S_T1} offen offset:{g*3072+cb*128} {cfg.NT}")
        else:
            for e in range(2):
                for cb in range(3):
                    a.e(f"s_add_u32 m0, s{S_VB}, {t*12288 + cb*4096 + e*1024}\ns_add_u32 s{S_T1}, s{S_VG}, {t*12288 + e*3072 + cb*128}")
                    a.e(f"buffer_load_dwordx4 v{VDM}, s[{SRD_V}:{SRD_V+3}], s{S_T1} offen {cfg.NT} lds")
    def wait_for(tok):
        n = 6 * (len(issued) - 1 - issued.index(tok))
        assert n <= 60, n
        a.e(f"s_waitcnt vmcnt({n})")
    def ev(key):
        for tok in P_SCHED.get(key, []): issue(tok)
    for tok in P_SCHED["init"][:3]: issue(tok)
    srd(a, SRD_V, S_V, S_ROWOFF, 98304)
    a.e(f"""v_mul_u32_u24 v11, 384, v7
v_lshrrev_b32 v12, 2, v{V_LANE}
v_and_b32 v12, 4, v12
v_xor_b32 v12, v12, v8
v_lshl_add_u32 v{VDM}, v12, 4, v11
s_lshl_b32 s{S_VB}, s{S_VG}, 10
s_mul_i32 s{S_VG}, s{S_VG}, 3072""")
    for tok in P_SCHED["init"][3:]: issue(tok)
    if cfg.CODEPF:
        a.e(f"""s_getpc_b64 s[90:91]
L_pcbase:
s_sub_u32 s90, s90, L_pcbase - {NAME}
s_subb_u32 s91, s91, 0
s_lshr_b32 s{S_T0}, s2, 3
s_and_b32 s{S_T0}, s{S_T0}, 31
s_lshl_b32 s{S_T0}, s{S_T0}, 10
s_sub_u32 s{S_T1}, s{S_WAVE}, 6
s_lshl_b32 s{S_T1}, s{S_T1}, 15
s_add_u32 s{S_T0}, s{S_T0}, s{S_T1}
v_lshlrev_b32 v11, 4, v{V_LANE}
v_add_u32 v11, s{S_T0}, v11
v_min_u32 v11, L_end - {NAME} - 16, v11
global_load_dwordx4 v[240:243], v11, s[90:91]""")
    srd(a, SRD_Q, S_Q, S_ROWOFF, 98304)
    a.e(f"""v_lshrrev_b32 v11, 1, v7
v_xor_b32 v11, v11, v8
v_lshlrev_b32 v12, 4, v11
v_lshlrev_b32 v10, 7, v9
v_add_u32 v3, v10, v12
v_xor_b32 v4, 64, v3
v_add_u32 v4, 1024, v4
v_lshlrev_b32 v5, 2, v9
v_add_u32 v5, {L_XN}, v5
v_mov_b32 v{VSC}, {SCALE}
v_mov_b32 v{VSC+1}, {SCALE}
v_mov_b32 v{VMK}, 0xffff0000
v_add_u32 v13, {L_XS}, v3
v_add_u32 v14, {L_XS}, v4""")
    def convert(kind, t):
        T = t if kind == "K" else 8 + t
        b = V_RAW + 24*t
        wait_for((kind, t))
        stamp(a, 2 + 3*T, 2)
        if kind == "K": A0, off = 13, (t % 3)*12288
        else: A0, off = 3, 0
        for g in range(2):
            nreg = TMP + 8 + g
            a.e(f"v_mov_b32 v{nreg}, 0\nv_mov_b32 v{nreg+2}, 0")
            for c4 in range(3):
                xs_ = [b + 12*g + 4*c4 + i for i in range(4)]
                for i, x in enumerate(xs_): a.e(f"v_lshlrev_b32 v{TMP+2*i}, 16, v{x}")
                for i, x in enumerate(xs_): a.e(f"v_and_b32 v{TMP+2*i+1}, v{VMK}, v{x}")
                for i, x in enumerate(xs_): a.e(f"v_pk_mul_f32 v[{TMP+2*i}:{TMP+2*i+1}], v[{TMP+2*i}:{TMP+2*i+1}], v[{VSC}:{VSC+1}]")
                for i, x in enumerate(xs_): a.e(f"v_cvt_pk_bf16_f32 v{x}, v{TMP+2*i}, v{TMP+2*i+1}")
                for i, x in enumerate(xs_): a.e(f"v_dot2c_f32_bf16 v{nreg + 2*(i&1)}, v{x}, v{x}")
                a.e(f"ds_write_b128 v{A0+g}, {vr(b+12*g+4*c4,4)} offset:{off + c4*4096}")
            a.e(f"v_add_f32 v{nreg}, v{nreg}, v{nreg+2}")
        for perm in ("quad_perm:[1,0,3,2]", "quad_perm:[2,3,0,1]", "row_half_mirror"):
            for g in range(2):
                nreg = TMP + 8 + g
                a.e(f"v_add_f32_dpp v{nreg}, v{nreg}, v{nreg} {perm} row_mask:0xf bank_mask:0xf")
        for g in range(2): a.e(f"v_cvt_pk_bf16_f32 v{TMP+8+g}, 0, v{TMP+8+g}")
        for g in range(2): a.e(f"v_mul_f32 v{TMP+8+g}, -0.5, v{TMP+8+g}")
        for g in range(2): a.e(f"ds_write_b32 v5, v{TMP+8+g} offset:{T*128 + g*32}")
        if kind == "Q": a.e("v_add_u32 v3, 12288, v3\nv_add_u32 v4, 12288, v4")
        a.e("s_waitcnt lgkmcnt(0)")
        stamp(a, 3 + 3*T, 2)
    for T in range(8):
        convert("K", T)
        ev(("c", T))
        if T == 2: a.e("s_barrier\ns_barrier")
        if T >= 2:
            wait_for(("V", T - 2))
            a.e("s_barrier")
        stamp(a, 4 + 3*T, 2)
        ev(("b", T))
    wait_for(("V", 6))
    sync_step(5)
    a.e("s_barrier")
    ev(("b", "7a"))
    convert("Q", 0)
    wait_for(("V", 7))
    a.e("s_barrier")
    ev(("b", "7b"))
    convert("Q", 1)
    convert("Q", 2)
    a.e("s_barrier\ns_barrier\ns_barrier")
    for t in range(3, 8):
        convert("Q", t)
        a.e("s_barrier")
        pass
    a.e(f"v_lshlrev_b32 v{V_L16}, 4, v{V_LANE}")
    a.e(f"s_mul_i32 s{S_T1}, s{S_HEAD}, {PART_SZ}\ns_add_u32 s{S_T1}, s{S_T1}, {WS_FIN}")
    srd(a, SRD_F, S_WS, S_T1, PART_SZ)
    assert cfg.QPB in (4, 5, 6)
    a.e("s_barrier")
    if cfg.QPB == 5:
        for x in kv_load_list(): a.e(x)
    a.e("s_barrier")
    if cfg.QPB == 6:
        for x in kv_load_list(): a.e(x)
    a.e(f"s_cmp_eq_u32 s{S_WAVE}, 6\ns_cbranch_scc0 L_pp6")
    a.e(f"s_mul_i32 s{S_T0}, s{S_WAVE}, 12288\nv_add_u32 v{V_PHR}, s{S_T0}, v{V_L16}")
    do_pickup(a)
    a.label("L_pp6")
    for x in kv_write_list(): a.e(x)
    a.e("s_waitcnt lgkmcnt(0)")
    a.e("s_branch L_fin")
    a.inprod = False

def FB(k): return V_FB + 4*(k % 8)
class Item:
    def __init__(self, tag, reads, mfma):
        self.tag = tag; self.reads = reads; self.mfma = mfma
def itemA(j, D, p1):
    def reads(b): return [f"ds_read_b128 {vr(b,4)}, v{V_A+(j&3)} offset:{(j>>2)*4096}"]
    def mfma(b):
        fp = vr(V_P+4*j, 4); c = "0" if j == 0 else vr(D, 16)
        return f"v_mfma_f32_32x32x16_bf16 {vr(D,16)}, {vr(b,4)}, {fp}, {c}" if p1 else f"v_mfma_f32_32x32x16_bf16 {vr(D,16)}, {fp}, {vr(b,4)}, {c}"
    return Item(("A", j), reads, mfma)
def itemB(idx):
    jj, dt = idx // 6, idx % 6
    base = V_VE if dt % 2 == 0 else V_VO
    def reads(b): return [f"ds_read_b64_tr_b16 {vr(b+2*u,2)}, v{base} offset:{(dt>>1)*4096+(16*jj+8*u)*128}" for u in range(2)]
    def mfma(b): return f"v_mfma_f32_32x32x16_bf16 {vr(V_ACC+16*dt,16)}, {vr(V_PHI+4*jj,4)}, {vr(b,4)}, {vr(V_ACC+16*dt,16)}"
    return Item(("B", idx), reads, mfma)
def issue_item(lq, it, k, uid):
    rs = it.reads(FB(k))
    for n, r in enumerate(rs): lq.issue(r, (uid, k, n))
    return (uid, k, len(rs)-1)
def emit(a, x):
    if callable(x): x()
    else: a.e(x)
def run_stream(a, lq, items, nxt, side, k0=0, pend=None, depth=None):
    D = depth or cfg.DEPTH
    n = len(items)
    pend = dict(pend or {})
    out = {}
    for k in range(n):
        if cfg.WAIT2 and k % 2 == 0 and k + 1 < n and (k + 1) in pend: lq.wait(pend[k + 1])
        lq.wait(pend[k])
        a.e(items[k].mfma(FB(k0 + k)))
        kk = k + D
        if kk < n:
            pend[kk] = issue_item(lq, items[kk], k0 + kk, "c")
        elif nxt is not None and kk - n < len(nxt):
            out[kk - n] = issue_item(lq, nxt[kk - n], k0 + kk, "n")
        for x in side.get(k, []): emit(a, x)
    return out
def prime(lq, items, k0=0, depth=None):
    D = depth or cfg.DEPTH
    return {k: issue_item(lq, items[k], k0 + k, "p") for k in range(D)}
def spread(L, lo, hi, side=None):
    side = side if side is not None else {}
    n = hi - lo
    k = 0
    for p in range(n):
        upto = (len(L) * (p + 1)) // n
        side.setdefault(lo + p, [])
        while k < upto:
            side[lo + p].append(L[k]); k += 1
    return side

def signal(a, lds_off, target, flag_off, name):
    a.e(f"""v_mov_b32 v{V_T0}, {L_CNT}
v_mov_b32 v{V_T0+1}, 1
s_mov_b32 exec_lo, 1
s_mov_b32 exec_hi, 0
ds_add_rtn_u32 v{V_T0+2}, v{V_T0}, v{V_T0+1} offset:{lds_off}
s_waitcnt lgkmcnt(0)
v_readfirstlane_b32 s{S_T0}, v{V_T0+2}
s_cmp_eq_u32 s{S_T0}, {target-1}
s_cbranch_scc0 L_sig_{name}
s_lshl_b32 s{S_T0}, s{S_CHUNK}, 2
v_mov_b32 v{V_T0}, s{S_T0}
v_mov_b32 v{V_T0+1}, s{S_NONCE}
s_cmp_lg_u32 s{S_FAST}, 0
s_cbranch_scc1 L_sigf_{name}
global_store_dword v{V_T0}, v{V_T0+1}, s[{S_FLG}:{S_FLG+1}] offset:{flag_off} sc1
s_branch L_sig_{name}""")
    a.label(f"L_sigf_{name}")
    a.e(f"global_store_dword v{V_T0}, v{V_T0+1}, s[{S_FLG}:{S_FLG+1}] offset:{flag_off+256}")
    a.label(f"L_sig_{name}")
    a.e("s_mov_b64 exec, -1")

def poll_block(a, flag_off, name):
    a.e(f"""s_mov_b32 s{S_SPIN}, 0
v_and_b32 v{V_T0}, 7, v{V_LANE}
v_lshlrev_b32 v{V_T0}, 2, v{V_T0}
v_and_b32 v{V_T0+1}, 8, v{V_LANE}
v_lshl_add_u32 v{V_T0}, v{V_T0+1}, 5, v{V_T0}""")
    a.label(f"L_poll_{name}")
    a.e(f"""s_mov_b32 exec_lo, 0xffff
s_mov_b32 exec_hi, 0
global_load_dword v{V_FL}, v{V_T0}, s[{S_FLG}:{S_FLG+1}] offset:{flag_off} sc1
s_mov_b64 exec, -1
s_waitcnt vmcnt(0)
v_cmp_eq_u32 vcc, s{S_NONCE}, v{V_FL}
s_nop 1
s_and_b32 s{S_T3}, vcc_lo, 0xffff
s_lshr_b32 s{S_T0}, s{S_T3}, 8
s_or_b32 s{S_T3}, s{S_T3}, s{S_T0}
s_and_b32 s{S_T3}, s{S_T3}, 0xff
s_cmp_eq_u32 s{S_T3}, 0xff
s_cbranch_scc1 L_polld_{name}
s_add_u32 s{S_SPIN}, s{S_SPIN}, 1
s_cmp_lt_u32 s{S_SPIN}, 0x80000
s_cbranch_scc1 L_poll_{name}""")
    a.label(f"L_polld_{name}")

def kn_reads(lq):
    def f():
        for q in range(4):
            lq.issue(f"ds_read_b128 {vr(V_KN+4*q,4)}, v{V_XN} offset:{q*32}", ("K", q))
        lq.a.e(f"v_add_u32 v{V_XN}, 128, v{V_XN}")
    return f
def xs_adv(a):
    def f():
        a.e(f"""s_add_u32 s{S_SLOT}, s{S_SLOT}, 1
s_cmp_eq_u32 s{S_SLOT}, {XS_R}
s_cselect_b32 s{S_DLT}, s{S_CM24K}, s{S_C12K}
s_cselect_b32 s{S_SLOT}, 0, s{S_SLOT}""")
        for r in range(V_A, V_A+4): a.e(f"v_add_u32 v{r}, s{S_DLT}, v{r}")
    return f
def xs_addr(a, base):
    a.e(f"""v_and_b32 v176, 31, v{V_LANE}
v_lshrrev_b32 v177, 5, v{V_LANE}
v_lshrrev_b32 v178, 1, v176
v_and_b32 v178, 7, v178
v_lshlrev_b32 v179, 7, v176
v_add_u32 v179, {base}, v179""")
    for k in range(4):
        a.e(f"""v_add_u32 v180, {2*k}, v177
v_xor_b32 v180, v180, v178
v_lshl_add_u32 v{V_A+k}, v180, 4, v179""")

def compute(a):
    lq = LQ(a)
    D = cfg.DEPTH
    a.e("s_setprio 3")
    a.e(f"""v_lshrrev_b32 v160, 3, v{V_LANE}
v_and_b32 v161, 7, v{V_LANE}
v_mul_u32_u24 v162, 384, v160
v_lshrrev_b32 v164, 1, v160
v_xor_b32 v164, v164, v161
v_lshl_add_u32 v164, v164, 4, v162
v_xor_b32 v165, 64, v164
s_mul_i32 s{S_T1}, s{S_WAVE}, 12288""")
    srd(a, SRD_P, S_P, S_T1, 12288)
    a.e(f"s_add_u32 s{S_T2}, s{S_T1}, 24576")
    for cb in range(3):
        for G in range(4):
            a.e(f"s_add_u32 m0, s{S_T2}, {cb*4096+G*1024}\ns_mov_b32 s{S_T3}, {G*3072+cb*128}")
            a.e(f"buffer_load_dwordx4 v{164+(G&1)}, s[{SRD_P}:{SRD_P+3}], s{S_T3} offen lds")
    a.e("s_setprio 0")
    xs_addr(a, L_XS)
    a.e(f"""v_lshlrev_b32 v{V_L16}, 4, v{V_LANE}
v_lshlrev_b32 v{V_XN}, 4, v177
v_add_u32 v{V_XN}, {L_XN}, v{V_XN}
v_and_b32 v178, 15, v{V_LANE}
v_lshrrev_b32 v179, 2, v178
v_lshl_add_u32 v179, v177, 2, v179
v_lshlrev_b32 v179, 7, v179
v_bfe_u32 v180, v{V_LANE}, 4, 1
v_lshl_add_u32 v179, v180, 5, v179
v_and_b32 v180, 3, v178
v_lshl_add_u32 v179, v180, 3, v179
v_bfe_u32 v180, v178, 3, 1
v_lshl_add_u32 v{V_VE}, v180, 6, v179
v_xor_b32 v180, 1, v180
v_lshl_add_u32 v{V_VO}, v180, 6, v179
v_add_u32 v{V_VE}, {2*12288}, v{V_VE}
v_add_u32 v{V_VO}, {2*12288}, v{V_VO}
v_mov_b32 v{V_L2E}, {LOG2E}
v_mov_b32 v181, {L_CNT}
v_mov_b32 v182, 0
v_mov_b32 v183, 0
ds_write_b64 v181, v[182:183]
v_mov_b32 v{V_ONES}, 0x3f803f80
v_mov_b32 v{V_ONES+1}, 0x3f803f80
s_mov_b32 s{S_SLOT}, 0""")
    for r in range(4): a.e(f"v_mov_b32 v{V_KS4+r}, 0")
    for r in range(96): a.e(f"v_mov_b32 v{V_ACC+r}, 0")
    for r in range(8): a.e(f"v_mov_b32 v{V_PHI+r}, 0")
    a.e(f"s_mul_i32 s{S_T1}, s{S_WAVE}, 12288\ns_add_u32 s{S_T1}, s{S_T1}, {24576 - L_XS}")
    for k in range(4): a.e(f"v_add_u32 v{184+k}, s{S_T1}, v{V_A+k}")
    flag_base(a)
    a.e("s_waitcnt vmcnt(0)")
    for j in range(12):
        a.e(f"ds_read_b128 {vr(V_P+4*j,4)}, v{184+(j&3)} offset:{(j>>2)*4096}")
    a.e("s_waitcnt lgkmcnt(0)")
    stamp(a, 1)
    a.e("s_barrier")
    stamp(a, 2)
    A0 = [itemA(j, V_D1, True) for j in range(12)]
    pend = prime(lq, A0, 0)
    run_stream(a, lq, A0, None, {}, 0, pend)
    xs_adv(a)()
    a.e("s_barrier")
    a.e(f"s_mov_b32 s{S_T}, 0")
    Bs = [itemB(i) for i in range(12)]
    ks4 = [f"v_mfma_f32_4x4x4_16b_bf16 {vr(V_KS4,4)}, {vr(V_ONES,2)}, {vr(V_PHI+2*r,2)}, {vr(V_KS4,4)}" for r in range(4)]
    def seqZ(par): return Bs + [itemA(j, V_D1 + 16*(1-par), True) for j in range(12)]
    KNPOS = 12
    kn_reads(lq)()
    pend = prime(lq, seqZ(0), 0)
    a.label("L_p1")
    for par in range(2):
        stamp_idx(a, S_T, 4, 3)
        a.e("s_barrier")
        stamp_idx(a, S_T, 4, 4)
        side = {}
        el = exp_list(V_D1 + 16*par, lambda r: V_KN + r, V_PHI)
        body, pack = (el[:-8], el[-8:]) if el else ([], [])
        el2 = body[:16] + [lambda: lq.wait(("K", 3))] + body[16:]
        for r in range(4): side.setdefault(1 + 3*r, []).append(ks4[r])
        spread(el2, 0, 22, side)
        spread(pack, 22, 24, side)
        if par == 0:
            side.setdefault(11 - D, []).extend([f"s_cmp_eq_u32 s{S_T}, 0", f"s_cselect_b32 s{S_T2}, s{S_CM24K}, s{S_C12K}", f"v_add_u32 v{V_VE}, s{S_T2}, v{V_VE}", f"v_add_u32 v{V_VO}, s{S_T2}, v{V_VO}"])
        else:
            side.setdefault(11 - D, []).extend([f"v_add_u32 v{V_VE}, 12288, v{V_VE}", f"v_add_u32 v{V_VO}, 12288, v{V_VO}"])
        side.setdefault(23 - D, []).append(xs_adv(a))
        side.setdefault(KNPOS, []).append(kn_reads(lq))
        pend = run_stream(a, lq, seqZ(par), seqZ(1-par), side, 0, pend)
        stamp_idx(a, S_T, 4, 6)
        a.e(f"s_add_u32 s{S_T}, s{S_T}, 1")
    a.e(f"s_cmp_lt_u32 s{S_T}, 8\ns_cbranch_scc1 L_p1")
    a.e(f"v_mov_b32 v{V_T0}, {L_CNT}")
    lq.issue(f"ds_read_b64 v[{V_T0+0}:{V_T0+1}], v{V_T0} offset:8", ("N",))
    srd(a, SRD_O, S_OUT, S_ROWOFF, 98304)
    a.e(f"s_mul_i32 s{S_T1}, s{S_HEAD}, 786432")
    srd(a, SRD_W, S_OUT, S_T1, 786432)
    a.e(f"s_mul_i32 s{S_T1}, s{S_HEAD}, {PART_SZ}\ns_add_u32 s{S_T1}, s{S_T1}, {WS_FIN}")
    srd(a, SRD_F, S_WS, S_T1, PART_SZ)
    lq.wait(("N",))
    a.e(f"v_readfirstlane_b32 s{S_NONCE}, v{V_T0}\nv_readfirstlane_b32 s{S_FAST}, v{V_T0+1}")
    a.e(f"s_lshl_b32 s{S_VG}, s{S_WAVE}, 11")
    qsave = list(lq.q); psave = dict(pend)
    def final_b(pub):
        lq.q = list(qsave)
        TB = V_D1
        def pubtile(dt):
            L = []
            for jj in range(2):
                tb = TB + 4*((dt*2+jj) % 8)
                for i in range(4):
                    L.append(f"v_cvt_pk_bf16_f32 v{tb+i}, v{V_ACC+16*dt+8*jj+2*i}, v{V_ACC+16*dt+8*jj+2*i+1}")
                L.append(f"buffer_store_dwordx4 {vr(tb,4)}, v{V_L16}, s[{SRD_O}:{SRD_O+3}], s{S_VG} offen offset:{jj*1024} {pub}")
            if dt < 5: L.append(f"s_add_u32 s{S_VG}, s{S_VG}, 12288")
            return L
        side = {}
        for r in range(4): side.setdefault(1 + 2*r, []).append(ks4[r])
        for dt in range(4): side.setdefault(8 + dt, []).extend(pubtile(dt))
        run_stream(a, lq, Bs, None, side, 0, psave)
        for dt in (4, 5):
            for x in pubtile(dt): a.e(x)
        a.e(f"v_lshlrev_b32 v{V_T0+1}, 2, v{V_LANE}\ns_lshl_b32 s{S_T2}, s{S_WAVE}, 8\ns_add_u32 s{S_T2}, s{S_T2}, {PART_SZ}")
        a.e(f"buffer_store_dword v{V_KS4}, v{V_T0+1}, s[{SRD_O}:{SRD_O+3}], s{S_T2} offen {pub}")
    a.e(f"s_cmp_lg_u32 s{S_FAST}, 0\ns_cbranch_scc1 L_pubf")
    final_b("sc1")
    a.e("s_branch L_pubd")
    a.label("L_pubf")
    final_b("")
    a.label("L_pubd")
    lq.q = []
    stamp(a, 40)
    xs_addr(a, 0)
    V_ID = 206; V_SA = 192; V_KL = 196 - 196 + 64 + 0
    V_O8 = 204
    V_KL = 240
    a.e(f"""v_lshlrev_b32 v{V_XN}, 2, v176
v_add_u32 v{V_XN}, {L_XN + 8*128}, v{V_XN}
s_lshl_b32 s{S_T0}, s{S_WAVE}, 11
v_add_u32 v{V_PHW}, s{S_T0}, v{V_L16}
s_mul_i32 s{S_T0}, s{S_WAVE}, 12288
v_add_u32 v{V_PHR}, s{S_T0}, v{V_L16}
v_and_b32 v{V_T0}, 3, v{V_LANE}
v_mov_b32 v{V_T0+1}, 0x3f80
v_mov_b32 v{V_T0+2}, 0x3f800000
v_cmp_eq_u32 vcc, 0, v{V_T0}
v_cndmask_b32 v{V_ID}, 0, v{V_T0+1}, vcc
v_cmp_eq_u32 vcc, 1, v{V_T0}
v_cndmask_b32 v{V_ID}, v{V_ID}, v{V_T0+2}, vcc
v_cmp_eq_u32 vcc, 2, v{V_T0}
v_cndmask_b32 v{V_ID+1}, 0, v{V_T0+1}, vcc
v_cmp_eq_u32 vcc, 3, v{V_T0}
v_cndmask_b32 v{V_ID+1}, v{V_ID+1}, v{V_T0+2}, vcc
s_mul_i32 s{S_T0}, s{S_CHUNK}, 9216
s_mul_i32 s{S_T1}, s{S_WAVE}, 1536
s_add_u32 s{S_VG}, s{S_T0}, s{S_T1}
v_lshlrev_b32 v{V_O8}, 3, v{V_LANE}
v_add_u32 v{V_O8}, 1024, v{V_O8}""")
    stamp(a, 41)
    a.e("s_barrier")
    stamp(a, 43)
    def qadv():
        for r in range(V_A, V_A+4): a.e(f"v_add_u32 v{r}, 12288, v{r}")
    Q0 = [itemA(j, V_D1, False) for j in range(12)]
    pend = prime(lq, Q0, 0)
    run_stream(a, lq, Q0, None, {}, 0, pend)
    qadv()
    a.e("s_waitcnt vmcnt(0)")
    stamp(a, 42)
    signal(a, 0, 6, 0, "A")
    a.e("s_barrier")
    def seqQ(par): return [itemA(j, V_D1 + 16*(1-par), False) for j in range(12)]
    pend = prime(lq, seqQ(0), 12)
    def sb_load_list(p0, p1):
        L = [f"s_add_u32 s{S_T2}, s{S_VG}, {p0*98304}"]
        for p in range(p0, p1):
            L.append(f"buffer_load_dwordx4 {vr(LAND+6*p,4)}, v{V_L16}, s[{SRD_W}:{SRD_W+3}], s{S_T2} offen {cfg.GET}")
            L.append(f"buffer_load_dwordx2 {vr(LAND+6*p+4,2)}, v{V_O8}, s[{SRD_W}:{SRD_W+3}], s{S_T2} offen {cfg.GET}")
            if p < p1 - 1: L.append(f"s_add_u32 s{S_T2}, s{S_T2}, 98304")
        return L
    def sb_sum_list():
        L = ["s_waitcnt vmcnt(8)"]
        for p in range(8):
            for c in range(3):
                cc = "0" if p == 0 else vr(V_SA+4*c, 4)
                L.append(f"v_mfma_f32_4x4x4_16b_bf16 {vr(V_SA+4*c,4)}, {vr(V_ID,2)}, {vr(LAND+6*p+2*c,2)}, {cc}")
        return L
    KL = [7, 8, 9, 205, V_KS4, 15, V_FL, V_T0+3]
    def ks_load_list():
        L = [f"v_lshlrev_b32 v{V_T0+2}, 2, v{V_LANE}", f"s_lshl_b32 s{S_T2}, s{S_WAVE}, 8", f"s_add_u32 s{S_T2}, s{S_T2}, {PART_SZ}"]
        for c in range(8):
            L.append(f"buffer_load_dword v{KL[c]}, v{V_T0+2}, s[{SRD_W}:{SRD_W+3}], s{S_T2} offen {cfg.GET}")
            if c < 7: L.append(f"s_add_u32 s{S_T2}, s{S_T2}, 98304")
        return L
    def ks_fin_list():
        K = KL[0]; K1 = KL[1]
        L = ["s_waitcnt vmcnt(0)"]
        for c in range(1, 8): L.append(f"v_add_f32 v{K}, v{K}, v{KL[c]}")
        L += [f"v_mov_b32 v{K1}, v{K}", "s_nop 1", f"v_permlane32_swap_b32 v{K}, v{K1}", "s_nop 1", f"v_add_f32 v{K}, v{K}, v{K1}",
              f"v_cvt_pk_bf16_f32 v{K}, v{K}, v{K}", f"v_and_b32 v{K1}, 31, v{V_LANE}", f"v_lshlrev_b32 v{K1}, 1, v{K1}",
              f"s_lshl_b32 s{S_T2}, s{S_WAVE}, 6", f"s_add_u32 s{S_T2}, s{S_T2}, {L_KS}", f"v_add_u32 v{K1}, s{S_T2}, v{K1}",
              lambda: lq.issue(f"ds_write_b16 v{K1}, v{K}", ("X",))]
        return L
    def sb_store(pub):
        a.e(f"buffer_store_dwordx4 {vr(LAND,4)}, v{V_L16}, s[{SRD_F}:{SRD_F+3}], s{S_VG} offen {pub}")
        a.e(f"buffer_store_dwordx2 {vr(LAND+4,2)}, v{V_O8}, s[{SRD_F}:{SRD_F+3}], s{S_VG} offen {pub}")
    def sigB():
        a.e("s_waitcnt vmcnt(0)")
        signal(a, 4, 6, 128, "B")
        lq.q = []
    for q in range(8):
        par = q % 2
        k0 = 12 if par == 0 else 0
        a.e("s_barrier")
        stamp(a, 44 + q)
        if 1 <= q <= 6:
            a.e(f"s_cmp_eq_u32 s{S_WAVE}, {q-1}\ns_cbranch_scc0 L_cpk_{q}")
            do_pickup(a)
            a.e("s_waitcnt lgkmcnt(0)")
            a.label(f"L_cpk_{q}")
        lq.issue(f"ds_read_b32 v{V_QN}, v{V_XN} offset:{q*128}", ("K", 0))
        side = {}
        el = exp_list(V_D1 + 16*par, lambda r: V_QN, V_PHI, cfg.QROUND)
        nlead = 16 if cfg.QROUND else 0
        el2 = el[:nlead] + [lambda: lq.wait(("K", 0))] + el[nlead:]
        spread(el2, 0 if cfg.QROUND else 1, 12, side)
        side.setdefault(11 - D, []).append(qadv)
        extra = []
        if q == cfg.QL1: extra = extra + sb_load_list(0, 4)
        if q == cfg.QL2: extra = extra + sb_load_list(4, 8) + ks_load_list()
        if q == cfg.QS: extra = extra + sb_sum_list()
        if q == cfg.QPB + 1: extra = extra + kv_load_list()
        if q == 7: extra = extra + kv_write_list()
        if extra: spread(extra, 0, 11, side)
        if q == cfg.QS + 1: side.setdefault(4, []).append(sigB)
        if q < 7:
            pend = run_stream(a, lq, seqQ(par), seqQ(1-par) if q < 6 else None, side, k0, pend)
        else:
            for p_ in range(12):
                for x in side.get(p_, []):
                    if x is qadv: continue
                    emit(a, x)
        stamp(a, 3 + 3*q, 3)
        for jj in range(2):
            lq.issue(f"ds_write_b128 v{V_PHW}, {vr(V_PHI+4*jj,4)} offset:{jj*1024}", ("W", jj))
        if q < 7: a.e(f"v_add_u32 v{V_PHW}, 12288, v{V_PHW}")
        if q == 0:
            a.e(f"s_cmp_lg_u32 s{S_WAVE}, 0\ns_cbranch_scc1 L_npa")
            poll_block(a, 0, "A")
            a.label("L_npa")
        if q == cfg.QS:
            for i in range(6): a.e(f"v_cvt_pk_bf16_f32 v{LAND+i}, v{V_SA+2*i}, v{V_SA+2*i+1}")
            for x in ks_fin_list(): emit(a, x)
            a.e(f"s_cmp_lg_u32 s{S_FAST}, 0\ns_cbranch_scc1 L_sbf")
            sb_store("sc1")
            a.e("s_branch L_sbd")
            a.label("L_sbf")
            sb_store("")
            a.label("L_sbd")
        if q == cfg.QPB:
            a.e(f"s_cmp_lg_u32 s{S_WAVE}, 0\ns_cbranch_scc1 L_npb")
            poll_block(a, 128, "B")
            a.label("L_npb")
        stamp(a, 4 + 3*q, 3)
        a.e("s_waitcnt lgkmcnt(0)")
        lq.q = []
    stamp(a, 52)

def fin(a):
    a.label("L_fin")
    a.e("s_barrier")
    stamp(a, 54)
    a.e(f"s_cmp_eq_u32 s{S_WAVE}, 7\ns_cbranch_scc0 L_fpk")
    a.e(f"s_mul_i32 s{S_T0}, s{S_WAVE}, 12288\nv_add_u32 v{V_PHR}, s{S_T0}, v{V_L16}")
    do_pickup(a)
    a.e("s_waitcnt lgkmcnt(0)")
    a.label("L_fpk")
    stamp(a, 56)
    p2b(a)
    stamp(a, 57)
    if cfg.STAMPS: a.e("s_waitcnt vmcnt(0)")
    stamp(a, 58)
    stamp_flush(a)

def p2b(a):
    lq = LQ(a)
    V_O = 112
    V_DEN = 144
    V_KF = 148
    V_DN = 160
    V_T = 176
    V_R = 184
    srd(a, SRD_O, S_OUT, S_ROWOFF, 98304)
    a.e(f"""v_and_b32 v2, 31, v{V_LANE}
v_lshrrev_b32 v3, 5, v{V_LANE}
v_lshlrev_b32 v5, 3, v3
v_add_u32 v5, {L_KS}, v5
v_lshlrev_b32 v6, 4, v{V_LANE}
s_lshl_b32 s{S_T0}, s{S_WAVE}, 12
s_add_u32 s{S_T1}, s{S_T0}, {L_XS}
v_lshlrev_b32 v7, 7, v2
v_lshl_add_u32 v7, v3, 3, v7
v_add_u32 v7, s{S_T1}, v7
v_and_b32 v9, 7, v2
v_lshrrev_b32 v10, 3, v{V_LANE}
v_and_b32 v11, 7, v{V_LANE}
v_xor_b32 v12, v11, v10
v_lshlrev_b32 v8, 7, v10
v_lshl_add_u32 v8, v12, 4, v8
v_add_u32 v8, s{S_T1}, v8
s_lshl_b32 s{S_T0}, s{S_WAVE}, 5
v_add_u32 v4, s{S_T0}, v10
v_mul_u32_u24 v4, 384, v4
v_lshl_add_u32 v4, v11, 4, v4
v_lshl_add_u32 v7, v9, 4, v7""")
    def itemF(f, O):
        def reads(b): return [f"ds_read_b128 {vr(b,4)}, v6 offset:{f*1024}"]
        def mfma(b):
            c = "0" if f == 0 else vr(O, 16)
            return f"v_mfma_f32_32x32x16_bf16 {vr(O,16)}, {vr(b,4)}, {vr(V_PQ+4*f,4)}, {c}"
        return Item(("F", f), reads, mfma)
    def itemFn(f):
        def reads(b): return [f"ds_read_b128 {vr(b,4)}, v6 offset:{12288+f*1024}"]
        return Item(("F", f), reads, None)
    seq = lambda O: [itemF(f, O) for f in range(12)]
    nxt = [itemFn(f) for f in range(12)]
    def kread(f):
        o = 8*(f >> 1) + 4*(f & 1)
        lq.issue(f"ds_read2_b64 {vr(V_KF+4*(f%3),4)}, v5 offset0:{o} offset1:{o+2}", ("K", f))
    kread(0); kread(1)
    pend = prime(lq, seq(V_O), 0)
    for g in range(1, 8):
        a.e(f"v_xor_b32 v{199+g}, {g<<4}, v7")
    WA = lambda g: 7 if g == 0 else 199 + g
    for f in range(12):
        lq.wait(("K", f))
        c = "0" if f == 0 else vr(V_DN, 16)
        a.e(f"v_mfma_f32_32x32x16_bf16 {vr(V_DN,16)}, {vr(V_KF+4*(f%3),4)}, {vr(V_PQ+4*f,4)}, {c}")
        if f + 2 < 12: kread(f + 2)
    pend = run_stream(a, lq, seq(V_O), nxt, {}, 0, pend)
    a.e(f"""v_add_u32 v6, 12288, v6
v_add_f32 v{V_DEN}, {EPS}, v{V_DN}
v_rcp_f32 v{V_DEN}, v{V_DEN}""")
    def epi(O, odd):
        L = []
        for r in range(16): L.append(f"v_mul_f32 v{O+r}, v{O+r}, v{V_DEN}")
        for r in range(8): L.append(f"v_cvt_pk_bf16_f32 v{V_T+r}, v{O+2*r}, v{O+2*r+1}")
        for q in range(4):
            L.append(lambda q=q: lq.issue(f"ds_write_b64 v{WA(4*odd+q)}, {vr(V_T+2*q,2)}", ("W",)))
        if odd:
            for G in range(4):
                L.append(lambda G=G: lq.issue(f"ds_read_b128 {vr(V_R+4*G,4)}, v8 offset:{G*1024}", ("R", G)))
            for G in range(4):
                def st(G=G):
                    lq.wait(("R", G))
                    a.e(f"buffer_store_dwordx4 {vr(V_R+4*G,4)}, v4, s[{SRD_O}:{SRD_O+3}], s{S_T} offen {cfg.OUT_NT}")
                    a.e(f"s_add_u32 s{S_T}, s{S_T}, 3072" if G < 3 else f"s_sub_u32 s{S_T}, s{S_T}, {3*3072 - 128}")
                L.append(st)
        return L
    a.e(f"s_mov_b32 s{S_T}, 0\ns_mov_b32 s{S_T3}, 0")
    a.label("L_p2b")
    side = spread(epi(V_O, 0), 1, 12)
    pend = run_stream(a, lq, seq(V_O+16), nxt, side, 12, pend)
    a.e("v_add_u32 v6, 12288, v6")
    a.e(f"s_cmp_eq_u32 s{S_T3}, 2\ns_cbranch_scc1 L_p2b_end")
    side = spread(epi(V_O+16, 1), 1, 12)
    pend = run_stream(a, lq, seq(V_O), nxt, side, 0, pend)
    a.e("v_add_u32 v6, 12288, v6")
    a.e(f"s_add_u32 s{S_T3}, s{S_T3}, 1\ns_branch L_p2b")
    a.label("L_p2b_end")
    a.e("s_nop 7")
    for x in epi(V_O+16, 1): emit(a, x)
    a.e("s_waitcnt lgkmcnt(0)")

def kernel(a):
    a.e(f"""s_cmp_ge_u32 s2, 256
s_cbranch_scc1 L_end
s_load_dwordx8 s[8:15], s[0:1], 0
s_load_dwordx4 s[16:19], s[0:1], 32
s_load_dwordx2 s[20:21], s[0:1], 48
v_lshrrev_b32 v1, 6, v0
s_and_b32 s{S_HEAD}, s2, 31
s_lshr_b32 s{S_CHUNK}, s2, 5
v_readfirstlane_b32 s{S_WAVE}, v1
v_and_b32 v{V_LANE}, 63, v0
s_mul_i32 s{S_ROWOFF}, s{S_HEAD}, 786432
s_mul_i32 s26, s{S_CHUNK}, 98304
s_add_u32 s{S_ROWOFF}, s{S_ROWOFF}, s26
s_mov_b32 s{S_C12K}, 12288
s_mov_b32 s{S_CM24K}, -24576
s_lshl_b32 s{S_T0}, s{S_WAVE}, 2
s_lshr_b32 s{S_WAVE}, {hex(cfg.ROLEMAP)}, s{S_T0}
s_and_b32 s{S_WAVE}, s{S_WAVE}, 15
s_cmp_ge_u32 s{S_WAVE}, 6
s_waitcnt lgkmcnt(0)""")
    if cfg.STAMPS:
        a.e("v_mov_b32 v255, 0\nv_mov_b32 v254, 0"); stamp(a, 0); a.e(f"s_cmp_ge_u32 s{S_WAVE}, 6")
    a.e("s_cbranch_scc1 L_prod")
    compute(a)
    a.e("s_branch L_fin")
    producer(a)
    fin(a)
    a.label("L_end")
    a.e("s_endpgm")

HEADER = open("standalone__linear_kernel_performer__prompt.s.ref").read().split("; Override launch")[0]

def main(path):
    a = Asm(); a.inprod = False; kernel(a)
    body = a.finalize()
    txt = HEADER + f"; @launch grid=(256,1,1) block=(512,1,1) lds={LDS_BYTES}\n"
    txt += f""".amdgcn_target "amdgcn-amd-amdhsa--gfx950"
.text
.globl {NAME}
.p2align 8
.type {NAME},@function
{NAME}:
{body}.section .rodata,"a"
.p2align 6
.amdhsa_kernel {NAME}
  .amdhsa_next_free_vgpr 256
  .amdhsa_next_free_sgpr 102
  .amdhsa_accum_offset 256
  .amdhsa_group_segment_fixed_size 0
  .amdhsa_kernarg_size 56
  .amdhsa_user_sgpr_count 2
  .amdhsa_user_sgpr_kernarg_segment_ptr 1
  .amdhsa_system_sgpr_workgroup_id_x 1
  .amdhsa_float_denorm_mode_32 3
.end_amdhsa_kernel
"""
    open(path, "w").write(txt)

if __name__ == "__main__":
    for arg in sys.argv[2:]:
        k, v = arg.split("=")
        cur = getattr(cfg, k)
        setattr(cfg, k, (v == "1") if isinstance(cur, bool) else (int(v, 0) if isinstance(cur, int) else v))
    main(sys.argv[1])
```

```python
import struct, sys
from asmlib import Asm, vr, sr

def f32hex(x): return "0x%08x" % struct.unpack("<I", struct.pack("<f", x))[0]
SCALE = f32hex(192 ** -0.25)
LOG2E = f32hex(1.4426950408889634)
EPS = f32hex(0.75e-6)

L_XS = 0x18000
XS_R = 3
L_XN = L_XS + 3*12288
L_KS = L_XN + 2048
L_CNT = L_KS + 512
LDS_BYTES = L_CNT + 64
PART_SZ = 73728
KSP_SZ = 1536
WS_FIN = 0x1900000
WS_FLG = 0x1D00000
WS_STAMP = 0x4000000

NAME = "standalone__linear_kernel_performer__prompt_kernel"
class Cfg:
    ROLEMAP = 0x75436210
    NT = "nt"
    STAMPS = 0
    GET = "sc1"
    DEPTH = 7
    OUT_NT = "sc1"
    QROUND = False
    CODEPF = True
    WAIT2 = True
    FASTEN = False
    QL1 = 1; QL2 = 2; QS = 3; QPB = 5
    X_NOEXP = False
    START2 = True
    SCR_WS = False
cfg = Cfg()

S_Q, S_K, S_V, S_P = 8, 10, 12, 14
S_OUT, S_DBG, S_WS = 16, 18, 20
S_HEAD, S_CHUNK, S_WAVE, S_ROWOFF = 22, 23, 24, 25
S_FLG = 26
SRD_X, SRD_V, SRD_P, SRD_O, SRD_W, SRD_Q, SRD_F = 28, 32, 36, 40, 44, 64, 68
S_VG, S_CAND, S_NONCE, S_SLOT = 52, 53, 54, 55
S_T, S_T0, S_T1, S_T2, S_T3, S_VB, S_FAST, S_SPIN = 56, 57, 58, 59, 60, 61, 62, 63
S_DLT, S_XCC = 72, 73
S_C12K, S_CM24K = 82, 83

V_LANE = 1
V_A = 2
V_XN = 6
V_VE, V_VO = 7, 8
V_FL = 10
V_L16 = 11
V_KS4 = 12
V_PHR = 13
V_PHW = 14
V_P = 16
V_ACC = 64
V_D1 = 160
V_KN = 192
V_PHI = 208
V_FB = 216
V_L2E = 248
V_QN = 249
V_T0 = 250
V_ONES = 252
V_PQ = 64
V_RAW = 16
LAND = 112

class LQ:
    def __init__(self, a): self.a = a; self.q = []
    def issue(self, text, tag): self.a.e(text); self.q.append(tag)
    def wait(self, tag):
        if tag not in self.q: return
        i = len(self.q) - 1 - self.q[::-1].index(tag)
        n = len(self.q) - 1 - i
        assert n <= 15, (n, self.q)
        self.a.e(f"s_waitcnt lgkmcnt({n})")
        self.q = self.q[i+1:]

def _stamp(a, idx):
    a.e("s_memrealtime s[76:77]\ns_memtime s[80:81]\ns_waitcnt lgkmcnt(0)")
    a.e(f"s_mov_b32 m0, {idx}")
    a.e("v_writelane_b32 v255, s76, m0")
    a.e("v_writelane_b32 v254, s80, m0")
def stamp(a, idx, lvl=1):
    if cfg.STAMPS == 0 or (lvl > 1 and cfg.STAMPS != lvl and not (a.inprod and cfg.STAMPS > 1)): return
    _stamp(a, idx)
def stamp_idx(a, sreg, mul, add, lvl=2):
    if cfg.STAMPS == 0 or (lvl > 1 and cfg.STAMPS != lvl): return
    a.e(f"s_mul_i32 s78, s{sreg}, {mul}\ns_add_u32 s78, s78, {add}")
    _stamp(a, "s78")
def stamp_flush(a):
    if not cfg.STAMPS: return
    a.e(f"""s_mov_b64 exec, -1
s_lshl_b32 s72, s2, 3
s_add_u32 s72, s72, s{S_WAVE}
s_lshl_b32 s72, s72, 8
s_add_u32 s72, s72, {WS_STAMP}
s_add_u32 s74, s{S_WS}, s72
s_addc_u32 s75, s{S_WS+1}, 0
v_and_b32 v253, 63, v0
v_lshlrev_b32 v253, 2, v253
global_store_dword v253, v255, s[74:75]
s_add_u32 s74, s74, 0x100000
s_addc_u32 s75, s75, 0
global_store_dword v253, v254, s[74:75]""")

def srd(a, d, ptr, off, size):
    if off is None:
        a.e(f"s_mov_b32 s{d}, s{ptr}\ns_and_b32 s{d+1}, s{ptr+1}, 0xffff")
    else:
        a.e(f"s_add_u32 s{d}, s{ptr}, s{off}\ns_addc_u32 s{d+1}, s{ptr+1}, 0\ns_and_b32 s{d+1}, s{d+1}, 0xffff")
    a.e(f"s_mov_b32 s{d+2}, {size}\ns_mov_b32 s{d+3}, 0x20000")

def flag_base(a):
    a.e(f"""s_lshl_b32 s{S_T0}, s{S_HEAD}, 9
s_add_u32 s{S_T0}, s{S_T0}, {WS_FLG}
s_add_u32 s{S_FLG}, s{S_WS}, s{S_T0}
s_addc_u32 s{S_FLG+1}, s{S_WS+1}, 0""")

def exp_list(D, kn_of, phi, rnd=True):
    L = []
    if cfg.X_NOEXP: return L
    if rnd:
        for r in range(16): L.append(f"v_cvt_pk_bf16_f32 v{D+r}, 0, v{D+r}")
    for r in range(16): L.append(f"v_add_f32 v{D+r}, v{D+r}, v{kn_of(r)}")
    if rnd:
        for r in range(16): L.append(f"v_cvt_pk_bf16_f32 v{D+r}, 0, v{D+r}")
    for r in range(16): L.append(f"v_fma_f32 v{D+r}, v{D+r}, v{V_L2E}, -4.0")
    for r in range(16): L.append(f"v_exp_f32 v{D+r}, v{D+r}")
    for r in range(8): L.append(f"v_cvt_pk_bf16_f32 v{phi+r}, v{D+2*r}, v{D+2*r+1}")
    return L

def do_pickup(a):
    for f in range(12):
        a.e(f"ds_read_b128 {vr(V_PQ+4*f,4)}, v{V_PHR} offset:{f*1024}")

def kv_load_list():
    L = [f"s_mul_i32 s{S_T2}, s{S_WAVE}, 9216"]
    for i in range(9):
        L.append(f"buffer_load_dwordx4 {vr(LAND+4*i,4)}, v{V_L16}, s[{SRD_F}:{SRD_F+3}], s{S_T2} offen {cfg.GET}")
        if i < 8: L.append(f"s_add_u32 s{S_T2}, s{S_T2}, 1024")
    return L
def kv_write_list():
    L = [f"s_mul_i32 s{S_T1}, s{S_WAVE}, 9216", f"v_add_u32 v148, s{S_T1}, v{V_L16}"]
    for i in range(9):
        L.append(f"s_waitcnt vmcnt({8-i})")
        L.append(f"ds_write_b128 v148, {vr(LAND+4*i,4)} offset:{i*1024}")
    return L

P_SCHED = {
    "init": [("K",0), ("K",1), ("K",2), ("S",1), ("V",0), ("V",1)],
    ("c",0): [("K",3)], ("c",1): [("K",4)],
    ("b",2): [("S",3), ("V",2), ("K",5), ("V",3)],
    ("b",3): [("K",6), ("V",4)], ("b",4): [("K",7), ("V",5)], ("b",5): [("S",4), ("V",6), ("V",7)],
    ("b",6): [("Q",0), ("Q",1)], ("b",7): [("Q",2), ("Q",3)], ("b","7a"): [("Q",4), ("Q",5)], ("b","7b"): [("Q",6), ("Q",7)],
}

def producer(a):
    a.inprod = True
    if cfg.START2:
        P_SCHED["init"] = [("K",0), ("K",1), ("S",1)]
        P_SCHED[("c",0)] = [("K",2), ("V",0), ("K",3)]
        P_SCHED[("c",1)] = [("V",1), ("K",4)]
    TMP = 208; VSC = 224; VMK = 226; VDM = 227
    VS0, VS1, VS2, VS3 = 230, 232, 234, 236
    issued = []
    a.label("L_prod")
    srd(a, SRD_X, S_K, S_ROWOFF, 98304)
    a.e(f"""s_sub_u32 s{S_T0}, s{S_WAVE}, 6
s_lshl_b32 s{S_VG}, s{S_T0}, 1
s_lshl_b32 s{S_T0}, s{S_T0}, 4
v_lshrrev_b32 v7, 3, v{V_LANE}
v_and_b32 v8, 7, v{V_LANE}
v_add_u32 v9, s{S_T0}, v7
v_mul_u32_u24 v10, 384, v9
v_lshl_add_u32 v2, v8, 4, v10""")
    def sync_step(k):
        a.e(f"s_cmp_lg_u32 s{S_WAVE}, 6\ns_cbranch_scc1 L_sy{k}")
        if k == 1:
            flag_base(a)
            a.e(f"""v_lshlrev_b32 v{VS1}, 7, v7
v_lshl_add_u32 v{VS1}, v8, 2, v{VS1}
s_mov_b32 exec_lo, -1
s_mov_b32 exec_hi, 0
global_load_dword v{VS0}, v{VS1}, s[{S_FLG}:{S_FLG+1}] sc1
s_mov_b64 exec, -1""")
        elif k == 3:
            a.e(f"""v_subrev_u32 v{VS1}, 1, v{VS0}
v_mov_b32 v{VS1+1}, 1
v_lshlrev_b32 v{VS1+1}, v{VS1}, v{VS1+1}
v_mov_b32 v{VS2}, 0
v_mov_b32 v{VS2+1}, 0
v_cmp_gt_u32 vcc, 32, v{VS1}
s_nop 1
s_mov_b32 vcc_hi, 0
v_cndmask_b32 v{VS2}, 0, v{VS1+1}, vcc
v_subrev_u32 v{VS1}, 32, v{VS1}
v_cmp_gt_u32 vcc, 32, v{VS1}
s_nop 1
s_mov_b32 vcc_hi, 0
v_cndmask_b32 v{VS2+1}, 0, v{VS1+1}, vcc""")
            for r in (VS2, VS2+1):
                for sh in (1, 2, 4, 8):
                    a.e(f"v_or_b32_dpp v{r}, v{r}, v{r} row_shr:{sh} row_mask:0xf bank_mask:0xf")
            a.e(f"""v_readlane_b32 s74, v{VS2}, 15
v_readlane_b32 s{S_T0}, v{VS2}, 31
v_readlane_b32 s75, v{VS2+1}, 15
v_readlane_b32 s{S_T1}, v{VS2+1}, 31
s_or_b32 s74, s74, s{S_T0}
s_or_b32 s75, s75, s{S_T1}
s_ff0_i32_b64 s{S_CAND}, s[74:75]
s_add_u32 s{S_CAND}, s{S_CAND}, 1
s_getreg_b32 s{S_XCC}, hwreg(HW_REG_XCC_ID, 0, 4)
s_and_b32 s{S_XCC}, s{S_XCC}, 7
s_lshl_b32 s{S_XCC}, s{S_XCC}, 2
s_lshl_b32 s{S_T0}, 1, s{S_XCC}
v_mov_b32 v{VS2}, s{S_CAND}
v_mov_b32 v{VS2+1}, 0
s_lshl_b32 s{S_T1}, s{S_HEAD}, 3
v_mov_b32 v{VS3}, s{S_T1}
v_mov_b32 v{VS3+1}, s{S_T0}
s_mov_b32 exec_lo, 1
s_mov_b32 exec_hi, 0
global_atomic_cmpswap v{VS1}, v{VS3}, v[{VS2}:{VS2+1}], s[{S_DBG}:{S_DBG+1}] sc0 sc1
global_atomic_add v{VS3}, v{VS3+1}, s[{S_DBG}:{S_DBG+1}] offset:4 sc1
s_mov_b64 exec, -1""")
        elif k == 4:
            a.e(f"""s_lshl_b32 s{S_T1}, s{S_HEAD}, 3
v_mov_b32 v{VS3}, s{S_T1}
s_mov_b32 exec_lo, 1
s_mov_b32 exec_hi, 0
global_load_dword v{VS0}, v{VS3}, s[{S_DBG}:{S_DBG+1}] offset:4 sc1
s_mov_b64 exec, -1""")
        elif k == 5:
            a.e(f"""v_readfirstlane_b32 s{S_NONCE}, v{VS1}
v_readfirstlane_b32 s{S_T0}, v{VS0}
s_cmp_eq_u32 s{S_NONCE}, 0
s_cselect_b32 s{S_NONCE}, s{S_CAND}, s{S_NONCE}
s_lshl_b32 s{S_T1}, 8, s{S_XCC}
s_cmp_eq_u32 s{S_T0}, s{S_T1}
s_cselect_b32 s{S_FAST}, {1 if cfg.FASTEN else 0}, 0
v_mov_b32 v{VS2}, s{S_NONCE}
v_mov_b32 v{VS2+1}, s{S_FAST}
v_mov_b32 v{VS3}, {L_CNT}
ds_write_b64 v{VS3}, v[{VS2}:{VS2+1}] offset:8
s_waitcnt lgkmcnt(0)""")
        a.label(f"L_sy{k}")
    def issue(tok):
        kind, t = tok
        if kind == "S":
            sync_step(t); return
        issued.append(tok)
        if kind in "KQ":
            srdn = SRD_X if kind == "K" else SRD_Q
            a.e(f"s_mov_b32 s{S_T1}, {t*12288}")
            for g in range(2):
                for cb in range(3):
                    r = V_RAW + 24*t + 12*g + 4*cb
                    a.e(f"buffer_load_dwordx4 {vr(r,4)}, v2, s[{srdn}:{srdn+3}], s{S_T1} offen offset:{g*3072+cb*128} {cfg.NT}")
        else:
            for e in range(2):
                for cb in range(3):
                    a.e(f"s_add_u32 m0, s{S_VB}, {t*12288 + cb*4096 + e*1024}\ns_add_u32 s{S_T1}, s{S_VG}, {t*12288 + e*3072 + cb*128}")
                    a.e(f"buffer_load_dwordx4 v{VDM}, s[{SRD_V}:{SRD_V+3}], s{S_T1} offen {cfg.NT} lds")
    def wait_for(tok):
        n = 6 * (len(issued) - 1 - issued.index(tok))
        assert n <= 60, n
        a.e(f"s_waitcnt vmcnt({n})")
    def ev(key):
        for tok in P_SCHED.get(key, []): issue(tok)
    ninit = 2 if cfg.START2 else 3
    for tok in P_SCHED["init"][:ninit]: issue(tok)
    srd(a, SRD_V, S_V, S_ROWOFF, 98304)
    a.e(f"""v_mul_u32_u24 v11, 384, v7
v_lshrrev_b32 v12, 2, v{V_LANE}
v_and_b32 v12, 4, v12
v_xor_b32 v12, v12, v8
v_lshl_add_u32 v{VDM}, v12, 4, v11
s_lshl_b32 s{S_VB}, s{S_VG}, 10
s_mul_i32 s{S_VG}, s{S_VG}, 3072""")
    for tok in P_SCHED["init"][ninit:]: issue(tok)
    if cfg.CODEPF:
        a.e(f"""s_getpc_b64 s[90:91]
L_pcbase:
s_sub_u32 s90, s90, L_pcbase - {NAME}
s_subb_u32 s91, s91, 0
s_lshr_b32 s{S_T0}, s2, 3
s_and_b32 s{S_T0}, s{S_T0}, 31
s_lshl_b32 s{S_T0}, s{S_T0}, 10
s_sub_u32 s{S_T1}, s{S_WAVE}, 6
s_lshl_b32 s{S_T1}, s{S_T1}, 15
s_add_u32 s{S_T0}, s{S_T0}, s{S_T1}
v_lshlrev_b32 v11, 4, v{V_LANE}
v_add_u32 v11, s{S_T0}, v11
v_min_u32 v11, L_end - {NAME} - 16, v11
global_load_dwordx4 v[240:243], v11, s[90:91]""")
    srd(a, SRD_Q, S_Q, S_ROWOFF, 98304)
    a.e(f"""v_lshrrev_b32 v11, 1, v7
v_xor_b32 v11, v11, v8
v_lshlrev_b32 v12, 4, v11
v_lshlrev_b32 v10, 7, v9
v_add_u32 v3, v10, v12
v_xor_b32 v4, 64, v3
v_add_u32 v4, 1024, v4
v_lshlrev_b32 v5, 2, v9
v_add_u32 v5, {L_XN}, v5
v_mov_b32 v{VSC}, {SCALE}
v_mov_b32 v{VSC+1}, {SCALE}
v_mov_b32 v{VMK}, 0xffff0000
v_add_u32 v13, {L_XS}, v3
v_add_u32 v14, {L_XS}, v4""")
    def convert(kind, t):
        T = t if kind == "K" else 8 + t
        b = V_RAW + 24*t
        wait_for((kind, t))
        stamp(a, 2 + 3*T, 2)
        if kind == "K": A0, off = 13, (t % 3)*12288
        else: A0, off = 3, 0
        for g in range(2):
            nreg = TMP + 8 + g
            a.e(f"v_mov_b32 v{nreg}, 0\nv_mov_b32 v{nreg+2}, 0")
            for c4 in range(3):
                xs_ = [b + 12*g + 4*c4 + i for i in range(4)]
                for i, x in enumerate(xs_): a.e(f"v_lshlrev_b32 v{TMP+2*i}, 16, v{x}")
                for i, x in enumerate(xs_): a.e(f"v_and_b32 v{TMP+2*i+1}, v{VMK}, v{x}")
                for i, x in enumerate(xs_): a.e(f"v_pk_mul_f32 v[{TMP+2*i}:{TMP+2*i+1}], v[{TMP+2*i}:{TMP+2*i+1}], v[{VSC}:{VSC+1}]")
                for i, x in enumerate(xs_): a.e(f"v_cvt_pk_bf16_f32 v{x}, v{TMP+2*i}, v{TMP+2*i+1}")
                for i, x in enumerate(xs_): a.e(f"v_dot2c_f32_bf16 v{nreg + 2*(i&1)}, v{x}, v{x}")
                a.e(f"ds_write_b128 v{A0+g}, {vr(b+12*g+4*c4,4)} offset:{off + c4*4096}")
            a.e(f"v_add_f32 v{nreg}, v{nreg}, v{nreg+2}")
        for perm in ("quad_perm:[1,0,3,2]", "quad_perm:[2,3,0,1]", "row_half_mirror"):
            for g in range(2):
                nreg = TMP + 8 + g
                a.e(f"v_add_f32_dpp v{nreg}, v{nreg}, v{nreg} {perm} row_mask:0xf bank_mask:0xf")
        for g in range(2): a.e(f"v_cvt_pk_bf16_f32 v{TMP+8+g}, 0, v{TMP+8+g}")
        for g in range(2): a.e(f"v_mul_f32 v{TMP+8+g}, -0.5, v{TMP+8+g}")
        for g in range(2): a.e(f"ds_write_b32 v5, v{TMP+8+g} offset:{T*128 + g*32}")
        if kind == "Q": a.e("v_add_u32 v3, 12288, v3\nv_add_u32 v4, 12288, v4")
        a.e("s_waitcnt lgkmcnt(0)")
        stamp(a, 3 + 3*T, 2)
    for T in range(8):
        convert("K", T)
        ev(("c", T))
        if T == 2: a.e("s_barrier\ns_barrier")
        if T >= 2:
            wait_for(("V", T - 2))
            a.e("s_barrier")
        stamp(a, 4 + 3*T, 2)
        ev(("b", T))
    wait_for(("V", 6))
    sync_step(5)
    a.e("s_barrier")
    ev(("b", "7a"))
    convert("Q", 0)
    wait_for(("V", 7))
    a.e("s_barrier")
    ev(("b", "7b"))
    convert("Q", 1)
    convert("Q", 2)
    a.e("s_barrier\ns_barrier\ns_barrier")
    for t in range(3, 8):
        convert("Q", t)
        a.e("s_barrier")
        pass
    a.e(f"v_lshlrev_b32 v{V_L16}, 4, v{V_LANE}")
    a.e(f"s_mul_i32 s{S_T1}, s{S_HEAD}, {PART_SZ}\ns_add_u32 s{S_T1}, s{S_T1}, {WS_FIN}")
    srd(a, SRD_F, S_WS, S_T1, PART_SZ)
    assert cfg.QPB in (4, 5, 6)
    a.e("s_barrier")
    if cfg.QPB == 5:
        for x in kv_load_list(): a.e(x)
    a.e("s_barrier")
    if cfg.QPB == 6:
        for x in kv_load_list(): a.e(x)
    a.e(f"s_cmp_eq_u32 s{S_WAVE}, 6\ns_cbranch_scc0 L_pp6")
    a.e(f"s_mul_i32 s{S_T0}, s{S_WAVE}, 12288\nv_add_u32 v{V_PHR}, s{S_T0}, v{V_L16}")
    do_pickup(a)
    a.label("L_pp6")
    for x in kv_write_list(): a.e(x)
    a.e("s_waitcnt lgkmcnt(0)")
    a.e("s_branch L_fin")
    a.inprod = False

def FB(k): return V_FB + 4*(k % 8)
class Item:
    def __init__(self, tag, reads, mfma):
        self.tag = tag; self.reads = reads; self.mfma = mfma
def itemA(j, D, p1):
    def reads(b): return [f"ds_read_b128 {vr(b,4)}, v{V_A+(j&3)} offset:{(j>>2)*4096}"]
    def mfma(b):
        fp = vr(V_P+4*j, 4); c = "0" if j == 0 else vr(D, 16)
        return f"v_mfma_f32_32x32x16_bf16 {vr(D,16)}, {vr(b,4)}, {fp}, {c}" if p1 else f"v_mfma_f32_32x32x16_bf16 {vr(D,16)}, {fp}, {vr(b,4)}, {c}"
    return Item(("A", j), reads, mfma)
def itemB(idx):
    jj, dt = idx // 6, idx % 6
    base = V_VE if dt % 2 == 0 else V_VO
    def reads(b): return [f"ds_read_b64_tr_b16 {vr(b+2*u,2)}, v{base} offset:{(dt>>1)*4096+(16*jj+8*u)*128}" for u in range(2)]
    def mfma(b): return f"v_mfma_f32_32x32x16_bf16 {vr(V_ACC+16*dt,16)}, {vr(V_PHI+4*jj,4)}, {vr(b,4)}, {vr(V_ACC+16*dt,16)}"
    return Item(("B", idx), reads, mfma)
def issue_item(lq, it, k, uid):
    rs = it.reads(FB(k))
    for n, r in enumerate(rs): lq.issue(r, (uid, k, n))
    return (uid, k, len(rs)-1)
def emit(a, x):
    if callable(x): x()
    else: a.e(x)
def run_stream(a, lq, items, nxt, side, k0=0, pend=None, depth=None):
    D = depth or cfg.DEPTH
    n = len(items)
    pend = dict(pend or {})
    out = {}
    for k in range(n):
        if cfg.WAIT2 and k % 2 == 0 and k + 1 < n and (k + 1) in pend: lq.wait(pend[k + 1])
        lq.wait(pend[k])
        a.e(items[k].mfma(FB(k0 + k)))
        kk = k + D
        if kk < n:
            pend[kk] = issue_item(lq, items[kk], k0 + kk, "c")
        elif nxt is not None and kk - n < len(nxt):
            out[kk - n] = issue_item(lq, nxt[kk - n], k0 + kk, "n")
        for x in side.get(k, []): emit(a, x)
    return out
def prime(lq, items, k0=0, depth=None):
    D = depth or cfg.DEPTH
    return {k: issue_item(lq, items[k], k0 + k, "p") for k in range(D)}
def spread(L, lo, hi, side=None):
    side = side if side is not None else {}
    n = hi - lo
    k = 0
    for p in range(n):
        upto = (len(L) * (p + 1)) // n
        side.setdefault(lo + p, [])
        while k < upto:
            side[lo + p].append(L[k]); k += 1
    return side

def signal(a, lds_off, target, flag_off, name):
    a.e(f"""v_mov_b32 v{V_T0}, {L_CNT}
v_mov_b32 v{V_T0+1}, 1
s_mov_b32 exec_lo, 1
s_mov_b32 exec_hi, 0
ds_add_rtn_u32 v{V_T0+2}, v{V_T0}, v{V_T0+1} offset:{lds_off}
s_waitcnt lgkmcnt(0)
v_readfirstlane_b32 s{S_T0}, v{V_T0+2}
s_cmp_eq_u32 s{S_T0}, {target-1}
s_cbranch_scc0 L_sig_{name}
s_lshl_b32 s{S_T0}, s{S_CHUNK}, 2
v_mov_b32 v{V_T0}, s{S_T0}
v_mov_b32 v{V_T0+1}, s{S_NONCE}
s_cmp_lg_u32 s{S_FAST}, 0
s_cbranch_scc1 L_sigf_{name}
global_store_dword v{V_T0}, v{V_T0+1}, s[{S_FLG}:{S_FLG+1}] offset:{flag_off} sc1
s_branch L_sig_{name}""")
    a.label(f"L_sigf_{name}")
    a.e(f"global_store_dword v{V_T0}, v{V_T0+1}, s[{S_FLG}:{S_FLG+1}] offset:{flag_off+256}")
    a.label(f"L_sig_{name}")
    a.e("s_mov_b64 exec, -1")

def poll_block(a, flag_off, name):
    a.e(f"""s_mov_b32 s{S_SPIN}, 0
v_and_b32 v{V_T0}, 7, v{V_LANE}
v_lshlrev_b32 v{V_T0}, 2, v{V_T0}
v_and_b32 v{V_T0+1}, 8, v{V_LANE}
v_lshl_add_u32 v{V_T0}, v{V_T0+1}, 5, v{V_T0}""")
    a.label(f"L_poll_{name}")
    a.e(f"""s_mov_b32 exec_lo, 0xffff
s_mov_b32 exec_hi, 0
global_load_dword v{V_FL}, v{V_T0}, s[{S_FLG}:{S_FLG+1}] offset:{flag_off} sc1
s_mov_b64 exec, -1
s_waitcnt vmcnt(0)
v_cmp_eq_u32 vcc, s{S_NONCE}, v{V_FL}
s_nop 1
s_and_b32 s{S_T3}, vcc_lo, 0xffff
s_lshr_b32 s{S_T0}, s{S_T3}, 8
s_or_b32 s{S_T3}, s{S_T3}, s{S_T0}
s_and_b32 s{S_T3}, s{S_T3}, 0xff
s_cmp_eq_u32 s{S_T3}, 0xff
s_cbranch_scc1 L_polld_{name}
s_add_u32 s{S_SPIN}, s{S_SPIN}, 1
s_cmp_lt_u32 s{S_SPIN}, 0x80000
s_cbranch_scc1 L_poll_{name}""")
    a.label(f"L_polld_{name}")

def kn_reads(lq):
    def f():
        for q in range(4):
            lq.issue(f"ds_read_b128 {vr(V_KN+4*q,4)}, v{V_XN} offset:{q*32}", ("K", q))
        lq.a.e(f"v_add_u32 v{V_XN}, 128, v{V_XN}")
    return f
def xs_adv(a):
    def f():
        a.e(f"""s_add_u32 s{S_SLOT}, s{S_SLOT}, 1
s_cmp_eq_u32 s{S_SLOT}, {XS_R}
s_cselect_b32 s{S_DLT}, s{S_CM24K}, s{S_C12K}
s_cselect_b32 s{S_SLOT}, 0, s{S_SLOT}""")
        for r in range(V_A, V_A+4): a.e(f"v_add_u32 v{r}, s{S_DLT}, v{r}")
    return f
def xs_addr(a, base):
    a.e(f"""v_and_b32 v176, 31, v{V_LANE}
v_lshrrev_b32 v177, 5, v{V_LANE}
v_lshrrev_b32 v178, 1, v176
v_and_b32 v178, 7, v178
v_lshlrev_b32 v179, 7, v176
v_add_u32 v179, {base}, v179""")
    for k in range(4):
        a.e(f"""v_add_u32 v180, {2*k}, v177
v_xor_b32 v180, v180, v178
v_lshl_add_u32 v{V_A+k}, v180, 4, v179""")

def compute(a):
    lq = LQ(a)
    D = cfg.DEPTH
    a.e("s_setprio 3")
    a.e(f"""v_lshrrev_b32 v160, 3, v{V_LANE}
v_and_b32 v161, 7, v{V_LANE}
v_mul_u32_u24 v162, 384, v160
v_lshrrev_b32 v164, 1, v160
v_xor_b32 v164, v164, v161
v_lshl_add_u32 v164, v164, 4, v162
v_xor_b32 v165, 64, v164
s_mul_i32 s{S_T1}, s{S_WAVE}, 12288""")
    srd(a, SRD_P, S_P, S_T1, 12288)
    a.e(f"s_add_u32 s{S_T2}, s{S_T1}, 24576")
    for cb in range(3):
        for G in range(4):
            a.e(f"s_add_u32 m0, s{S_T2}, {cb*4096+G*1024}\ns_mov_b32 s{S_T3}, {G*3072+cb*128}")
            a.e(f"buffer_load_dwordx4 v{164+(G&1)}, s[{SRD_P}:{SRD_P+3}], s{S_T3} offen lds")
    a.e("s_setprio 0")
    xs_addr(a, L_XS)
    a.e(f"""v_lshlrev_b32 v{V_L16}, 4, v{V_LANE}
v_lshlrev_b32 v{V_XN}, 4, v177
v_add_u32 v{V_XN}, {L_XN}, v{V_XN}
v_and_b32 v178, 15, v{V_LANE}
v_lshrrev_b32 v179, 2, v178
v_lshl_add_u32 v179, v177, 2, v179
v_lshlrev_b32 v179, 7, v179
v_bfe_u32 v180, v{V_LANE}, 4, 1
v_lshl_add_u32 v179, v180, 5, v179
v_and_b32 v180, 3, v178
v_lshl_add_u32 v179, v180, 3, v179
v_bfe_u32 v180, v178, 3, 1
v_lshl_add_u32 v{V_VE}, v180, 6, v179
v_xor_b32 v180, 1, v180
v_lshl_add_u32 v{V_VO}, v180, 6, v179
v_add_u32 v{V_VE}, {2*12288}, v{V_VE}
v_add_u32 v{V_VO}, {2*12288}, v{V_VO}
v_mov_b32 v{V_L2E}, {LOG2E}
v_mov_b32 v181, {L_CNT}
v_mov_b32 v182, 0
v_mov_b32 v183, 0
ds_write_b64 v181, v[182:183]
v_mov_b32 v{V_ONES}, 0x3f803f80
v_mov_b32 v{V_ONES+1}, 0x3f803f80
s_mov_b32 s{S_SLOT}, 0""")
    for r in range(4): a.e(f"v_mov_b32 v{V_KS4+r}, 0")
    for r in range(96): a.e(f"v_mov_b32 v{V_ACC+r}, 0")
    for r in range(8): a.e(f"v_mov_b32 v{V_PHI+r}, 0")
    a.e(f"s_mul_i32 s{S_T1}, s{S_WAVE}, 12288\ns_add_u32 s{S_T1}, s{S_T1}, {24576 - L_XS}")
    for k in range(4): a.e(f"v_add_u32 v{184+k}, s{S_T1}, v{V_A+k}")
    flag_base(a)
    a.e("s_waitcnt vmcnt(0)")
    for j in range(12):
        a.e(f"ds_read_b128 {vr(V_P+4*j,4)}, v{184+(j&3)} offset:{(j>>2)*4096}")
    a.e("s_waitcnt lgkmcnt(0)")
    stamp(a, 1)
    a.e("s_barrier")
    stamp(a, 2)
    A0 = [itemA(j, V_D1, True) for j in range(12)]
    pend = prime(lq, A0, 0)
    run_stream(a, lq, A0, None, {}, 0, pend)
    xs_adv(a)()
    a.e("s_barrier")
    a.e(f"s_mov_b32 s{S_T}, 0")
    Bs = [itemB(i) for i in range(12)]
    ks4 = [f"v_mfma_f32_4x4x4_16b_bf16 {vr(V_KS4,4)}, {vr(V_ONES,2)}, {vr(V_PHI+2*r,2)}, {vr(V_KS4,4)}" for r in range(4)]
    def seqZ(par): return Bs + [itemA(j, V_D1 + 16*(1-par), True) for j in range(12)]
    KNPOS = 12
    kn_reads(lq)()
    pend = prime(lq, seqZ(0), 0)
    a.label("L_p1")
    for par in range(2):
        stamp_idx(a, S_T, 4, 3)
        a.e("s_barrier")
        stamp_idx(a, S_T, 4, 4)
        side = {}
        el = exp_list(V_D1 + 16*par, lambda r: V_KN + r, V_PHI)
        body, pack = (el[:-8], el[-8:]) if el else ([], [])
        el2 = body[:16] + [lambda: lq.wait(("K", 3))] + body[16:]
        for r in range(4): side.setdefault(1 + 3*r, []).append(ks4[r])
        spread(el2, 0, 22, side)
        spread(pack, 22, 24, side)
        if par == 0:
            side.setdefault(11 - D, []).extend([f"s_cmp_eq_u32 s{S_T}, 0", f"s_cselect_b32 s{S_T2}, s{S_CM24K}, s{S_C12K}", f"v_add_u32 v{V_VE}, s{S_T2}, v{V_VE}", f"v_add_u32 v{V_VO}, s{S_T2}, v{V_VO}"])
        else:
            side.setdefault(11 - D, []).extend([f"v_add_u32 v{V_VE}, 12288, v{V_VE}", f"v_add_u32 v{V_VO}, 12288, v{V_VO}"])
        side.setdefault(23 - D, []).append(xs_adv(a))
        side.setdefault(KNPOS, []).append(kn_reads(lq))
        pend = run_stream(a, lq, seqZ(par), seqZ(1-par), side, 0, pend)
        stamp_idx(a, S_T, 4, 6)
        a.e(f"s_add_u32 s{S_T}, s{S_T}, 1")
    a.e(f"s_cmp_lt_u32 s{S_T}, 8\ns_cbranch_scc1 L_p1")
    a.e(f"v_mov_b32 v{V_T0}, {L_CNT}")
    lq.issue(f"ds_read_b64 v[{V_T0+0}:{V_T0+1}], v{V_T0} offset:8", ("N",))
    SP = S_WS if cfg.SCR_WS else S_OUT
    srd(a, SRD_O, SP, S_ROWOFF, 98304)
    a.e(f"s_mul_i32 s{S_T1}, s{S_HEAD}, 786432")
    srd(a, SRD_W, SP, S_T1, 786432)
    a.e(f"s_mul_i32 s{S_T1}, s{S_HEAD}, {PART_SZ}\ns_add_u32 s{S_T1}, s{S_T1}, {WS_FIN}")
    srd(a, SRD_F, S_WS, S_T1, PART_SZ)
    lq.wait(("N",))
    a.e(f"v_readfirstlane_b32 s{S_NONCE}, v{V_T0}\nv_readfirstlane_b32 s{S_FAST}, v{V_T0+1}")
    a.e(f"s_lshl_b32 s{S_VG}, s{S_WAVE}, 11")
    qsave = list(lq.q); psave = dict(pend)
    def final_b(pub):
        lq.q = list(qsave)
        TB = V_D1
        def pubtile(dt):
            L = []
            for jj in range(2):
                tb = TB + 4*((dt*2+jj) % 8)
                for i in range(4):
                    L.append(f"v_cvt_pk_bf16_f32 v{tb+i}, v{V_ACC+16*dt+8*jj+2*i}, v{V_ACC+16*dt+8*jj+2*i+1}")
                L.append(f"buffer_store_dwordx4 {vr(tb,4)}, v{V_L16}, s[{SRD_O}:{SRD_O+3}], s{S_VG} offen offset:{jj*1024} {pub}")
            if dt < 5: L.append(f"s_add_u32 s{S_VG}, s{S_VG}, 12288")
            return L
        side = {}
        for r in range(4): side.setdefault(1 + 2*r, []).append(ks4[r])
        for dt in range(4): side.setdefault(8 + dt, []).extend(pubtile(dt))
        run_stream(a, lq, Bs, None, side, 0, psave)
        for dt in (4, 5):
            for x in pubtile(dt): a.e(x)
        a.e(f"v_lshlrev_b32 v{V_T0+1}, 2, v{V_LANE}\ns_lshl_b32 s{S_T2}, s{S_WAVE}, 8\ns_add_u32 s{S_T2}, s{S_T2}, {PART_SZ}")
        a.e(f"buffer_store_dword v{V_KS4}, v{V_T0+1}, s[{SRD_O}:{SRD_O+3}], s{S_T2} offen {pub}")
    a.e(f"s_cmp_lg_u32 s{S_FAST}, 0\ns_cbranch_scc1 L_pubf")
    final_b("sc1")
    a.e("s_branch L_pubd")
    a.label("L_pubf")
    final_b("")
    a.label("L_pubd")
    lq.q = []
    stamp(a, 40)
    xs_addr(a, 0)
    V_ID = 206; V_SA = 192; V_KL = 196 - 196 + 64 + 0
    V_O8 = 204
    V_KL = 240
    a.e(f"""v_lshlrev_b32 v{V_XN}, 2, v176
v_add_u32 v{V_XN}, {L_XN + 8*128}, v{V_XN}
s_lshl_b32 s{S_T0}, s{S_WAVE}, 11
v_add_u32 v{V_PHW}, s{S_T0}, v{V_L16}
s_mul_i32 s{S_T0}, s{S_WAVE}, 12288
v_add_u32 v{V_PHR}, s{S_T0}, v{V_L16}
v_and_b32 v{V_T0}, 3, v{V_LANE}
v_mov_b32 v{V_T0+1}, 0x3f80
v_mov_b32 v{V_T0+2}, 0x3f800000
v_cmp_eq_u32 vcc, 0, v{V_T0}
v_cndmask_b32 v{V_ID}, 0, v{V_T0+1}, vcc
v_cmp_eq_u32 vcc, 1, v{V_T0}
v_cndmask_b32 v{V_ID}, v{V_ID}, v{V_T0+2}, vcc
v_cmp_eq_u32 vcc, 2, v{V_T0}
v_cndmask_b32 v{V_ID+1}, 0, v{V_T0+1}, vcc
v_cmp_eq_u32 vcc, 3, v{V_T0}
v_cndmask_b32 v{V_ID+1}, v{V_ID+1}, v{V_T0+2}, vcc
s_mul_i32 s{S_T0}, s{S_CHUNK}, 9216
s_mul_i32 s{S_T1}, s{S_WAVE}, 1536
s_add_u32 s{S_VG}, s{S_T0}, s{S_T1}
v_lshlrev_b32 v{V_O8}, 3, v{V_LANE}
v_add_u32 v{V_O8}, 1024, v{V_O8}""")
    stamp(a, 41)
    a.e("s_barrier")
    stamp(a, 43)
    def qadv():
        for r in range(V_A, V_A+4): a.e(f"v_add_u32 v{r}, 12288, v{r}")
    Q0 = [itemA(j, V_D1, False) for j in range(12)]
    pend = prime(lq, Q0, 0)
    run_stream(a, lq, Q0, None, {}, 0, pend)
    qadv()
    a.e("s_waitcnt vmcnt(0)")
    stamp(a, 42)
    signal(a, 0, 6, 0, "A")
    a.e("s_barrier")
    def seqQ(par): return [itemA(j, V_D1 + 16*(1-par), False) for j in range(12)]
    pend = prime(lq, seqQ(0), 12)
    def sb_load_list(p0, p1):
        L = [f"s_add_u32 s{S_T2}, s{S_VG}, {p0*98304}"]
        for p in range(p0, p1):
            L.append(f"buffer_load_dwordx4 {vr(LAND+6*p,4)}, v{V_L16}, s[{SRD_W}:{SRD_W+3}], s{S_T2} offen {cfg.GET}")
            L.append(f"buffer_load_dwordx2 {vr(LAND+6*p+4,2)}, v{V_O8}, s[{SRD_W}:{SRD_W+3}], s{S_T2} offen {cfg.GET}")
            if p < p1 - 1: L.append(f"s_add_u32 s{S_T2}, s{S_T2}, 98304")
        return L
    def sb_sum_list():
        L = ["s_waitcnt vmcnt(8)"]
        for p in range(8):
            for c in range(3):
                cc = "0" if p == 0 else vr(V_SA+4*c, 4)
                L.append(f"v_mfma_f32_4x4x4_16b_bf16 {vr(V_SA+4*c,4)}, {vr(V_ID,2)}, {vr(LAND+6*p+2*c,2)}, {cc}")
        return L
    KL = [7, 8, 9, 205, V_KS4, 15, V_FL, V_T0+3]
    def ks_load_list():
        L = [f"v_lshlrev_b32 v{V_T0+2}, 2, v{V_LANE}", f"s_lshl_b32 s{S_T2}, s{S_WAVE}, 8", f"s_add_u32 s{S_T2}, s{S_T2}, {PART_SZ}"]
        for c in range(8):
            L.append(f"buffer_load_dword v{KL[c]}, v{V_T0+2}, s[{SRD_W}:{SRD_W+3}], s{S_T2} offen {cfg.GET}")
            if c < 7: L.append(f"s_add_u32 s{S_T2}, s{S_T2}, 98304")
        return L
    def ks_fin_list():
        K = KL[0]; K1 = KL[1]
        L = ["s_waitcnt vmcnt(0)"]
        for c in range(1, 8): L.append(f"v_add_f32 v{K}, v{K}, v{KL[c]}")
        L += [f"v_mov_b32 v{K1}, v{K}", "s_nop 1", f"v_permlane32_swap_b32 v{K}, v{K1}", "s_nop 1", f"v_add_f32 v{K}, v{K}, v{K1}",
              f"v_cvt_pk_bf16_f32 v{K}, v{K}, v{K}", f"v_and_b32 v{K1}, 31, v{V_LANE}", f"v_lshlrev_b32 v{K1}, 1, v{K1}",
              f"s_lshl_b32 s{S_T2}, s{S_WAVE}, 6", f"s_add_u32 s{S_T2}, s{S_T2}, {L_KS}", f"v_add_u32 v{K1}, s{S_T2}, v{K1}",
              lambda: lq.issue(f"ds_write_b16 v{K1}, v{K}", ("X",))]
        return L
    def sb_store(pub):
        a.e(f"buffer_store_dwordx4 {vr(LAND,4)}, v{V_L16}, s[{SRD_F}:{SRD_F+3}], s{S_VG} offen {pub}")
        a.e(f"buffer_store_dwordx2 {vr(LAND+4,2)}, v{V_O8}, s[{SRD_F}:{SRD_F+3}], s{S_VG} offen {pub}")
    def sigB():
        a.e("s_waitcnt vmcnt(0)")
        signal(a, 4, 6, 128, "B")
        lq.q = []
    for q in range(8):
        par = q % 2
        k0 = 12 if par == 0 else 0
        a.e("s_barrier")
        stamp(a, 44 + q)
        if 1 <= q <= 6:
            a.e(f"s_cmp_eq_u32 s{S_WAVE}, {q-1}\ns_cbranch_scc0 L_cpk_{q}")
            do_pickup(a)
            a.e("s_waitcnt lgkmcnt(0)")
            a.label(f"L_cpk_{q}")
        lq.issue(f"ds_read_b32 v{V_QN}, v{V_XN} offset:{q*128}", ("K", 0))
        side = {}
        el = exp_list(V_D1 + 16*par, lambda r: V_QN, V_PHI, cfg.QROUND)
        nlead = 16 if cfg.QROUND else 0
        el2 = el[:nlead] + [lambda: lq.wait(("K", 0))] + el[nlead:]
        spread(el2, 0 if cfg.QROUND else 1, 12, side)
        side.setdefault(11 - D, []).append(qadv)
        extra = []
        if q == cfg.QL1: extra = extra + sb_load_list(0, 4)
        if q == cfg.QL2: extra = extra + sb_load_list(4, 8) + ks_load_list()
        if q == cfg.QS: extra = extra + sb_sum_list()
        if q == cfg.QPB + 1: extra = extra + kv_load_list()
        if q == 7: extra = extra + kv_write_list()
        if extra: spread(extra, 0, 11, side)
        if q == cfg.QS + 1: side.setdefault(4, []).append(sigB)
        if q < 7:
            pend = run_stream(a, lq, seqQ(par), seqQ(1-par) if q < 6 else None, side, k0, pend)
        else:
            for p_ in range(12):
                for x in side.get(p_, []):
                    if x is qadv: continue
                    emit(a, x)
        stamp(a, 3 + 3*q, 3)
        for jj in range(2):
            lq.issue(f"ds_write_b128 v{V_PHW}, {vr(V_PHI+4*jj,4)} offset:{jj*1024}", ("W", jj))
        if q < 7: a.e(f"v_add_u32 v{V_PHW}, 12288, v{V_PHW}")
        if q == 0:
            a.e(f"s_cmp_lg_u32 s{S_WAVE}, 0\ns_cbranch_scc1 L_npa")
            poll_block(a, 0, "A")
            a.label("L_npa")
        if q == cfg.QS:
            for i in range(6): a.e(f"v_cvt_pk_bf16_f32 v{LAND+i}, v{V_SA+2*i}, v{V_SA+2*i+1}")
            for x in ks_fin_list(): emit(a, x)
            a.e(f"s_cmp_lg_u32 s{S_FAST}, 0\ns_cbranch_scc1 L_sbf")
            sb_store("sc1")
            a.e("s_branch L_sbd")
            a.label("L_sbf")
            sb_store("")
            a.label("L_sbd")
        if q == cfg.QPB:
            a.e(f"s_cmp_lg_u32 s{S_WAVE}, 0\ns_cbranch_scc1 L_npb")
            poll_block(a, 128, "B")
            a.label("L_npb")
        stamp(a, 4 + 3*q, 3)
        a.e("s_waitcnt lgkmcnt(0)")
        lq.q = []
    stamp(a, 52)

def fin(a):
    a.label("L_fin")
    a.e("s_barrier")
    stamp(a, 54)
    a.e(f"s_cmp_eq_u32 s{S_WAVE}, 7\ns_cbranch_scc0 L_fpk")
    a.e(f"s_mul_i32 s{S_T0}, s{S_WAVE}, 12288\nv_add_u32 v{V_PHR}, s{S_T0}, v{V_L16}")
    do_pickup(a)
    a.e("s_waitcnt lgkmcnt(0)")
    a.label("L_fpk")
    stamp(a, 56)
    p2b(a)
    stamp(a, 57)
    if cfg.STAMPS: a.e("s_waitcnt vmcnt(0)")
    stamp(a, 58)
    stamp_flush(a)

def p2b(a):
    lq = LQ(a)
    V_O = 112
    V_DEN = 144
    V_KF = 148
    V_DN = 160
    V_T = 176
    V_R = 184
    srd(a, SRD_O, S_OUT, S_ROWOFF, 98304)
    a.e(f"""v_and_b32 v2, 31, v{V_LANE}
v_lshrrev_b32 v3, 5, v{V_LANE}
v_lshlrev_b32 v5, 3, v3
v_add_u32 v5, {L_KS}, v5
v_lshlrev_b32 v6, 4, v{V_LANE}
s_lshl_b32 s{S_T0}, s{S_WAVE}, 12
s_add_u32 s{S_T1}, s{S_T0}, {L_XS}
v_lshlrev_b32 v7, 7, v2
v_lshl_add_u32 v7, v3, 3, v7
v_add_u32 v7, s{S_T1}, v7
v_and_b32 v9, 7, v2
v_lshrrev_b32 v10, 3, v{V_LANE}
v_and_b32 v11, 7, v{V_LANE}
v_xor_b32 v12, v11, v10
v_lshlrev_b32 v8, 7, v10
v_lshl_add_u32 v8, v12, 4, v8
v_add_u32 v8, s{S_T1}, v8
s_lshl_b32 s{S_T0}, s{S_WAVE}, 5
v_add_u32 v4, s{S_T0}, v10
v_mul_u32_u24 v4, 384, v4
v_lshl_add_u32 v4, v11, 4, v4
v_lshl_add_u32 v7, v9, 4, v7""")
    def itemF(f, O):
        def reads(b): return [f"ds_read_b128 {vr(b,4)}, v6 offset:{f*1024}"]
        def mfma(b):
            c = "0" if f == 0 else vr(O, 16)
            return f"v_mfma_f32_32x32x16_bf16 {vr(O,16)}, {vr(b,4)}, {vr(V_PQ+4*f,4)}, {c}"
        return Item(("F", f), reads, mfma)
    def itemFn(f):
        def reads(b): return [f"ds_read_b128 {vr(b,4)}, v6 offset:{12288+f*1024}"]
        return Item(("F", f), reads, None)
    seq = lambda O: [itemF(f, O) for f in range(12)]
    nxt = [itemFn(f) for f in range(12)]
    def kread(f):
        o = 8*(f >> 1) + 4*(f & 1)
        lq.issue(f"ds_read2_b64 {vr(V_KF+4*(f%3),4)}, v5 offset0:{o} offset1:{o+2}", ("K", f))
    kread(0); kread(1)
    pend = prime(lq, seq(V_O), 0)
    for g in range(1, 8):
        a.e(f"v_xor_b32 v{199+g}, {g<<4}, v7")
    WA = lambda g: 7 if g == 0 else 199 + g
    for f in range(12):
        lq.wait(("K", f))
        c = "0" if f == 0 else vr(V_DN, 16)
        a.e(f"v_mfma_f32_32x32x16_bf16 {vr(V_DN,16)}, {vr(V_KF+4*(f%3),4)}, {vr(V_PQ+4*f,4)}, {c}")
        if f + 2 < 12: kread(f + 2)
    pend = run_stream(a, lq, seq(V_O), nxt, {}, 0, pend)
    a.e(f"""v_add_u32 v6, 12288, v6
v_add_f32 v{V_DEN}, {EPS}, v{V_DN}
v_rcp_f32 v{V_DEN}, v{V_DEN}""")
    def epi(O, odd):
        L = []
        for r in range(16): L.append(f"v_mul_f32 v{O+r}, v{O+r}, v{V_DEN}")
        for r in range(8): L.append(f"v_cvt_pk_bf16_f32 v{V_T+r}, v{O+2*r}, v{O+2*r+1}")
        for q in range(4):
            L.append(lambda q=q: lq.issue(f"ds_write_b64 v{WA(4*odd+q)}, {vr(V_T+2*q,2)}", ("W",)))
        if odd:
            for G in range(4):
                L.append(lambda G=G: lq.issue(f"ds_read_b128 {vr(V_R+4*G,4)}, v8 offset:{G*1024}", ("R", G)))
            for G in range(4):
                def st(G=G):
                    lq.wait(("R", G))
                    a.e(f"buffer_store_dwordx4 {vr(V_R+4*G,4)}, v4, s[{SRD_O}:{SRD_O+3}], s{S_T} offen {cfg.OUT_NT}")
                    a.e(f"s_add_u32 s{S_T}, s{S_T}, 3072" if G < 3 else f"s_sub_u32 s{S_T}, s{S_T}, {3*3072 - 128}")
                L.append(st)
        return L
    a.e(f"s_mov_b32 s{S_T}, 0\ns_mov_b32 s{S_T3}, 0")
    a.label("L_p2b")
    side = spread(epi(V_O, 0), 1, 12)
    pend = run_stream(a, lq, seq(V_O+16), nxt, side, 12, pend)
    a.e("v_add_u32 v6, 12288, v6")
    a.e(f"s_cmp_eq_u32 s{S_T3}, 2\ns_cbranch_scc1 L_p2b_end")
    side = spread(epi(V_O+16, 1), 1, 12)
    pend = run_stream(a, lq, seq(V_O), nxt, side, 0, pend)
    a.e("v_add_u32 v6, 12288, v6")
    a.e(f"s_add_u32 s{S_T3}, s{S_T3}, 1\ns_branch L_p2b")
    a.label("L_p2b_end")
    a.e("s_nop 7")
    for x in epi(V_O+16, 1): emit(a, x)
    a.e("s_waitcnt lgkmcnt(0)")

def kernel(a):
    a.e(f"""s_cmp_ge_u32 s2, 256
s_cbranch_scc1 L_end
s_load_dwordx8 s[8:15], s[0:1], 0
s_load_dwordx4 s[16:19], s[0:1], 32
s_load_dwordx2 s[20:21], s[0:1], 48
v_lshrrev_b32 v1, 6, v0
s_and_b32 s{S_HEAD}, s2, 31
s_lshr_b32 s{S_CHUNK}, s2, 5
v_readfirstlane_b32 s{S_WAVE}, v1
v_and_b32 v{V_LANE}, 63, v0
s_mul_i32 s{S_ROWOFF}, s{S_HEAD}, 786432
s_mul_i32 s26, s{S_CHUNK}, 98304
s_add_u32 s{S_ROWOFF}, s{S_ROWOFF}, s26
s_mov_b32 s{S_C12K}, 12288
s_mov_b32 s{S_CM24K}, -24576
s_lshl_b32 s{S_T0}, s{S_WAVE}, 2
s_lshr_b32 s{S_WAVE}, {hex(cfg.ROLEMAP)}, s{S_T0}
s_and_b32 s{S_WAVE}, s{S_WAVE}, 15
s_cmp_ge_u32 s{S_WAVE}, 6
s_waitcnt lgkmcnt(0)""")
    if cfg.STAMPS:
        a.e("v_mov_b32 v255, 0\nv_mov_b32 v254, 0"); stamp(a, 0); a.e(f"s_cmp_ge_u32 s{S_WAVE}, 6")
    a.e("s_cbranch_scc1 L_prod")
    compute(a)
    a.e("s_branch L_fin")
    producer(a)
    fin(a)
    a.label("L_end")
    a.e("s_endpgm")

HEADER = open("standalone__linear_kernel_performer__prompt.s.ref").read().split("; Override launch")[0]

def main(path):
    a = Asm(); a.inprod = False; kernel(a)
    body = a.finalize()
    txt = HEADER + f"; @launch grid=(256,1,1) block=(512,1,1) lds={LDS_BYTES}\n"
    txt += f""".amdgcn_target "amdgcn-amd-amdhsa--gfx950"
.text
.globl {NAME}
.p2align 8
.type {NAME},@function
{NAME}:
{body}.section .rodata,"a"
.p2align 6
.amdhsa_kernel {NAME}
  .amdhsa_next_free_vgpr 256
  .amdhsa_next_free_sgpr 102
  .amdhsa_accum_offset 256
  .amdhsa_group_segment_fixed_size 0
  .amdhsa_kernarg_size 56
  .amdhsa_user_sgpr_count 2
  .amdhsa_user_sgpr_kernarg_segment_ptr 1
  .amdhsa_system_sgpr_workgroup_id_x 1
  .amdhsa_float_denorm_mode_32 3
.end_amdhsa_kernel
"""
    open(path, "w").write(txt)

if __name__ == "__main__":
    for arg in sys.argv[2:]:
        k, v = arg.split("=")
        cur = getattr(cfg, k)
        setattr(cfg, k, (v == "1") if isinstance(cur, bool) else (int(v, 0) if isinstance(cur, int) else v))
    main(sys.argv[1])
```

```python
import struct, sys
from asmlib import Asm, vr, sr

def f32hex(x): return "0x%08x" % struct.unpack("<I", struct.pack("<f", x))[0]
SCALE = f32hex(192 ** -0.25)
LOG2E = f32hex(1.4426950408889634)
EPS = f32hex(0.75e-6)

L_XS = 0x18000
XS_R = 3
L_XN = L_XS + 3*12288
L_KS = L_XN + 2048
L_CNT = L_KS + 512
LDS_BYTES = L_CNT + 64
PART_SZ = 73728
KSP_SZ = 1536
WS_FIN = 0x1900000
WS_FLG = 0x1D00000
WS_STAMP = 0x4000000

NAME = "standalone__linear_kernel_performer__prompt_kernel"
class Cfg:
    ROLEMAP = 0x75436210
    NT = "nt"
    STAMPS = 0
    GET = "sc1"
    DEPTH = 7
    OUT_NT = "sc1"
    QROUND = False
    CODEPF = True
    WAIT2 = True
    FASTEN = False
    QL1 = 1; QL2 = 2; QS = 3; QPB = 5
    X_NOEXP = False
    START2 = True
    SCR_WS = False
    DIAG = False
cfg = Cfg()

S_Q, S_K, S_V, S_P = 8, 10, 12, 14
S_OUT, S_DBG, S_WS = 16, 18, 20
S_HEAD, S_CHUNK, S_WAVE, S_ROWOFF = 22, 23, 24, 25
S_FLG = 26
SRD_X, SRD_V, SRD_P, SRD_O, SRD_W, SRD_Q, SRD_F = 28, 32, 36, 40, 44, 64, 68
S_VG, S_CAND, S_NONCE, S_SLOT = 52, 53, 54, 55
S_T, S_T0, S_T1, S_T2, S_T3, S_VB, S_FAST, S_SPIN = 56, 57, 58, 59, 60, 61, 62, 63
S_DLT, S_XCC = 72, 73
S_C12K, S_CM24K = 82, 83

V_LANE = 1
V_A = 2
V_XN = 6
V_VE, V_VO = 7, 8
V_FL = 10
V_L16 = 11
V_KS4 = 12
V_PHR = 13
V_PHW = 14
V_P = 16
V_ACC = 64
V_D1 = 160
V_KN = 192
V_PHI = 208
V_FB = 216
V_L2E = 248
V_QN = 249
V_T0 = 250
V_ONES = 252
V_PQ = 64
V_RAW = 16
LAND = 112

class LQ:
    def __init__(self, a): self.a = a; self.q = []
    def issue(self, text, tag): self.a.e(text); self.q.append(tag)
    def wait(self, tag):
        if tag not in self.q: return
        i = len(self.q) - 1 - self.q[::-1].index(tag)
        n = len(self.q) - 1 - i
        assert n <= 15, (n, self.q)
        self.a.e(f"s_waitcnt lgkmcnt({n})")
        self.q = self.q[i+1:]

def _stamp(a, idx):
    a.e("s_memrealtime s[76:77]\ns_memtime s[80:81]\ns_waitcnt lgkmcnt(0)")
    a.e(f"s_mov_b32 m0, {idx}")
    a.e("v_writelane_b32 v255, s76, m0")
    a.e("v_writelane_b32 v254, s80, m0")
def stamp(a, idx, lvl=1):
    if cfg.STAMPS == 0 or (lvl > 1 and cfg.STAMPS != lvl and not (a.inprod and cfg.STAMPS > 1)): return
    _stamp(a, idx)
def stamp_idx(a, sreg, mul, add, lvl=2):
    if cfg.STAMPS == 0 or (lvl > 1 and cfg.STAMPS != lvl): return
    a.e(f"s_mul_i32 s78, s{sreg}, {mul}\ns_add_u32 s78, s78, {add}")
    _stamp(a, "s78")
def stamp_flush(a):
    if not cfg.STAMPS: return
    a.e(f"""s_mov_b64 exec, -1
s_lshl_b32 s72, s2, 3
s_add_u32 s72, s72, s{S_WAVE}
s_lshl_b32 s72, s72, 8
s_add_u32 s72, s72, {WS_STAMP}
s_add_u32 s74, s{S_WS}, s72
s_addc_u32 s75, s{S_WS+1}, 0
v_and_b32 v253, 63, v0
v_lshlrev_b32 v253, 2, v253
global_store_dword v253, v255, s[74:75]
s_add_u32 s74, s74, 0x100000
s_addc_u32 s75, s75, 0
global_store_dword v253, v254, s[74:75]""")

def srd(a, d, ptr, off, size):
    if off is None:
        a.e(f"s_mov_b32 s{d}, s{ptr}\ns_and_b32 s{d+1}, s{ptr+1}, 0xffff")
    else:
        a.e(f"s_add_u32 s{d}, s{ptr}, s{off}\ns_addc_u32 s{d+1}, s{ptr+1}, 0\ns_and_b32 s{d+1}, s{d+1}, 0xffff")
    a.e(f"s_mov_b32 s{d+2}, {size}\ns_mov_b32 s{d+3}, 0x20000")

def flag_base(a):
    a.e(f"""s_lshl_b32 s{S_T0}, s{S_HEAD}, 9
s_add_u32 s{S_T0}, s{S_T0}, {WS_FLG}
s_add_u32 s{S_FLG}, s{S_WS}, s{S_T0}
s_addc_u32 s{S_FLG+1}, s{S_WS+1}, 0""")

def exp_list(D, kn_of, phi, rnd=True):
    L = []
    if cfg.X_NOEXP: return L
    if rnd:
        for r in range(16): L.append(f"v_cvt_pk_bf16_f32 v{D+r}, 0, v{D+r}")
    for r in range(16): L.append(f"v_add_f32 v{D+r}, v{D+r}, v{kn_of(r)}")
    if rnd:
        for r in range(16): L.append(f"v_cvt_pk_bf16_f32 v{D+r}, 0, v{D+r}")
    for r in range(16): L.append(f"v_fma_f32 v{D+r}, v{D+r}, v{V_L2E}, -4.0")
    for r in range(16): L.append(f"v_exp_f32 v{D+r}, v{D+r}")
    for r in range(8): L.append(f"v_cvt_pk_bf16_f32 v{phi+r}, v{D+2*r}, v{D+2*r+1}")
    return L

def do_pickup(a):
    for f in range(12):
        a.e(f"ds_read_b128 {vr(V_PQ+4*f,4)}, v{V_PHR} offset:{f*1024}")

def kv_load_list():
    L = [f"s_mul_i32 s{S_T2}, s{S_WAVE}, 9216"]
    for i in range(9):
        L.append(f"buffer_load_dwordx4 {vr(LAND+4*i,4)}, v{V_L16}, s[{SRD_F}:{SRD_F+3}], s{S_T2} offen {cfg.GET}")
        if i < 8: L.append(f"s_add_u32 s{S_T2}, s{S_T2}, 1024")
    return L
def kv_write_list():
    L = [f"s_mul_i32 s{S_T1}, s{S_WAVE}, 9216", f"v_add_u32 v148, s{S_T1}, v{V_L16}"]
    for i in range(9):
        L.append(f"s_waitcnt vmcnt({8-i})")
        L.append(f"ds_write_b128 v148, {vr(LAND+4*i,4)} offset:{i*1024}")
    return L

P_SCHED = {
    "init": [("K",0), ("K",1), ("K",2), ("S",1), ("V",0), ("V",1)],
    ("c",0): [("K",3)], ("c",1): [("K",4)],
    ("b",2): [("S",3), ("V",2), ("K",5), ("V",3)],
    ("b",3): [("K",6), ("V",4)], ("b",4): [("K",7), ("V",5)], ("b",5): [("S",4), ("V",6), ("V",7)],
    ("b",6): [("Q",0), ("Q",1)], ("b",7): [("Q",2), ("Q",3)], ("b","7a"): [("Q",4), ("Q",5)], ("b","7b"): [("Q",6), ("Q",7)],
}

def producer(a):
    a.inprod = True
    if cfg.START2:
        P_SCHED["init"] = [("K",0), ("K",1), ("S",1)]
        P_SCHED[("c",0)] = [("K",2), ("V",0), ("K",3)]
        P_SCHED[("c",1)] = [("V",1), ("K",4)]
    TMP = 208; VSC = 224; VMK = 226; VDM = 227
    VS0, VS1, VS2, VS3 = 230, 232, 234, 236
    issued = []
    a.label("L_prod")
    srd(a, SRD_X, S_K, S_ROWOFF, 98304)
    a.e(f"""s_sub_u32 s{S_T0}, s{S_WAVE}, 6
s_lshl_b32 s{S_VG}, s{S_T0}, 1
s_lshl_b32 s{S_T0}, s{S_T0}, 4
v_lshrrev_b32 v7, 3, v{V_LANE}
v_and_b32 v8, 7, v{V_LANE}
v_add_u32 v9, s{S_T0}, v7
v_mul_u32_u24 v10, 384, v9
v_lshl_add_u32 v2, v8, 4, v10""")
    def sync_step(k):
        a.e(f"s_cmp_lg_u32 s{S_WAVE}, 6\ns_cbranch_scc1 L_sy{k}")
        if k == 1:
            flag_base(a)
            a.e(f"""v_lshlrev_b32 v{VS1}, 7, v7
v_lshl_add_u32 v{VS1}, v8, 2, v{VS1}
s_mov_b32 exec_lo, -1
s_mov_b32 exec_hi, 0
global_load_dword v{VS0}, v{VS1}, s[{S_FLG}:{S_FLG+1}] sc1
s_mov_b64 exec, -1""")
        elif k == 3:
            a.e(f"""v_subrev_u32 v{VS1}, 1, v{VS0}
v_mov_b32 v{VS1+1}, 1
v_lshlrev_b32 v{VS1+1}, v{VS1}, v{VS1+1}
v_mov_b32 v{VS2}, 0
v_mov_b32 v{VS2+1}, 0
v_cmp_gt_u32 vcc, 32, v{VS1}
s_nop 1
s_mov_b32 vcc_hi, 0
v_cndmask_b32 v{VS2}, 0, v{VS1+1}, vcc
v_subrev_u32 v{VS1}, 32, v{VS1}
v_cmp_gt_u32 vcc, 32, v{VS1}
s_nop 1
s_mov_b32 vcc_hi, 0
v_cndmask_b32 v{VS2+1}, 0, v{VS1+1}, vcc""")
            for r in (VS2, VS2+1):
                for sh in (1, 2, 4, 8):
                    a.e(f"v_or_b32_dpp v{r}, v{r}, v{r} row_shr:{sh} row_mask:0xf bank_mask:0xf")
            a.e(f"""v_readlane_b32 s74, v{VS2}, 15
v_readlane_b32 s{S_T0}, v{VS2}, 31
v_readlane_b32 s75, v{VS2+1}, 15
v_readlane_b32 s{S_T1}, v{VS2+1}, 31
s_or_b32 s74, s74, s{S_T0}
s_or_b32 s75, s75, s{S_T1}
s_ff0_i32_b64 s{S_CAND}, s[74:75]
s_add_u32 s{S_CAND}, s{S_CAND}, 1
s_getreg_b32 s{S_XCC}, hwreg(HW_REG_XCC_ID, 0, 4)
s_and_b32 s{S_XCC}, s{S_XCC}, 7
s_lshl_b32 s{S_XCC}, s{S_XCC}, 2
s_lshl_b32 s{S_T0}, 1, s{S_XCC}
v_mov_b32 v{VS2}, s{S_CAND}
v_mov_b32 v{VS2+1}, 0
s_lshl_b32 s{S_T1}, s{S_HEAD}, 3
v_mov_b32 v{VS3}, s{S_T1}
v_mov_b32 v{VS3+1}, s{S_T0}
s_mov_b32 exec_lo, 1
s_mov_b32 exec_hi, 0
global_atomic_cmpswap v{VS1}, v{VS3}, v[{VS2}:{VS2+1}], s[{S_DBG}:{S_DBG+1}] sc0 sc1
{"global_atomic_add v%d, v%d, s[%d:%d] offset:4 sc1" % (VS3, VS3+1, S_DBG, S_DBG+1) if cfg.FASTEN else "s_nop 0"}
s_mov_b64 exec, -1""")
        elif k == 4:
            a.e(f"""s_lshl_b32 s{S_T1}, s{S_HEAD}, 3
v_mov_b32 v{VS3}, s{S_T1}
s_mov_b32 exec_lo, 1
s_mov_b32 exec_hi, 0
global_load_dword v{VS0}, v{VS3}, s[{S_DBG}:{S_DBG+1}] offset:4 sc1
s_mov_b64 exec, -1""")
        elif k == 5:
            a.e(f"""v_readfirstlane_b32 s{S_NONCE}, v{VS1}
v_readfirstlane_b32 s{S_T0}, v{VS0}
s_cmp_eq_u32 s{S_NONCE}, 0
s_cselect_b32 s{S_NONCE}, s{S_CAND}, s{S_NONCE}
s_lshl_b32 s{S_T1}, 8, s{S_XCC}
s_cmp_eq_u32 s{S_T0}, s{S_T1}
s_cselect_b32 s{S_FAST}, {1 if cfg.FASTEN else 0}, 0
v_mov_b32 v{VS2}, s{S_NONCE}
v_mov_b32 v{VS2+1}, s{S_FAST}
v_mov_b32 v{VS3}, {L_CNT}
ds_write_b64 v{VS3}, v[{VS2}:{VS2+1}] offset:8
s_waitcnt lgkmcnt(0)""")
        a.label(f"L_sy{k}")
    def issue(tok):
        kind, t = tok
        if kind == "S":
            sync_step(t); return
        issued.append(tok)
        if kind in "KQ":
            srdn = SRD_X if kind == "K" else SRD_Q
            a.e(f"s_mov_b32 s{S_T1}, {t*12288}")
            for g in range(2):
                for cb in range(3):
                    r = V_RAW + 24*t + 12*g + 4*cb
                    a.e(f"buffer_load_dwordx4 {vr(r,4)}, v2, s[{srdn}:{srdn+3}], s{S_T1} offen offset:{g*3072+cb*128} {cfg.NT}")
        else:
            for e in range(2):
                for cb in range(3):
                    a.e(f"s_add_u32 m0, s{S_VB}, {t*12288 + cb*4096 + e*1024}\ns_add_u32 s{S_T1}, s{S_VG}, {t*12288 + e*3072 + cb*128}")
                    a.e(f"buffer_load_dwordx4 v{VDM}, s[{SRD_V}:{SRD_V+3}], s{S_T1} offen {cfg.NT} lds")
    def wait_for(tok):
        n = 6 * (len(issued) - 1 - issued.index(tok))
        assert n <= 60, n
        a.e(f"s_waitcnt vmcnt({n})")
    def ev(key):
        for tok in P_SCHED.get(key, []): issue(tok)
    ninit = 2 if cfg.START2 else 3
    for tok in P_SCHED["init"][:ninit]: issue(tok)
    srd(a, SRD_V, S_V, S_ROWOFF, 98304)
    a.e(f"""v_mul_u32_u24 v11, 384, v7
v_lshrrev_b32 v12, 2, v{V_LANE}
v_and_b32 v12, 4, v12
v_xor_b32 v12, v12, v8
v_lshl_add_u32 v{VDM}, v12, 4, v11
s_lshl_b32 s{S_VB}, s{S_VG}, 10
s_mul_i32 s{S_VG}, s{S_VG}, 3072""")
    for tok in P_SCHED["init"][ninit:]: issue(tok)
    if cfg.CODEPF:
        a.e(f"""s_getpc_b64 s[90:91]
L_pcbase:
s_sub_u32 s90, s90, L_pcbase - {NAME}
s_subb_u32 s91, s91, 0
s_lshr_b32 s{S_T0}, s2, 3
s_and_b32 s{S_T0}, s{S_T0}, 31
s_lshl_b32 s{S_T0}, s{S_T0}, 10
s_sub_u32 s{S_T1}, s{S_WAVE}, 6
s_lshl_b32 s{S_T1}, s{S_T1}, 15
s_add_u32 s{S_T0}, s{S_T0}, s{S_T1}
v_lshlrev_b32 v11, 4, v{V_LANE}
v_add_u32 v11, s{S_T0}, v11
v_min_u32 v11, L_end - {NAME} - 16, v11
global_load_dwordx4 v[240:243], v11, s[90:91]""")
    srd(a, SRD_Q, S_Q, S_ROWOFF, 98304)
    a.e(f"""v_lshrrev_b32 v11, 1, v7
v_xor_b32 v11, v11, v8
v_lshlrev_b32 v12, 4, v11
v_lshlrev_b32 v10, 7, v9
v_add_u32 v3, v10, v12
v_xor_b32 v4, 64, v3
v_add_u32 v4, 1024, v4
v_lshlrev_b32 v5, 2, v9
v_add_u32 v5, {L_XN}, v5
v_mov_b32 v{VSC}, {SCALE}
v_mov_b32 v{VSC+1}, {SCALE}
v_mov_b32 v{VMK}, 0xffff0000
v_add_u32 v13, {L_XS}, v3
v_add_u32 v14, {L_XS}, v4""")
    def convert(kind, t):
        T = t if kind == "K" else 8 + t
        b = V_RAW + 24*t
        wait_for((kind, t))
        stamp(a, 2 + 3*T, 2)
        if kind == "K": A0, off = 13, (t % 3)*12288
        else: A0, off = 3, 0
        for g in range(2):
            nreg = TMP + 8 + g
            a.e(f"v_mov_b32 v{nreg}, 0\nv_mov_b32 v{nreg+2}, 0")
            for c4 in range(3):
                xs_ = [b + 12*g + 4*c4 + i for i in range(4)]
                for i, x in enumerate(xs_): a.e(f"v_lshlrev_b32 v{TMP+2*i}, 16, v{x}")
                for i, x in enumerate(xs_): a.e(f"v_and_b32 v{TMP+2*i+1}, v{VMK}, v{x}")
                for i, x in enumerate(xs_): a.e(f"v_pk_mul_f32 v[{TMP+2*i}:{TMP+2*i+1}], v[{TMP+2*i}:{TMP+2*i+1}], v[{VSC}:{VSC+1}]")
                for i, x in enumerate(xs_): a.e(f"v_cvt_pk_bf16_f32 v{x}, v{TMP+2*i}, v{TMP+2*i+1}")
                for i, x in enumerate(xs_): a.e(f"v_dot2c_f32_bf16 v{nreg + 2*(i&1)}, v{x}, v{x}")
                a.e(f"ds_write_b128 v{A0+g}, {vr(b+12*g+4*c4,4)} offset:{off + c4*4096}")
            a.e(f"v_add_f32 v{nreg}, v{nreg}, v{nreg+2}")
        for perm in ("quad_perm:[1,0,3,2]", "quad_perm:[2,3,0,1]", "row_half_mirror"):
            for g in range(2):
                nreg = TMP + 8 + g
                a.e(f"v_add_f32_dpp v{nreg}, v{nreg}, v{nreg} {perm} row_mask:0xf bank_mask:0xf")
        for g in range(2): a.e(f"v_cvt_pk_bf16_f32 v{TMP+8+g}, 0, v{TMP+8+g}")
        for g in range(2): a.e(f"v_mul_f32 v{TMP+8+g}, -0.5, v{TMP+8+g}")
        for g in range(2): a.e(f"ds_write_b32 v5, v{TMP+8+g} offset:{T*128 + g*32}")
        if kind == "Q": a.e("v_add_u32 v3, 12288, v3\nv_add_u32 v4, 12288, v4")
        a.e("s_waitcnt lgkmcnt(0)")
        stamp(a, 3 + 3*T, 2)
    for T in range(8):
        convert("K", T)
        ev(("c", T))
        if T == 2: a.e("s_barrier\ns_barrier")
        if T >= 2:
            wait_for(("V", T - 2))
            a.e("s_barrier")
        stamp(a, 4 + 3*T, 2)
        ev(("b", T))
    wait_for(("V", 6))
    sync_step(5)
    a.e("s_barrier")
    ev(("b", "7a"))
    convert("Q", 0)
    wait_for(("V", 7))
    a.e("s_barrier")
    ev(("b", "7b"))
    convert("Q", 1)
    convert("Q", 2)
    a.e("s_barrier\ns_barrier\ns_barrier")
    for t in range(3, 8):
        convert("Q", t)
        a.e("s_barrier")
        pass
    a.e(f"v_lshlrev_b32 v{V_L16}, 4, v{V_LANE}")
    a.e(f"s_mul_i32 s{S_T1}, s{S_HEAD}, {PART_SZ}\ns_add_u32 s{S_T1}, s{S_T1}, {WS_FIN}")
    srd(a, SRD_F, S_WS, S_T1, PART_SZ)
    assert cfg.QPB in (4, 5, 6)
    a.e("s_barrier")
    if cfg.QPB == 5:
        for x in kv_load_list(): a.e(x)
    a.e("s_barrier")
    if cfg.QPB == 6:
        for x in kv_load_list(): a.e(x)
    a.e(f"s_cmp_eq_u32 s{S_WAVE}, 6\ns_cbranch_scc0 L_pp6")
    a.e(f"s_mul_i32 s{S_T0}, s{S_WAVE}, 12288\nv_add_u32 v{V_PHR}, s{S_T0}, v{V_L16}")
    do_pickup(a)
    a.label("L_pp6")
    for x in kv_write_list(): a.e(x)
    a.e("s_waitcnt lgkmcnt(0)")
    a.e("s_branch L_fin")
    a.inprod = False

def FB(k): return V_FB + 4*(k % 8)
class Item:
    def __init__(self, tag, reads, mfma):
        self.tag = tag; self.reads = reads; self.mfma = mfma
def itemA(j, D, p1):
    def reads(b): return [f"ds_read_b128 {vr(b,4)}, v{V_A+(j&3)} offset:{(j>>2)*4096}"]
    def mfma(b):
        fp = vr(V_P+4*j, 4); c = "0" if j == 0 else vr(D, 16)
        return f"v_mfma_f32_32x32x16_bf16 {vr(D,16)}, {vr(b,4)}, {fp}, {c}" if p1 else f"v_mfma_f32_32x32x16_bf16 {vr(D,16)}, {fp}, {vr(b,4)}, {c}"
    return Item(("A", j), reads, mfma)
def itemB(idx):
    jj, dt = idx // 6, idx % 6
    base = V_VE if dt % 2 == 0 else V_VO
    def reads(b): return [f"ds_read_b64_tr_b16 {vr(b+2*u,2)}, v{base} offset:{(dt>>1)*4096+(16*jj+8*u)*128}" for u in range(2)]
    def mfma(b): return f"v_mfma_f32_32x32x16_bf16 {vr(V_ACC+16*dt,16)}, {vr(V_PHI+4*jj,4)}, {vr(b,4)}, {vr(V_ACC+16*dt,16)}"
    return Item(("B", idx), reads, mfma)
def issue_item(lq, it, k, uid):
    rs = it.reads(FB(k))
    for n, r in enumerate(rs): lq.issue(r, (uid, k, n))
    return (uid, k, len(rs)-1)
def emit(a, x):
    if callable(x): x()
    else: a.e(x)
def run_stream(a, lq, items, nxt, side, k0=0, pend=None, depth=None):
    D = depth or cfg.DEPTH
    n = len(items)
    pend = dict(pend or {})
    out = {}
    for k in range(n):
        if cfg.WAIT2 and k % 2 == 0 and k + 1 < n and (k + 1) in pend: lq.wait(pend[k + 1])
        lq.wait(pend[k])
        a.e(items[k].mfma(FB(k0 + k)))
        kk = k + D
        if kk < n:
            pend[kk] = issue_item(lq, items[kk], k0 + kk, "c")
        elif nxt is not None and kk - n < len(nxt):
            out[kk - n] = issue_item(lq, nxt[kk - n], k0 + kk, "n")
        for x in side.get(k, []): emit(a, x)
    return out
def prime(lq, items, k0=0, depth=None):
    D = depth or cfg.DEPTH
    return {k: issue_item(lq, items[k], k0 + k, "p") for k in range(D)}
def spread(L, lo, hi, side=None):
    side = side if side is not None else {}
    n = hi - lo
    k = 0
    for p in range(n):
        upto = (len(L) * (p + 1)) // n
        side.setdefault(lo + p, [])
        while k < upto:
            side[lo + p].append(L[k]); k += 1
    return side

def signal(a, lds_off, target, flag_off, name):
    a.e(f"""v_mov_b32 v{V_T0}, {L_CNT}
v_mov_b32 v{V_T0+1}, 1
s_mov_b32 exec_lo, 1
s_mov_b32 exec_hi, 0
ds_add_rtn_u32 v{V_T0+2}, v{V_T0}, v{V_T0+1} offset:{lds_off}
s_waitcnt lgkmcnt(0)
v_readfirstlane_b32 s{S_T0}, v{V_T0+2}
s_cmp_eq_u32 s{S_T0}, {target-1}
s_cbranch_scc0 L_sig_{name}
s_lshl_b32 s{S_T0}, s{S_CHUNK}, 2
v_mov_b32 v{V_T0}, s{S_T0}
v_mov_b32 v{V_T0+1}, s{S_NONCE}
s_cmp_lg_u32 s{S_FAST}, 0
s_cbranch_scc1 L_sigf_{name}
global_store_dword v{V_T0}, v{V_T0+1}, s[{S_FLG}:{S_FLG+1}] offset:{flag_off} sc1
s_branch L_sig_{name}""")
    a.label(f"L_sigf_{name}")
    a.e(f"global_store_dword v{V_T0}, v{V_T0+1}, s[{S_FLG}:{S_FLG+1}] offset:{flag_off+256}")
    a.label(f"L_sig_{name}")
    a.e("s_mov_b64 exec, -1")

def poll_block(a, flag_off, name):
    a.e(f"""s_mov_b32 s{S_SPIN}, 0
v_and_b32 v{V_T0}, 7, v{V_LANE}
v_lshlrev_b32 v{V_T0}, 2, v{V_T0}
v_and_b32 v{V_T0+1}, 8, v{V_LANE}
v_lshl_add_u32 v{V_T0}, v{V_T0+1}, 5, v{V_T0}""")
    a.label(f"L_poll_{name}")
    a.e(f"""s_mov_b32 exec_lo, 0xffff
s_mov_b32 exec_hi, 0
global_load_dword v{V_FL}, v{V_T0}, s[{S_FLG}:{S_FLG+1}] offset:{flag_off} sc1
s_mov_b64 exec, -1
s_waitcnt vmcnt(0)
v_cmp_eq_u32 vcc, s{S_NONCE}, v{V_FL}
s_nop 1
s_and_b32 s{S_T3}, vcc_lo, 0xffff
s_lshr_b32 s{S_T0}, s{S_T3}, 8
s_or_b32 s{S_T3}, s{S_T3}, s{S_T0}
s_and_b32 s{S_T3}, s{S_T3}, 0xff
s_cmp_eq_u32 s{S_T3}, 0xff
s_cbranch_scc1 L_polld_{name}
s_add_u32 s{S_SPIN}, s{S_SPIN}, 1
s_cmp_lt_u32 s{S_SPIN}, 0x80000
s_cbranch_scc1 L_poll_{name}""")
    a.label(f"L_polld_{name}")

def kn_reads(lq):
    def f():
        for q in range(4):
            lq.issue(f"ds_read_b128 {vr(V_KN+4*q,4)}, v{V_XN} offset:{q*32}", ("K", q))
        lq.a.e(f"v_add_u32 v{V_XN}, 128, v{V_XN}")
    return f
def xs_adv(a):
    def f():
        a.e(f"""s_add_u32 s{S_SLOT}, s{S_SLOT}, 1
s_cmp_eq_u32 s{S_SLOT}, {XS_R}
s_cselect_b32 s{S_DLT}, s{S_CM24K}, s{S_C12K}
s_cselect_b32 s{S_SLOT}, 0, s{S_SLOT}""")
        for r in range(V_A, V_A+4): a.e(f"v_add_u32 v{r}, s{S_DLT}, v{r}")
    return f
def xs_addr(a, base):
    a.e(f"""v_and_b32 v176, 31, v{V_LANE}
v_lshrrev_b32 v177, 5, v{V_LANE}
v_lshrrev_b32 v178, 1, v176
v_and_b32 v178, 7, v178
v_lshlrev_b32 v179, 7, v176
v_add_u32 v179, {base}, v179""")
    for k in range(4):
        a.e(f"""v_add_u32 v180, {2*k}, v177
v_xor_b32 v180, v180, v178
v_lshl_add_u32 v{V_A+k}, v180, 4, v179""")

def compute(a):
    lq = LQ(a)
    D = cfg.DEPTH
    a.e("s_setprio 3")
    a.e(f"""v_lshrrev_b32 v160, 3, v{V_LANE}
v_and_b32 v161, 7, v{V_LANE}
v_mul_u32_u24 v162, 384, v160
v_lshrrev_b32 v164, 1, v160
v_xor_b32 v164, v164, v161
v_lshl_add_u32 v164, v164, 4, v162
v_xor_b32 v165, 64, v164
s_mul_i32 s{S_T1}, s{S_WAVE}, 12288""")
    srd(a, SRD_P, S_P, S_T1, 12288)
    a.e(f"s_add_u32 s{S_T2}, s{S_T1}, 24576")
    for cb in range(3):
        for G in range(4):
            a.e(f"s_add_u32 m0, s{S_T2}, {cb*4096+G*1024}\ns_mov_b32 s{S_T3}, {G*3072+cb*128}")
            a.e(f"buffer_load_dwordx4 v{164+(G&1)}, s[{SRD_P}:{SRD_P+3}], s{S_T3} offen lds")
    a.e("s_setprio 0")
    xs_addr(a, L_XS)
    a.e(f"""v_lshlrev_b32 v{V_L16}, 4, v{V_LANE}
v_lshlrev_b32 v{V_XN}, 4, v177
v_add_u32 v{V_XN}, {L_XN}, v{V_XN}
v_and_b32 v178, 15, v{V_LANE}
v_lshrrev_b32 v179, 2, v178
v_lshl_add_u32 v179, v177, 2, v179
v_lshlrev_b32 v179, 7, v179
v_bfe_u32 v180, v{V_LANE}, 4, 1
v_lshl_add_u32 v179, v180, 5, v179
v_and_b32 v180, 3, v178
v_lshl_add_u32 v179, v180, 3, v179
v_bfe_u32 v180, v178, 3, 1
v_lshl_add_u32 v{V_VE}, v180, 6, v179
v_xor_b32 v180, 1, v180
v_lshl_add_u32 v{V_VO}, v180, 6, v179
v_add_u32 v{V_VE}, {2*12288}, v{V_VE}
v_add_u32 v{V_VO}, {2*12288}, v{V_VO}
v_mov_b32 v{V_L2E}, {LOG2E}
v_mov_b32 v181, {L_CNT}
v_mov_b32 v182, 0
v_mov_b32 v183, 0
ds_write_b64 v181, v[182:183]
v_mov_b32 v{V_ONES}, 0x3f803f80
v_mov_b32 v{V_ONES+1}, 0x3f803f80
s_mov_b32 s{S_SLOT}, 0""")
    for r in range(4): a.e(f"v_mov_b32 v{V_KS4+r}, 0")
    for r in range(96): a.e(f"v_mov_b32 v{V_ACC+r}, 0")
    for r in range(8): a.e(f"v_mov_b32 v{V_PHI+r}, 0")
    a.e(f"s_mul_i32 s{S_T1}, s{S_WAVE}, 12288\ns_add_u32 s{S_T1}, s{S_T1}, {24576 - L_XS}")
    for k in range(4): a.e(f"v_add_u32 v{184+k}, s{S_T1}, v{V_A+k}")
    flag_base(a)
    a.e("s_waitcnt vmcnt(0)")
    for j in range(12):
        a.e(f"ds_read_b128 {vr(V_P+4*j,4)}, v{184+(j&3)} offset:{(j>>2)*4096}")
    a.e("s_waitcnt lgkmcnt(0)")
    stamp(a, 1)
    a.e("s_barrier")
    stamp(a, 2)
    if cfg.DIAG: a.e("s_memrealtime s[76:77]\ns_memtime s[80:81]\ns_waitcnt lgkmcnt(0)\ns_mov_b32 s88, s76\ns_mov_b32 s89, s80")
    A0 = [itemA(j, V_D1, True) for j in range(12)]
    pend = prime(lq, A0, 0)
    run_stream(a, lq, A0, None, {}, 0, pend)
    xs_adv(a)()
    a.e("s_barrier")
    a.e(f"s_mov_b32 s{S_T}, 0")
    Bs = [itemB(i) for i in range(12)]
    ks4 = [f"v_mfma_f32_4x4x4_16b_bf16 {vr(V_KS4,4)}, {vr(V_ONES,2)}, {vr(V_PHI+2*r,2)}, {vr(V_KS4,4)}" for r in range(4)]
    def seqZ(par): return Bs + [itemA(j, V_D1 + 16*(1-par), True) for j in range(12)]
    KNPOS = 12
    kn_reads(lq)()
    pend = prime(lq, seqZ(0), 0)
    a.label("L_p1")
    for par in range(2):
        stamp_idx(a, S_T, 4, 3)
        a.e("s_barrier")
        stamp_idx(a, S_T, 4, 4)
        side = {}
        el = exp_list(V_D1 + 16*par, lambda r: V_KN + r, V_PHI)
        body, pack = (el[:-8], el[-8:]) if el else ([], [])
        el2 = body[:16] + [lambda: lq.wait(("K", 3))] + body[16:]
        for r in range(4): side.setdefault(1 + 3*r, []).append(ks4[r])
        spread(el2, 0, 22, side)
        spread(pack, 22, 24, side)
        if par == 0:
            side.setdefault(11 - D, []).extend([f"s_cmp_eq_u32 s{S_T}, 0", f"s_cselect_b32 s{S_T2}, s{S_CM24K}, s{S_C12K}", f"v_add_u32 v{V_VE}, s{S_T2}, v{V_VE}", f"v_add_u32 v{V_VO}, s{S_T2}, v{V_VO}"])
        else:
            side.setdefault(11 - D, []).extend([f"v_add_u32 v{V_VE}, 12288, v{V_VE}", f"v_add_u32 v{V_VO}, 12288, v{V_VO}"])
        side.setdefault(23 - D, []).append(xs_adv(a))
        side.setdefault(KNPOS, []).append(kn_reads(lq))
        pend = run_stream(a, lq, seqZ(par), seqZ(1-par), side, 0, pend)
        stamp_idx(a, S_T, 4, 6)
        a.e(f"s_add_u32 s{S_T}, s{S_T}, 1")
    a.e(f"s_cmp_lt_u32 s{S_T}, 8\ns_cbranch_scc1 L_p1")
    a.e(f"v_mov_b32 v{V_T0}, {L_CNT}")
    lq.issue(f"ds_read_b64 v[{V_T0+0}:{V_T0+1}], v{V_T0} offset:8", ("N",))
    SP = S_WS if cfg.SCR_WS else S_OUT
    srd(a, SRD_O, SP, S_ROWOFF, 98304)
    a.e(f"s_mul_i32 s{S_T1}, s{S_HEAD}, 786432")
    srd(a, SRD_W, SP, S_T1, 786432)
    a.e(f"s_mul_i32 s{S_T1}, s{S_HEAD}, {PART_SZ}\ns_add_u32 s{S_T1}, s{S_T1}, {WS_FIN}")
    srd(a, SRD_F, S_WS, S_T1, PART_SZ)
    lq.wait(("N",))
    a.e(f"v_readfirstlane_b32 s{S_NONCE}, v{V_T0}\nv_readfirstlane_b32 s{S_FAST}, v{V_T0+1}")
    a.e(f"s_lshl_b32 s{S_VG}, s{S_WAVE}, 11")
    qsave = list(lq.q); psave = dict(pend)
    def final_b(pub):
        lq.q = list(qsave)
        TB = V_D1
        def pubtile(dt):
            L = []
            for jj in range(2):
                tb = TB + 4*((dt*2+jj) % 8)
                for i in range(4):
                    L.append(f"v_cvt_pk_bf16_f32 v{tb+i}, v{V_ACC+16*dt+8*jj+2*i}, v{V_ACC+16*dt+8*jj+2*i+1}")
                L.append(f"buffer_store_dwordx4 {vr(tb,4)}, v{V_L16}, s[{SRD_O}:{SRD_O+3}], s{S_VG} offen offset:{jj*1024} {pub}")
            if dt < 5: L.append(f"s_add_u32 s{S_VG}, s{S_VG}, 12288")
            return L
        side = {}
        for r in range(4): side.setdefault(1 + 2*r, []).append(ks4[r])
        for dt in range(4): side.setdefault(8 + dt, []).extend(pubtile(dt))
        run_stream(a, lq, Bs, None, side, 0, psave)
        for dt in (4, 5):
            for x in pubtile(dt): a.e(x)
        a.e(f"v_lshlrev_b32 v{V_T0+1}, 2, v{V_LANE}\ns_lshl_b32 s{S_T2}, s{S_WAVE}, 8\ns_add_u32 s{S_T2}, s{S_T2}, {PART_SZ}")
        a.e(f"buffer_store_dword v{V_KS4}, v{V_T0+1}, s[{SRD_O}:{SRD_O+3}], s{S_T2} offen {pub}")
    a.e(f"s_cmp_lg_u32 s{S_FAST}, 0\ns_cbranch_scc1 L_pubf")
    final_b("sc1")
    a.e("s_branch L_pubd")
    a.label("L_pubf")
    final_b("")
    a.label("L_pubd")
    lq.q = []
    stamp(a, 40)
    if cfg.DIAG: a.e("s_memrealtime s[76:77]\ns_memtime s[80:81]\ns_waitcnt lgkmcnt(0)\ns_mov_b32 s90, s76\ns_mov_b32 s91, s80")
    xs_addr(a, 0)
    V_ID = 206; V_SA = 192; V_KL = 196 - 196 + 64 + 0
    V_O8 = 204
    V_KL = 240
    a.e(f"""v_lshlrev_b32 v{V_XN}, 2, v176
v_add_u32 v{V_XN}, {L_XN + 8*128}, v{V_XN}
s_lshl_b32 s{S_T0}, s{S_WAVE}, 11
v_add_u32 v{V_PHW}, s{S_T0}, v{V_L16}
s_mul_i32 s{S_T0}, s{S_WAVE}, 12288
v_add_u32 v{V_PHR}, s{S_T0}, v{V_L16}
v_and_b32 v{V_T0}, 3, v{V_LANE}
v_mov_b32 v{V_T0+1}, 0x3f80
v_mov_b32 v{V_T0+2}, 0x3f800000
v_cmp_eq_u32 vcc, 0, v{V_T0}
v_cndmask_b32 v{V_ID}, 0, v{V_T0+1}, vcc
v_cmp_eq_u32 vcc, 1, v{V_T0}
v_cndmask_b32 v{V_ID}, v{V_ID}, v{V_T0+2}, vcc
v_cmp_eq_u32 vcc, 2, v{V_T0}
v_cndmask_b32 v{V_ID+1}, 0, v{V_T0+1}, vcc
v_cmp_eq_u32 vcc, 3, v{V_T0}
v_cndmask_b32 v{V_ID+1}, v{V_ID+1}, v{V_T0+2}, vcc
s_mul_i32 s{S_T0}, s{S_CHUNK}, 9216
s_mul_i32 s{S_T1}, s{S_WAVE}, 1536
s_add_u32 s{S_VG}, s{S_T0}, s{S_T1}
v_lshlrev_b32 v{V_O8}, 3, v{V_LANE}
v_add_u32 v{V_O8}, 1024, v{V_O8}""")
    stamp(a, 41)
    a.e("s_barrier")
    stamp(a, 43)
    def qadv():
        for r in range(V_A, V_A+4): a.e(f"v_add_u32 v{r}, 12288, v{r}")
    Q0 = [itemA(j, V_D1, False) for j in range(12)]
    pend = prime(lq, Q0, 0)
    run_stream(a, lq, Q0, None, {}, 0, pend)
    qadv()
    a.e("s_waitcnt vmcnt(0)")
    stamp(a, 42)
    signal(a, 0, 6, 0, "A")
    a.e("s_barrier")
    def seqQ(par): return [itemA(j, V_D1 + 16*(1-par), False) for j in range(12)]
    pend = prime(lq, seqQ(0), 12)
    def sb_load_list(p0, p1):
        L = [f"s_add_u32 s{S_T2}, s{S_VG}, {p0*98304}"]
        for p in range(p0, p1):
            L.append(f"buffer_load_dwordx4 {vr(LAND+6*p,4)}, v{V_L16}, s[{SRD_W}:{SRD_W+3}], s{S_T2} offen {cfg.GET}")
            L.append(f"buffer_load_dwordx2 {vr(LAND+6*p+4,2)}, v{V_O8}, s[{SRD_W}:{SRD_W+3}], s{S_T2} offen {cfg.GET}")
            if p < p1 - 1: L.append(f"s_add_u32 s{S_T2}, s{S_T2}, 98304")
        return L
    def sb_sum_list():
        L = ["s_waitcnt vmcnt(8)"]
        for p in range(8):
            for c in range(3):
                cc = "0" if p == 0 else vr(V_SA+4*c, 4)
                L.append(f"v_mfma_f32_4x4x4_16b_bf16 {vr(V_SA+4*c,4)}, {vr(V_ID,2)}, {vr(LAND+6*p+2*c,2)}, {cc}")
        return L
    KL = [7, 8, 9, 205, V_KS4, 15, V_FL, V_T0+3]
    def ks_load_list():
        L = [f"v_lshlrev_b32 v{V_T0+2}, 2, v{V_LANE}", f"s_lshl_b32 s{S_T2}, s{S_WAVE}, 8", f"s_add_u32 s{S_T2}, s{S_T2}, {PART_SZ}"]
        for c in range(8):
            L.append(f"buffer_load_dword v{KL[c]}, v{V_T0+2}, s[{SRD_W}:{SRD_W+3}], s{S_T2} offen {cfg.GET}")
            if c < 7: L.append(f"s_add_u32 s{S_T2}, s{S_T2}, 98304")
        return L
    def ks_fin_list():
        K = KL[0]; K1 = KL[1]
        L = ["s_waitcnt vmcnt(0)"]
        for c in range(1, 8): L.append(f"v_add_f32 v{K}, v{K}, v{KL[c]}")
        L += [f"v_mov_b32 v{K1}, v{K}", "s_nop 1", f"v_permlane32_swap_b32 v{K}, v{K1}", "s_nop 1", f"v_add_f32 v{K}, v{K}, v{K1}",
              f"v_cvt_pk_bf16_f32 v{K}, v{K}, v{K}", f"v_and_b32 v{K1}, 31, v{V_LANE}", f"v_lshlrev_b32 v{K1}, 1, v{K1}",
              f"s_lshl_b32 s{S_T2}, s{S_WAVE}, 6", f"s_add_u32 s{S_T2}, s{S_T2}, {L_KS}", f"v_add_u32 v{K1}, s{S_T2}, v{K1}",
              lambda: lq.issue(f"ds_write_b16 v{K1}, v{K}", ("X",))]
        return L
    def sb_store(pub):
        a.e(f"buffer_store_dwordx4 {vr(LAND,4)}, v{V_L16}, s[{SRD_F}:{SRD_F+3}], s{S_VG} offen {pub}")
        a.e(f"buffer_store_dwordx2 {vr(LAND+4,2)}, v{V_O8}, s[{SRD_F}:{SRD_F+3}], s{S_VG} offen {pub}")
    def sigB():
        a.e("s_waitcnt vmcnt(0)")
        signal(a, 4, 6, 128, "B")
        lq.q = []
    for q in range(8):
        par = q % 2
        k0 = 12 if par == 0 else 0
        a.e("s_barrier")
        stamp(a, 44 + q)
        if 1 <= q <= 6:
            a.e(f"s_cmp_eq_u32 s{S_WAVE}, {q-1}\ns_cbranch_scc0 L_cpk_{q}")
            do_pickup(a)
            a.e("s_waitcnt lgkmcnt(0)")
            a.label(f"L_cpk_{q}")
        lq.issue(f"ds_read_b32 v{V_QN}, v{V_XN} offset:{q*128}", ("K", 0))
        side = {}
        el = exp_list(V_D1 + 16*par, lambda r: V_QN, V_PHI, cfg.QROUND)
        nlead = 16 if cfg.QROUND else 0
        el2 = el[:nlead] + [lambda: lq.wait(("K", 0))] + el[nlead:]
        spread(el2, 0 if cfg.QROUND else 1, 12, side)
        side.setdefault(11 - D, []).append(qadv)
        extra = []
        if q == cfg.QL1: extra = extra + sb_load_list(0, 4)
        if q == cfg.QL2: extra = extra + sb_load_list(4, 8) + ks_load_list()
        if q == cfg.QS: extra = extra + sb_sum_list()
        if q == cfg.QPB + 1: extra = extra + kv_load_list()
        if q == 7: extra = extra + kv_write_list()
        if extra: spread(extra, 0, 11, side)
        if q == cfg.QS + 1: side.setdefault(4, []).append(sigB)
        if q < 7:
            pend = run_stream(a, lq, seqQ(par), seqQ(1-par) if q < 6 else None, side, k0, pend)
        else:
            for p_ in range(12):
                for x in side.get(p_, []):
                    if x is qadv: continue
                    emit(a, x)
        stamp(a, 3 + 3*q, 3)
        for jj in range(2):
            lq.issue(f"ds_write_b128 v{V_PHW}, {vr(V_PHI+4*jj,4)} offset:{jj*1024}", ("W", jj))
        if q < 7: a.e(f"v_add_u32 v{V_PHW}, 12288, v{V_PHW}")
        if q == 0:
            a.e(f"s_cmp_lg_u32 s{S_WAVE}, 0\ns_cbranch_scc1 L_npa")
            poll_block(a, 0, "A")
            a.label("L_npa")
        if q == cfg.QS:
            for i in range(6): a.e(f"v_cvt_pk_bf16_f32 v{LAND+i}, v{V_SA+2*i}, v{V_SA+2*i+1}")
            for x in ks_fin_list(): emit(a, x)
            a.e(f"s_cmp_lg_u32 s{S_FAST}, 0\ns_cbranch_scc1 L_sbf")
            sb_store("sc1")
            a.e("s_branch L_sbd")
            a.label("L_sbf")
            sb_store("")
            a.label("L_sbd")
        if q == cfg.QPB:
            a.e(f"s_cmp_lg_u32 s{S_WAVE}, 0\ns_cbranch_scc1 L_npb")
            poll_block(a, 128, "B")
            a.label("L_npb")
        stamp(a, 4 + 3*q, 3)
        a.e("s_waitcnt lgkmcnt(0)")
        lq.q = []
    stamp(a, 52)

def fin(a):
    a.label("L_fin")
    a.e("s_barrier")
    stamp(a, 54)
    a.e(f"s_cmp_eq_u32 s{S_WAVE}, 7\ns_cbranch_scc0 L_fpk")
    a.e(f"s_mul_i32 s{S_T0}, s{S_WAVE}, 12288\nv_add_u32 v{V_PHR}, s{S_T0}, v{V_L16}")
    do_pickup(a)
    a.e("s_waitcnt lgkmcnt(0)")
    a.label("L_fpk")
    stamp(a, 56)
    if cfg.DIAG: a.e("s_memrealtime s[76:77]\ns_memtime s[80:81]\ns_waitcnt lgkmcnt(0)\ns_mov_b32 s92, s76\ns_mov_b32 s93, s80")
    p2b(a)
    stamp(a, 57)
    if cfg.STAMPS: a.e("s_waitcnt vmcnt(0)")
    stamp(a, 58)
    stamp_flush(a)
    if cfg.DIAG:
        a.e("s_waitcnt vmcnt(0)")
        a.e("s_memrealtime s[76:77]\ns_memtime s[80:81]\ns_waitcnt lgkmcnt(0)\ns_mov_b32 s94, s76\ns_mov_b32 s95, s80")
        a.e(f"""s_cmp_lg_u32 s{S_WAVE}, 0
s_cbranch_scc1 L_end
s_cmp_lg_u32 s{S_CHUNK}, 3
s_cbranch_scc1 L_end
s_cmp_ge_u32 s{S_HEAD}, 8
s_cbranch_scc1 L_end
s_sub_u32 s88, s88, s86
s_sub_u32 s90, s90, s86
s_sub_u32 s92, s92, s86
s_sub_u32 s94, s94, s86
s_sub_u32 s89, s89, s87
s_sub_u32 s91, s91, s87
s_sub_u32 s93, s93, s87
s_sub_u32 s95, s95, s87
s_mov_b32 s96, s88
s_cmp_eq_u32 s{S_HEAD}, 1
s_cselect_b32 s96, s90, s96
s_cmp_eq_u32 s{S_HEAD}, 2
s_cselect_b32 s96, s92, s96
s_cmp_eq_u32 s{S_HEAD}, 3
s_cselect_b32 s96, s94, s96
s_cmp_eq_u32 s{S_HEAD}, 4
s_cselect_b32 s96, s89, s96
s_cmp_eq_u32 s{S_HEAD}, 5
s_cselect_b32 s96, s91, s96
s_cmp_eq_u32 s{S_HEAD}, 6
s_cselect_b32 s96, s93, s96
s_cmp_eq_u32 s{S_HEAD}, 7
s_cselect_b32 s96, s95, s96
s_lshl_b32 s97, s{S_HEAD}, 3
v_mov_b32 v2, s97
v_mov_b32 v3, s96
s_mov_b32 exec_lo, 1
s_mov_b32 exec_hi, 0
global_store_dword v2, v3, s[{S_DBG}:{S_DBG+1}] offset:4 sc1""")

def p2b(a):
    lq = LQ(a)
    V_O = 112
    V_DEN = 144
    V_KF = 148
    V_DN = 160
    V_T = 176
    V_R = 184
    srd(a, SRD_O, S_OUT, S_ROWOFF, 98304)
    a.e(f"""v_and_b32 v2, 31, v{V_LANE}
v_lshrrev_b32 v3, 5, v{V_LANE}
v_lshlrev_b32 v5, 3, v3
v_add_u32 v5, {L_KS}, v5
v_lshlrev_b32 v6, 4, v{V_LANE}
s_lshl_b32 s{S_T0}, s{S_WAVE}, 12
s_add_u32 s{S_T1}, s{S_T0}, {L_XS}
v_lshlrev_b32 v7, 7, v2
v_lshl_add_u32 v7, v3, 3, v7
v_add_u32 v7, s{S_T1}, v7
v_and_b32 v9, 7, v2
v_lshrrev_b32 v10, 3, v{V_LANE}
v_and_b32 v11, 7, v{V_LANE}
v_xor_b32 v12, v11, v10
v_lshlrev_b32 v8, 7, v10
v_lshl_add_u32 v8, v12, 4, v8
v_add_u32 v8, s{S_T1}, v8
s_lshl_b32 s{S_T0}, s{S_WAVE}, 5
v_add_u32 v4, s{S_T0}, v10
v_mul_u32_u24 v4, 384, v4
v_lshl_add_u32 v4, v11, 4, v4
v_lshl_add_u32 v7, v9, 4, v7""")
    def itemF(f, O):
        def reads(b): return [f"ds_read_b128 {vr(b,4)}, v6 offset:{f*1024}"]
        def mfma(b):
            c = "0" if f == 0 else vr(O, 16)
            return f"v_mfma_f32_32x32x16_bf16 {vr(O,16)}, {vr(b,4)}, {vr(V_PQ+4*f,4)}, {c}"
        return Item(("F", f), reads, mfma)
    def itemFn(f):
        def reads(b): return [f"ds_read_b128 {vr(b,4)}, v6 offset:{12288+f*1024}"]
        return Item(("F", f), reads, None)
    seq = lambda O: [itemF(f, O) for f in range(12)]
    nxt = [itemFn(f) for f in range(12)]
    def kread(f):
        o = 8*(f >> 1) + 4*(f & 1)
        lq.issue(f"ds_read2_b64 {vr(V_KF+4*(f%3),4)}, v5 offset0:{o} offset1:{o+2}", ("K", f))
    kread(0); kread(1)
    pend = prime(lq, seq(V_O), 0)
    for g in range(1, 8):
        a.e(f"v_xor_b32 v{199+g}, {g<<4}, v7")
    WA = lambda g: 7 if g == 0 else 199 + g
    for f in range(12):
        lq.wait(("K", f))
        c = "0" if f == 0 else vr(V_DN, 16)
        a.e(f"v_mfma_f32_32x32x16_bf16 {vr(V_DN,16)}, {vr(V_KF+4*(f%3),4)}, {vr(V_PQ+4*f,4)}, {c}")
        if f + 2 < 12: kread(f + 2)
    pend = run_stream(a, lq, seq(V_O), nxt, {}, 0, pend)
    a.e(f"""v_add_u32 v6, 12288, v6
v_add_f32 v{V_DEN}, {EPS}, v{V_DN}
v_rcp_f32 v{V_DEN}, v{V_DEN}""")
    def epi(O, odd):
        L = []
        for r in range(16): L.append(f"v_mul_f32 v{O+r}, v{O+r}, v{V_DEN}")
        for r in range(8): L.append(f"v_cvt_pk_bf16_f32 v{V_T+r}, v{O+2*r}, v{O+2*r+1}")
        for q in range(4):
            L.append(lambda q=q: lq.issue(f"ds_write_b64 v{WA(4*odd+q)}, {vr(V_T+2*q,2)}", ("W",)))
        if odd:
            for G in range(4):
                L.append(lambda G=G: lq.issue(f"ds_read_b128 {vr(V_R+4*G,4)}, v8 offset:{G*1024}", ("R", G)))
            for G in range(4):
                def st(G=G):
                    lq.wait(("R", G))
                    a.e(f"buffer_store_dwordx4 {vr(V_R+4*G,4)}, v4, s[{SRD_O}:{SRD_O+3}], s{S_T} offen {cfg.OUT_NT}")
                    a.e(f"s_add_u32 s{S_T}, s{S_T}, 3072" if G < 3 else f"s_sub_u32 s{S_T}, s{S_T}, {3*3072 - 128}")
                L.append(st)
        return L
    a.e(f"s_mov_b32 s{S_T}, 0\ns_mov_b32 s{S_T3}, 0")
    a.label("L_p2b")
    side = spread(epi(V_O, 0), 1, 12)
    pend = run_stream(a, lq, seq(V_O+16), nxt, side, 12, pend)
    a.e("v_add_u32 v6, 12288, v6")
    a.e(f"s_cmp_eq_u32 s{S_T3}, 2\ns_cbranch_scc1 L_p2b_end")
    side = spread(epi(V_O+16, 1), 1, 12)
    pend = run_stream(a, lq, seq(V_O), nxt, side, 0, pend)
    a.e("v_add_u32 v6, 12288, v6")
    a.e(f"s_add_u32 s{S_T3}, s{S_T3}, 1\ns_branch L_p2b")
    a.label("L_p2b_end")
    a.e("s_nop 7")
    for x in epi(V_O+16, 1): emit(a, x)
    a.e("s_waitcnt lgkmcnt(0)")

def kernel(a):
    a.e(f"""s_cmp_ge_u32 s2, 256
s_cbranch_scc1 L_end
s_load_dwordx8 s[8:15], s[0:1], 0
s_load_dwordx4 s[16:19], s[0:1], 32
s_load_dwordx2 s[20:21], s[0:1], 48
v_lshrrev_b32 v1, 6, v0
s_and_b32 s{S_HEAD}, s2, 31
s_lshr_b32 s{S_CHUNK}, s2, 5
v_readfirstlane_b32 s{S_WAVE}, v1
v_and_b32 v{V_LANE}, 63, v0
s_mul_i32 s{S_ROWOFF}, s{S_HEAD}, 786432
s_mul_i32 s26, s{S_CHUNK}, 98304
s_add_u32 s{S_ROWOFF}, s{S_ROWOFF}, s26
s_mov_b32 s{S_C12K}, 12288
s_mov_b32 s{S_CM24K}, -24576
s_lshl_b32 s{S_T0}, s{S_WAVE}, 2
s_lshr_b32 s{S_WAVE}, {hex(cfg.ROLEMAP)}, s{S_T0}
s_and_b32 s{S_WAVE}, s{S_WAVE}, 15
s_cmp_ge_u32 s{S_WAVE}, 6
s_waitcnt lgkmcnt(0)""")
    if cfg.STAMPS:
        a.e("v_mov_b32 v255, 0\nv_mov_b32 v254, 0"); stamp(a, 0); a.e(f"s_cmp_ge_u32 s{S_WAVE}, 6")
    if cfg.DIAG:
        a.e("s_memrealtime s[76:77]\ns_memtime s[80:81]\ns_waitcnt lgkmcnt(0)\ns_mov_b32 s86, s76\ns_mov_b32 s87, s80")
        a.e(f"s_cmp_ge_u32 s{S_WAVE}, 6")
    a.e("s_cbranch_scc1 L_prod")
    compute(a)
    a.e("s_branch L_fin")
    producer(a)
    fin(a)
    a.label("L_end")
    a.e("s_endpgm")

HEADER = open("standalone__linear_kernel_performer__prompt.s.ref").read().split("; Override launch")[0]

def main(path):
    a = Asm(); a.inprod = False; kernel(a)
    body = a.finalize()
    txt = HEADER + f"; @launch grid=(256,1,1) block=(512,1,1) lds={LDS_BYTES}\n"
    txt += f""".amdgcn_target "amdgcn-amd-amdhsa--gfx950"
.text
.globl {NAME}
.p2align 8
.type {NAME},@function
{NAME}:
{body}.section .rodata,"a"
.p2align 6
.amdhsa_kernel {NAME}
  .amdhsa_next_free_vgpr 256
  .amdhsa_next_free_sgpr 102
  .amdhsa_accum_offset 256
  .amdhsa_group_segment_fixed_size 0
  .amdhsa_kernarg_size 56
  .amdhsa_user_sgpr_count 2
  .amdhsa_user_sgpr_kernarg_segment_ptr 1
  .amdhsa_system_sgpr_workgroup_id_x 1
  .amdhsa_float_denorm_mode_32 3
.end_amdhsa_kernel
"""
    open(path, "w").write(txt)

if __name__ == "__main__":
    for arg in sys.argv[2:]:
        k, v = arg.split("=")
        cur = getattr(cfg, k)
        setattr(cfg, k, (v == "1") if isinstance(cur, bool) else (int(v, 0) if isinstance(cur, int) else v))
    main(sys.argv[1])
```

```python
import struct, sys
from asmlib import Asm, vr, sr

def f32hex(x): return "0x%08x" % struct.unpack("<I", struct.pack("<f", x))[0]
SCALE = f32hex(192 ** -0.25)
LOG2E = f32hex(1.4426950408889634)
EPS = f32hex(0.75e-6)

L_XS = 0x18000
XS_R = 3
L_XN = L_XS + 3*12288
L_KS = L_XN + 2048
L_CNT = L_KS + 512
LDS_BYTES = L_CNT + 64
PART_SZ = 73728
KSP_SZ = 1536
WS_FIN = 0x1900000
WS_FLG = 0x1D00000
WS_STAMP = 0x4000000

NAME = "standalone__linear_kernel_performer__prompt_kernel"
class Cfg:
    ROLEMAP = 0x75436210
    NT = "nt"
    STAMPS = 0
    GET = "sc1"
    DEPTH = 7
    OUT_NT = "sc1"
    QROUND = False
    CODEPF = True
    WAIT2 = True
    FASTEN = False
    QL1 = 1; QL2 = 2; QS = 3; QPB = 5
    X_NOEXP = False
    START2 = True
    SCR_WS = False
    DIAG = False
    SIGA_EARLY = True
    DENQ7 = True
    PREF = True
    PREF_POL = ""
    PUB = "sc1"
cfg = Cfg()

S_Q, S_K, S_V, S_P = 8, 10, 12, 14
S_OUT, S_DBG, S_WS = 16, 18, 20
S_HEAD, S_CHUNK, S_WAVE, S_ROWOFF = 22, 23, 24, 25
S_FLG = 26
SRD_X, SRD_V, SRD_P, SRD_O, SRD_W, SRD_Q, SRD_F = 28, 32, 36, 40, 44, 64, 68
S_VG, S_CAND, S_NONCE, S_SLOT = 52, 53, 54, 55
S_T, S_T0, S_T1, S_T2, S_T3, S_VB, S_FAST, S_SPIN = 56, 57, 58, 59, 60, 61, 62, 63
S_DLT, S_XCC = 72, 73
S_C12K, S_CM24K = 82, 83

V_LANE = 1
V_A = 2
V_XN = 6
V_VE, V_VO = 7, 8
V_FL = 10
V_L16 = 11
V_KS4 = 12
V_PHR = 13
V_PHW = 14
V_P = 16
V_ACC = 64
V_D1 = 160
V_KN = 192
V_PHI = 208
V_FB = 216
V_L2E = 248
V_QN = 249
V_T0 = 250
V_ONES = 252
V_PQ = 64
V_RAW = 16
LAND = 112

class LQ:
    def __init__(self, a): self.a = a; self.q = []
    def issue(self, text, tag): self.a.e(text); self.q.append(tag)
    def wait(self, tag):
        if tag not in self.q: return
        i = len(self.q) - 1 - self.q[::-1].index(tag)
        n = len(self.q) - 1 - i
        assert n <= 15, (n, self.q)
        self.a.e(f"s_waitcnt lgkmcnt({n})")
        self.q = self.q[i+1:]

def _stamp(a, idx):
    a.e("s_memrealtime s[76:77]\ns_memtime s[80:81]\ns_waitcnt lgkmcnt(0)")
    a.e(f"s_mov_b32 m0, {idx}")
    a.e("v_writelane_b32 v255, s76, m0")
    a.e("v_writelane_b32 v254, s80, m0")
def stamp(a, idx, lvl=1):
    if cfg.STAMPS == 0 or (lvl > 1 and cfg.STAMPS != lvl and not (a.inprod and cfg.STAMPS > 1)): return
    _stamp(a, idx)
def stamp_idx(a, sreg, mul, add, lvl=2):
    if cfg.STAMPS == 0 or (lvl > 1 and cfg.STAMPS != lvl): return
    a.e(f"s_mul_i32 s78, s{sreg}, {mul}\ns_add_u32 s78, s78, {add}")
    _stamp(a, "s78")
def stamp_flush(a):
    if not cfg.STAMPS: return
    a.e(f"""s_mov_b64 exec, -1
s_lshl_b32 s72, s2, 3
s_add_u32 s72, s72, s{S_WAVE}
s_lshl_b32 s72, s72, 8
s_add_u32 s72, s72, {WS_STAMP}
s_add_u32 s74, s{S_WS}, s72
s_addc_u32 s75, s{S_WS+1}, 0
v_and_b32 v253, 63, v0
v_lshlrev_b32 v253, 2, v253
global_store_dword v253, v255, s[74:75]
s_add_u32 s74, s74, 0x100000
s_addc_u32 s75, s75, 0
global_store_dword v253, v254, s[74:75]""")

def srd(a, d, ptr, off, size):
    if off is None:
        a.e(f"s_mov_b32 s{d}, s{ptr}\ns_and_b32 s{d+1}, s{ptr+1}, 0xffff")
    else:
        a.e(f"s_add_u32 s{d}, s{ptr}, s{off}\ns_addc_u32 s{d+1}, s{ptr+1}, 0\ns_and_b32 s{d+1}, s{d+1}, 0xffff")
    a.e(f"s_mov_b32 s{d+2}, {size}\ns_mov_b32 s{d+3}, 0x20000")

def flag_base(a):
    a.e(f"""s_lshl_b32 s{S_T0}, s{S_HEAD}, 9
s_add_u32 s{S_T0}, s{S_T0}, {WS_FLG}
s_add_u32 s{S_FLG}, s{S_WS}, s{S_T0}
s_addc_u32 s{S_FLG+1}, s{S_WS+1}, 0""")

def exp_list(D, kn_of, phi, rnd=True):
    L = []
    if cfg.X_NOEXP: return L
    if rnd:
        for r in range(16): L.append(f"v_cvt_pk_bf16_f32 v{D+r}, 0, v{D+r}")
    for r in range(16): L.append(f"v_add_f32 v{D+r}, v{D+r}, v{kn_of(r)}")
    if rnd:
        for r in range(16): L.append(f"v_cvt_pk_bf16_f32 v{D+r}, 0, v{D+r}")
    for r in range(16): L.append(f"v_fma_f32 v{D+r}, v{D+r}, v{V_L2E}, -4.0")
    for r in range(16): L.append(f"v_exp_f32 v{D+r}, v{D+r}")
    for r in range(8): L.append(f"v_cvt_pk_bf16_f32 v{phi+r}, v{D+2*r}, v{D+2*r+1}")
    return L

def do_pickup(a):
    for f in range(12):
        a.e(f"ds_read_b128 {vr(V_PQ+4*f,4)}, v{V_PHR} offset:{f*1024}")

def kv_load_list():
    L = [f"s_mul_i32 s{S_T2}, s{S_WAVE}, 9216"]
    for i in range(9):
        L.append(f"buffer_load_dwordx4 {vr(LAND+4*i,4)}, v{V_L16}, s[{SRD_F}:{SRD_F+3}], s{S_T2} offen {cfg.GET}")
        if i < 8: L.append(f"s_add_u32 s{S_T2}, s{S_T2}, 1024")
    return L
def kv_write_list():
    L = [f"s_mul_i32 s{S_T1}, s{S_WAVE}, 9216", f"v_add_u32 v148, s{S_T1}, v{V_L16}"]
    for i in range(9):
        L.append(f"s_waitcnt vmcnt({8-i})")
        L.append(f"ds_write_b128 v148, {vr(LAND+4*i,4)} offset:{i*1024}")
    return L

P_SCHED = {
    "init": [("K",0), ("K",1), ("K",2), ("S",1), ("V",0), ("V",1)],
    ("c",0): [("K",3)], ("c",1): [("K",4)],
    ("b",2): [("S",3), ("V",2), ("K",5), ("V",3)],
    ("b",3): [("K",6), ("V",4)], ("b",4): [("K",7), ("V",5)], ("b",5): [("S",4), ("V",6), ("V",7)],
    ("b",6): [("Q",0), ("Q",1)], ("b",7): [("Q",2), ("Q",3)], ("b","7a"): [("Q",4), ("Q",5)], ("b","7b"): [("Q",6), ("Q",7)],
}

def producer(a):
    a.inprod = True
    if cfg.PREF:
        P_SCHED[("b",5)] = [("S",4), ("V",6), ("V",7), ("F",0)]
        P_SCHED[("b",6)] = [("Q",0), ("Q",1), ("F",1)]
        P_SCHED[("b",7)] = [("Q",2), ("Q",3), ("F",2)]
        P_SCHED[("b","7a")] = [("F",3), ("Q",4), ("Q",5)]
    if cfg.START2:
        P_SCHED["init"] = [("K",0), ("K",1), ("S",1)]
        P_SCHED[("c",0)] = [("K",2), ("V",0), ("K",3)]
        P_SCHED[("c",1)] = [("V",1), ("K",4)]
    TMP = 208; VSC = 224; VMK = 226; VDM = 227
    VS0, VS1, VS2, VS3 = 230, 232, 234, 236
    issued = []
    a.label("L_prod")
    srd(a, SRD_X, S_K, S_ROWOFF, 98304)
    a.e(f"""s_sub_u32 s{S_T0}, s{S_WAVE}, 6
s_lshl_b32 s{S_VG}, s{S_T0}, 1
s_lshl_b32 s{S_T0}, s{S_T0}, 4
v_lshrrev_b32 v7, 3, v{V_LANE}
v_and_b32 v8, 7, v{V_LANE}
v_add_u32 v9, s{S_T0}, v7
v_mul_u32_u24 v10, 384, v9
v_lshl_add_u32 v2, v8, 4, v10""")
    def sync_step(k):
        a.e(f"s_cmp_lg_u32 s{S_WAVE}, 6\ns_cbranch_scc1 L_sy{k}")
        if k == 1:
            flag_base(a)
            a.e(f"""v_lshlrev_b32 v{VS1}, 7, v7
v_lshl_add_u32 v{VS1}, v8, 2, v{VS1}
s_mov_b32 exec_lo, -1
s_mov_b32 exec_hi, 0
global_load_dword v{VS0}, v{VS1}, s[{S_FLG}:{S_FLG+1}] sc1
s_mov_b64 exec, -1""")
        elif k == 3:
            a.e(f"""v_subrev_u32 v{VS1}, 1, v{VS0}
v_mov_b32 v{VS1+1}, 1
v_lshlrev_b32 v{VS1+1}, v{VS1}, v{VS1+1}
v_mov_b32 v{VS2}, 0
v_mov_b32 v{VS2+1}, 0
v_cmp_gt_u32 vcc, 32, v{VS1}
s_nop 1
s_mov_b32 vcc_hi, 0
v_cndmask_b32 v{VS2}, 0, v{VS1+1}, vcc
v_subrev_u32 v{VS1}, 32, v{VS1}
v_cmp_gt_u32 vcc, 32, v{VS1}
s_nop 1
s_mov_b32 vcc_hi, 0
v_cndmask_b32 v{VS2+1}, 0, v{VS1+1}, vcc""")
            for r in (VS2, VS2+1):
                for sh in (1, 2, 4, 8):
                    a.e(f"v_or_b32_dpp v{r}, v{r}, v{r} row_shr:{sh} row_mask:0xf bank_mask:0xf")
            a.e(f"""v_readlane_b32 s74, v{VS2}, 15
v_readlane_b32 s{S_T0}, v{VS2}, 31
v_readlane_b32 s75, v{VS2+1}, 15
v_readlane_b32 s{S_T1}, v{VS2+1}, 31
s_or_b32 s74, s74, s{S_T0}
s_or_b32 s75, s75, s{S_T1}
s_ff0_i32_b64 s{S_CAND}, s[74:75]
s_add_u32 s{S_CAND}, s{S_CAND}, 1
s_getreg_b32 s{S_XCC}, hwreg(HW_REG_XCC_ID, 0, 4)
s_and_b32 s{S_XCC}, s{S_XCC}, 7
s_lshl_b32 s{S_XCC}, s{S_XCC}, 2
s_lshl_b32 s{S_T0}, 1, s{S_XCC}
v_mov_b32 v{VS2}, s{S_CAND}
v_mov_b32 v{VS2+1}, 0
s_lshl_b32 s{S_T1}, s{S_HEAD}, 3
v_mov_b32 v{VS3}, s{S_T1}
v_mov_b32 v{VS3+1}, s{S_T0}
s_mov_b32 exec_lo, 1
s_mov_b32 exec_hi, 0
global_atomic_cmpswap v{VS1}, v{VS3}, v[{VS2}:{VS2+1}], s[{S_DBG}:{S_DBG+1}] sc0 sc1
{"global_atomic_add v%d, v%d, s[%d:%d] offset:4 sc1" % (VS3, VS3+1, S_DBG, S_DBG+1) if cfg.FASTEN else "s_nop 0"}
s_mov_b64 exec, -1""")
        elif k == 4:
            a.e(f"""s_lshl_b32 s{S_T1}, s{S_HEAD}, 3
v_mov_b32 v{VS3}, s{S_T1}
s_mov_b32 exec_lo, 1
s_mov_b32 exec_hi, 0
global_load_dword v{VS0}, v{VS3}, s[{S_DBG}:{S_DBG+1}] offset:4 sc1
s_mov_b64 exec, -1""")
        elif k == 5:
            a.e(f"""v_readfirstlane_b32 s{S_NONCE}, v{VS1}
v_readfirstlane_b32 s{S_T0}, v{VS0}
s_cmp_eq_u32 s{S_NONCE}, 0
s_cselect_b32 s{S_NONCE}, s{S_CAND}, s{S_NONCE}
s_lshl_b32 s{S_T1}, 8, s{S_XCC}
s_cmp_eq_u32 s{S_T0}, s{S_T1}
s_cselect_b32 s{S_FAST}, {1 if cfg.FASTEN else 0}, 0
v_mov_b32 v{VS2}, s{S_NONCE}
v_mov_b32 v{VS2+1}, s{S_FAST}
v_mov_b32 v{VS3}, {L_CNT}
ds_write_b64 v{VS3}, v[{VS2}:{VS2+1}] offset:8
s_waitcnt lgkmcnt(0)""")
        a.label(f"L_sy{k}")
    def issue(tok):
        kind, t = tok
        if kind == "S":
            sync_step(t); return
        if kind == "F":
            issued.append(tok)
            if t == 0:
                SP = S_WS if cfg.SCR_WS else S_OUT
                srd(a, SRD_O, SP, S_ROWOFF, 98304)
                a.e(f"s_mul_i32 s{S_T1}, s{S_HEAD}, {PART_SZ}\ns_add_u32 s{S_T1}, s{S_T1}, {WS_FIN}")
                srd(a, SRD_F, S_WS, S_T1, PART_SZ)
                a.e(f"v_lshlrev_b32 v228, 4, v{V_LANE}\ns_sub_u32 s{S_SLOT}, s{S_WAVE}, 6\ns_mul_i32 s{S_SLOT}, s{S_SLOT}, 36864")
            if t < 3:
                for i in range(12):
                    a.e(f"s_add_u32 s{S_T1}, s{S_SLOT}, {(t*12+i)*1024}")
                    a.e(f"buffer_load_dwordx4 v[240:243], v228, s[{SRD_O}:{SRD_O+3}], s{S_T1} offen {cfg.PREF_POL}")
            else:
                a.e(f"s_mul_i32 s{S_T0}, s{S_CHUNK}, 9216")
                for i in range(12):
                    if i < 9:
                        a.e(f"s_add_u32 s{S_T1}, s{S_T0}, {i*1024}")
                        a.e(f"buffer_load_dwordx4 v[240:243], v228, s[{SRD_F}:{SRD_F+3}], s{S_T1} offen {cfg.PREF_POL}")
                    elif i < 11:
                        a.e(f"s_mov_b32 s{S_T1}, {PART_SZ + (i-9)*1024}")
                        a.e(f"buffer_load_dwordx4 v[240:243], v228, s[{SRD_O}:{SRD_O+3}], s{S_T1} offen {cfg.PREF_POL}")
            return
        issued.append(tok)
        if kind in "KQ":
            srdn = SRD_X if kind == "K" else SRD_Q
            a.e(f"s_mov_b32 s{S_T1}, {t*12288}")
            for g in range(2):
                for cb in range(3):
                    r = V_RAW + 24*t + 12*g + 4*cb
                    a.e(f"buffer_load_dwordx4 {vr(r,4)}, v2, s[{srdn}:{srdn+3}], s{S_T1} offen offset:{g*3072+cb*128} {cfg.NT}")
        else:
            for e in range(2):
                for cb in range(3):
                    a.e(f"s_add_u32 m0, s{S_VB}, {t*12288 + cb*4096 + e*1024}\ns_add_u32 s{S_T1}, s{S_VG}, {t*12288 + e*3072 + cb*128}")
                    a.e(f"buffer_load_dwordx4 v{VDM}, s[{SRD_V}:{SRD_V+3}], s{S_T1} offen {cfg.NT} lds")
    def wait_for(tok):
        wt = lambda t: (12 if t[1] < 3 else 11) if t[0] == "F" else 6
        n = sum(wt(t) for t in issued[issued.index(tok)+1:])
        n = min(n, 63)
        a.e(f"s_waitcnt vmcnt({n})")
    def ev(key):
        for tok in P_SCHED.get(key, []): issue(tok)
    ninit = 2 if cfg.START2 else 3
    for tok in P_SCHED["init"][:ninit]: issue(tok)
    srd(a, SRD_V, S_V, S_ROWOFF, 98304)
    a.e(f"""v_mul_u32_u24 v11, 384, v7
v_lshrrev_b32 v12, 2, v{V_LANE}
v_and_b32 v12, 4, v12
v_xor_b32 v12, v12, v8
v_lshl_add_u32 v{VDM}, v12, 4, v11
s_lshl_b32 s{S_VB}, s{S_VG}, 10
s_mul_i32 s{S_VG}, s{S_VG}, 3072""")
    for tok in P_SCHED["init"][ninit:]: issue(tok)
    if cfg.CODEPF:
        a.e(f"""s_getpc_b64 s[90:91]
L_pcbase:
s_sub_u32 s90, s90, L_pcbase - {NAME}
s_subb_u32 s91, s91, 0
s_lshr_b32 s{S_T0}, s2, 3
s_and_b32 s{S_T0}, s{S_T0}, 31
s_lshl_b32 s{S_T0}, s{S_T0}, 10
s_sub_u32 s{S_T1}, s{S_WAVE}, 6
s_lshl_b32 s{S_T1}, s{S_T1}, 15
s_add_u32 s{S_T0}, s{S_T0}, s{S_T1}
v_lshlrev_b32 v11, 4, v{V_LANE}
v_add_u32 v11, s{S_T0}, v11
v_min_u32 v11, L_end - {NAME} - 16, v11
global_load_dwordx4 v[240:243], v11, s[90:91]""")
    srd(a, SRD_Q, S_Q, S_ROWOFF, 98304)
    a.e(f"""v_lshrrev_b32 v11, 1, v7
v_xor_b32 v11, v11, v8
v_lshlrev_b32 v12, 4, v11
v_lshlrev_b32 v10, 7, v9
v_add_u32 v3, v10, v12
v_xor_b32 v4, 64, v3
v_add_u32 v4, 1024, v4
v_lshlrev_b32 v5, 2, v9
v_add_u32 v5, {L_XN}, v5
v_mov_b32 v{VSC}, {SCALE}
v_mov_b32 v{VSC+1}, {SCALE}
v_mov_b32 v{VMK}, 0xffff0000
v_add_u32 v13, {L_XS}, v3
v_add_u32 v14, {L_XS}, v4""")
    def convert(kind, t):
        T = t if kind == "K" else 8 + t
        b = V_RAW + 24*t
        wait_for((kind, t))
        stamp(a, 2 + 3*T, 2)
        if kind == "K": A0, off = 13, (t % 3)*12288
        else: A0, off = 3, 0
        for g in range(2):
            nreg = TMP + 8 + g
            a.e(f"v_mov_b32 v{nreg}, 0\nv_mov_b32 v{nreg+2}, 0")
            for c4 in range(3):
                xs_ = [b + 12*g + 4*c4 + i for i in range(4)]
                for i, x in enumerate(xs_): a.e(f"v_lshlrev_b32 v{TMP+2*i}, 16, v{x}")
                for i, x in enumerate(xs_): a.e(f"v_and_b32 v{TMP+2*i+1}, v{VMK}, v{x}")
                for i, x in enumerate(xs_): a.e(f"v_pk_mul_f32 v[{TMP+2*i}:{TMP+2*i+1}], v[{TMP+2*i}:{TMP+2*i+1}], v[{VSC}:{VSC+1}]")
                for i, x in enumerate(xs_): a.e(f"v_cvt_pk_bf16_f32 v{x}, v{TMP+2*i}, v{TMP+2*i+1}")
                for i, x in enumerate(xs_): a.e(f"v_dot2c_f32_bf16 v{nreg + 2*(i&1)}, v{x}, v{x}")
                a.e(f"ds_write_b128 v{A0+g}, {vr(b+12*g+4*c4,4)} offset:{off + c4*4096}")
            a.e(f"v_add_f32 v{nreg}, v{nreg}, v{nreg+2}")
        for perm in ("quad_perm:[1,0,3,2]", "quad_perm:[2,3,0,1]", "row_half_mirror"):
            for g in range(2):
                nreg = TMP + 8 + g
                a.e(f"v_add_f32_dpp v{nreg}, v{nreg}, v{nreg} {perm} row_mask:0xf bank_mask:0xf")
        for g in range(2): a.e(f"v_cvt_pk_bf16_f32 v{TMP+8+g}, 0, v{TMP+8+g}")
        for g in range(2): a.e(f"v_mul_f32 v{TMP+8+g}, -0.5, v{TMP+8+g}")
        for g in range(2): a.e(f"ds_write_b32 v5, v{TMP+8+g} offset:{T*128 + g*32}")
        if kind == "Q": a.e("v_add_u32 v3, 12288, v3\nv_add_u32 v4, 12288, v4")
        a.e("s_waitcnt lgkmcnt(0)")
        stamp(a, 3 + 3*T, 2)
    for T in range(8):
        convert("K", T)
        ev(("c", T))
        if T == 1: a.e("s_barrier")
        if T == 2: a.e("s_barrier")
        if T >= 2:
            wait_for(("V", T - 2))
            a.e("s_barrier")
        stamp(a, 4 + 3*T, 2)
        ev(("b", T))
    wait_for(("V", 6))
    sync_step(5)
    a.e("s_barrier")
    ev(("b", "7a"))
    convert("Q", 0)
    wait_for(("V", 7))
    a.e("s_barrier")
    ev(("b", "7b"))
    convert("Q", 1)
    convert("Q", 2)
    a.e("s_barrier\ns_barrier\ns_barrier")
    for t in range(3, 8):
        convert("Q", t)
        a.e("s_barrier")
        pass
    a.e(f"v_lshlrev_b32 v{V_L16}, 4, v{V_LANE}")
    a.e(f"s_mul_i32 s{S_T1}, s{S_HEAD}, {PART_SZ}\ns_add_u32 s{S_T1}, s{S_T1}, {WS_FIN}")
    srd(a, SRD_F, S_WS, S_T1, PART_SZ)
    assert cfg.QPB in (4, 5, 6)
    a.e("s_barrier")
    if cfg.QPB == 5:
        for x in kv_load_list(): a.e(x)
    a.e("s_barrier")
    if cfg.QPB == 6:
        for x in kv_load_list(): a.e(x)
    a.e(f"s_cmp_eq_u32 s{S_WAVE}, 6\ns_cbranch_scc0 L_pp6")
    a.e(f"s_mul_i32 s{S_T0}, s{S_WAVE}, 12288\nv_add_u32 v{V_PHR}, s{S_T0}, v{V_L16}")
    do_pickup(a)
    a.label("L_pp6")
    for x in kv_write_list(): a.e(x)
    a.e("s_waitcnt lgkmcnt(0)")
    a.e("s_branch L_fin")
    a.inprod = False

def FB(k): return V_FB + 4*(k % 8)
class Item:
    def __init__(self, tag, reads, mfma):
        self.tag = tag; self.reads = reads; self.mfma = mfma
def itemA(j, D, p1):
    def reads(b): return [f"ds_read_b128 {vr(b,4)}, v{V_A+(j&3)} offset:{(j>>2)*4096}"]
    def mfma(b):
        fp = vr(V_P+4*j, 4); c = "0" if j == 0 else vr(D, 16)
        return f"v_mfma_f32_32x32x16_bf16 {vr(D,16)}, {vr(b,4)}, {fp}, {c}" if p1 else f"v_mfma_f32_32x32x16_bf16 {vr(D,16)}, {fp}, {vr(b,4)}, {c}"
    return Item(("A", j), reads, mfma)
def itemB(idx):
    jj, dt = idx // 6, idx % 6
    base = V_VE if dt % 2 == 0 else V_VO
    def reads(b): return [f"ds_read_b64_tr_b16 {vr(b+2*u,2)}, v{base} offset:{(dt>>1)*4096+(16*jj+8*u)*128}" for u in range(2)]
    def mfma(b): return f"v_mfma_f32_32x32x16_bf16 {vr(V_ACC+16*dt,16)}, {vr(V_PHI+4*jj,4)}, {vr(b,4)}, {vr(V_ACC+16*dt,16)}"
    return Item(("B", idx), reads, mfma)
def issue_item(lq, it, k, uid):
    rs = it.reads(FB(k))
    for n, r in enumerate(rs): lq.issue(r, (uid, k, n))
    return (uid, k, len(rs)-1)
def emit(a, x):
    if callable(x): x()
    else: a.e(x)
def run_stream(a, lq, items, nxt, side, k0=0, pend=None, depth=None):
    D = depth or cfg.DEPTH
    n = len(items)
    pend = dict(pend or {})
    out = {}
    for k in range(n):
        if cfg.WAIT2 and k % 2 == 0 and k + 1 < n and (k + 1) in pend: lq.wait(pend[k + 1])
        lq.wait(pend[k])
        a.e(items[k].mfma(FB(k0 + k)))
        kk = k + D
        if kk < n:
            pend[kk] = issue_item(lq, items[kk], k0 + kk, "c")
        elif nxt is not None and kk - n < len(nxt):
            out[kk - n] = issue_item(lq, nxt[kk - n], k0 + kk, "n")
        for x in side.get(k, []): emit(a, x)
    return out
def prime(lq, items, k0=0, depth=None):
    D = depth or cfg.DEPTH
    return {k: issue_item(lq, items[k], k0 + k, "p") for k in range(D)}
def spread(L, lo, hi, side=None):
    side = side if side is not None else {}
    n = hi - lo
    k = 0
    for p in range(n):
        upto = (len(L) * (p + 1)) // n
        side.setdefault(lo + p, [])
        while k < upto:
            side[lo + p].append(L[k]); k += 1
    return side

def signal(a, lds_off, target, flag_off, name):
    a.e(f"""v_mov_b32 v{V_T0}, {L_CNT}
v_mov_b32 v{V_T0+1}, 1
s_mov_b32 exec_lo, 1
s_mov_b32 exec_hi, 0
ds_add_rtn_u32 v{V_T0+2}, v{V_T0}, v{V_T0+1} offset:{lds_off}
s_waitcnt lgkmcnt(0)
v_readfirstlane_b32 s{S_T0}, v{V_T0+2}
s_cmp_eq_u32 s{S_T0}, {target-1}
s_cbranch_scc0 L_sig_{name}
s_lshl_b32 s{S_T0}, s{S_CHUNK}, 2
v_mov_b32 v{V_T0}, s{S_T0}
v_mov_b32 v{V_T0+1}, s{S_NONCE}
s_cmp_lg_u32 s{S_FAST}, 0
s_cbranch_scc1 L_sigf_{name}
global_store_dword v{V_T0}, v{V_T0+1}, s[{S_FLG}:{S_FLG+1}] offset:{flag_off} sc1
s_branch L_sig_{name}""")
    a.label(f"L_sigf_{name}")
    a.e(f"global_store_dword v{V_T0}, v{V_T0+1}, s[{S_FLG}:{S_FLG+1}] offset:{flag_off+256}")
    a.label(f"L_sig_{name}")
    a.e("s_mov_b64 exec, -1")

def poll_block(a, flag_off, name):
    a.e(f"""s_mov_b32 s{S_SPIN}, 0
v_and_b32 v{V_T0}, 7, v{V_LANE}
v_lshlrev_b32 v{V_T0}, 2, v{V_T0}
v_and_b32 v{V_T0+1}, 8, v{V_LANE}
v_lshl_add_u32 v{V_T0}, v{V_T0+1}, 5, v{V_T0}""")
    a.label(f"L_poll_{name}")
    a.e(f"""s_mov_b32 exec_lo, 0xffff
s_mov_b32 exec_hi, 0
global_load_dword v{V_FL}, v{V_T0}, s[{S_FLG}:{S_FLG+1}] offset:{flag_off} sc1
s_mov_b64 exec, -1
s_waitcnt vmcnt(0)
v_cmp_eq_u32 vcc, s{S_NONCE}, v{V_FL}
s_nop 1
s_and_b32 s{S_T3}, vcc_lo, 0xffff
s_lshr_b32 s{S_T0}, s{S_T3}, 8
s_or_b32 s{S_T3}, s{S_T3}, s{S_T0}
s_and_b32 s{S_T3}, s{S_T3}, 0xff
s_cmp_eq_u32 s{S_T3}, 0xff
s_cbranch_scc1 L_polld_{name}
s_add_u32 s{S_SPIN}, s{S_SPIN}, 1
s_cmp_lt_u32 s{S_SPIN}, 0x80000
s_cbranch_scc1 L_poll_{name}""")
    a.label(f"L_polld_{name}")

def kn_reads(lq):
    def f():
        for q in range(4):
            lq.issue(f"ds_read_b128 {vr(V_KN+4*q,4)}, v{V_XN} offset:{q*32}", ("K", q))
        lq.a.e(f"v_add_u32 v{V_XN}, 128, v{V_XN}")
    return f
def xs_adv(a):
    def f():
        a.e(f"""s_add_u32 s{S_SLOT}, s{S_SLOT}, 1
s_cmp_eq_u32 s{S_SLOT}, {XS_R}
s_cselect_b32 s{S_DLT}, s{S_CM24K}, s{S_C12K}
s_cselect_b32 s{S_SLOT}, 0, s{S_SLOT}""")
        for r in range(V_A, V_A+4): a.e(f"v_add_u32 v{r}, s{S_DLT}, v{r}")
    return f
def xs_addr(a, base):
    a.e(f"""v_and_b32 v176, 31, v{V_LANE}
v_lshrrev_b32 v177, 5, v{V_LANE}
v_lshrrev_b32 v178, 1, v176
v_and_b32 v178, 7, v178
v_lshlrev_b32 v179, 7, v176
v_add_u32 v179, {base}, v179""")
    for k in range(4):
        a.e(f"""v_add_u32 v180, {2*k}, v177
v_xor_b32 v180, v180, v178
v_lshl_add_u32 v{V_A+k}, v180, 4, v179""")

def compute(a):
    lq = LQ(a)
    D = cfg.DEPTH
    a.e("s_setprio 3")
    a.e(f"""v_lshrrev_b32 v160, 3, v{V_LANE}
v_and_b32 v161, 7, v{V_LANE}
v_mul_u32_u24 v162, 384, v160
v_lshrrev_b32 v164, 1, v160
v_xor_b32 v164, v164, v161
v_lshl_add_u32 v164, v164, 4, v162
v_xor_b32 v165, 64, v164
s_mul_i32 s{S_T1}, s{S_WAVE}, 12288""")
    srd(a, SRD_P, S_P, S_T1, 12288)
    a.e(f"s_add_u32 s{S_T2}, s{S_T1}, 24576")
    for cb in range(3):
        for G in range(4):
            a.e(f"s_add_u32 m0, s{S_T2}, {cb*4096+G*1024}\ns_mov_b32 s{S_T3}, {G*3072+cb*128}")
            a.e(f"buffer_load_dwordx4 v{164+(G&1)}, s[{SRD_P}:{SRD_P+3}], s{S_T3} offen lds")
    a.e("s_setprio 0")
    xs_addr(a, L_XS)
    a.e(f"""v_lshlrev_b32 v{V_L16}, 4, v{V_LANE}
v_lshlrev_b32 v{V_XN}, 4, v177
v_add_u32 v{V_XN}, {L_XN}, v{V_XN}
v_and_b32 v178, 15, v{V_LANE}
v_lshrrev_b32 v179, 2, v178
v_lshl_add_u32 v179, v177, 2, v179
v_lshlrev_b32 v179, 7, v179
v_bfe_u32 v180, v{V_LANE}, 4, 1
v_lshl_add_u32 v179, v180, 5, v179
v_and_b32 v180, 3, v178
v_lshl_add_u32 v179, v180, 3, v179
v_bfe_u32 v180, v178, 3, 1
v_lshl_add_u32 v{V_VE}, v180, 6, v179
v_xor_b32 v180, 1, v180
v_lshl_add_u32 v{V_VO}, v180, 6, v179
v_add_u32 v{V_VE}, {2*12288}, v{V_VE}
v_add_u32 v{V_VO}, {2*12288}, v{V_VO}
v_mov_b32 v{V_L2E}, {LOG2E}
v_mov_b32 v181, {L_CNT}
v_mov_b32 v182, 0
v_mov_b32 v183, 0
ds_write_b64 v181, v[182:183]
v_mov_b32 v{V_ONES}, 0x3f803f80
v_mov_b32 v{V_ONES+1}, 0x3f803f80
s_mov_b32 s{S_SLOT}, 0""")
    for r in range(4): a.e(f"v_mov_b32 v{V_KS4+r}, 0")
    for r in range(96): a.e(f"v_mov_b32 v{V_ACC+r}, 0")
    for r in range(8): a.e(f"v_mov_b32 v{V_PHI+r}, 0")
    a.e(f"s_mul_i32 s{S_T1}, s{S_WAVE}, 12288\ns_add_u32 s{S_T1}, s{S_T1}, {24576 - L_XS}")
    for k in range(4): a.e(f"v_add_u32 v{184+k}, s{S_T1}, v{V_A+k}")
    flag_base(a)
    a.e("s_waitcnt vmcnt(0)")
    for j in range(12):
        a.e(f"ds_read_b128 {vr(V_P+4*j,4)}, v{184+(j&3)} offset:{(j>>2)*4096}")
    a.e("s_waitcnt lgkmcnt(0)")
    stamp(a, 1)
    a.e("s_barrier")
    stamp(a, 2)
    if cfg.DIAG: a.e("s_memrealtime s[76:77]\ns_memtime s[80:81]\ns_waitcnt lgkmcnt(0)\ns_mov_b32 s88, s76\ns_mov_b32 s89, s80")
    A0 = [itemA(j, V_D1, True) for j in range(12)]
    pend = prime(lq, A0, 0)
    run_stream(a, lq, A0, None, {}, 0, pend)
    xs_adv(a)()
    a.e("s_barrier")
    a.e(f"s_mov_b32 s{S_T}, 0")
    Bs = [itemB(i) for i in range(12)]
    ks4 = [f"v_mfma_f32_4x4x4_16b_bf16 {vr(V_KS4,4)}, {vr(V_ONES,2)}, {vr(V_PHI+2*r,2)}, {vr(V_KS4,4)}" for r in range(4)]
    def seqZ(par): return Bs + [itemA(j, V_D1 + 16*(1-par), True) for j in range(12)]
    KNPOS = 12
    kn_reads(lq)()
    pend = prime(lq, seqZ(0), 0)
    a.label("L_p1")
    for par in range(2):
        stamp_idx(a, S_T, 4, 3)
        a.e("s_barrier")
        stamp_idx(a, S_T, 4, 4)
        side = {}
        el = exp_list(V_D1 + 16*par, lambda r: V_KN + r, V_PHI)
        body, pack = (el[:-8], el[-8:]) if el else ([], [])
        el2 = body[:16] + [lambda: lq.wait(("K", 3))] + body[16:]
        for r in range(4): side.setdefault(1 + 3*r, []).append(ks4[r])
        spread(el2, 0, 22, side)
        spread(pack, 22, 24, side)
        if par == 0:
            side.setdefault(11 - D, []).extend([f"s_cmp_eq_u32 s{S_T}, 0", f"s_cselect_b32 s{S_T2}, s{S_CM24K}, s{S_C12K}", f"v_add_u32 v{V_VE}, s{S_T2}, v{V_VE}", f"v_add_u32 v{V_VO}, s{S_T2}, v{V_VO}"])
        else:
            side.setdefault(11 - D, []).extend([f"v_add_u32 v{V_VE}, 12288, v{V_VE}", f"v_add_u32 v{V_VO}, 12288, v{V_VO}"])
        side.setdefault(23 - D, []).append(xs_adv(a))
        side.setdefault(KNPOS, []).append(kn_reads(lq))
        pend = run_stream(a, lq, seqZ(par), seqZ(1-par), side, 0, pend)
        stamp_idx(a, S_T, 4, 6)
        a.e(f"s_add_u32 s{S_T}, s{S_T}, 1")
    a.e(f"s_cmp_lt_u32 s{S_T}, 8\ns_cbranch_scc1 L_p1")
    a.e(f"v_mov_b32 v{V_T0}, {L_CNT}")
    lq.issue(f"ds_read_b64 v[{V_T0+0}:{V_T0+1}], v{V_T0} offset:8", ("N",))
    SP = S_WS if cfg.SCR_WS else S_OUT
    srd(a, SRD_O, SP, S_ROWOFF, 98304)
    a.e(f"s_mul_i32 s{S_T1}, s{S_HEAD}, 786432")
    srd(a, SRD_W, SP, S_T1, 786432)
    a.e(f"s_mul_i32 s{S_T1}, s{S_HEAD}, {PART_SZ}\ns_add_u32 s{S_T1}, s{S_T1}, {WS_FIN}")
    srd(a, SRD_F, S_WS, S_T1, PART_SZ)
    lq.wait(("N",))
    a.e(f"v_readfirstlane_b32 s{S_NONCE}, v{V_T0}\nv_readfirstlane_b32 s{S_FAST}, v{V_T0+1}")
    a.e(f"s_lshl_b32 s{S_VG}, s{S_WAVE}, 11")
    qsave = list(lq.q); psave = dict(pend)
    def final_b(pub):
        lq.q = list(qsave)
        TB = V_D1
        def pubtile(dt):
            L = []
            for jj in range(2):
                tb = TB + 4*((dt*2+jj) % 8)
                for i in range(4):
                    L.append(f"v_cvt_pk_bf16_f32 v{tb+i}, v{V_ACC+16*dt+8*jj+2*i}, v{V_ACC+16*dt+8*jj+2*i+1}")
                L.append(f"buffer_store_dwordx4 {vr(tb,4)}, v{V_L16}, s[{SRD_O}:{SRD_O+3}], s{S_VG} offen offset:{jj*1024} {pub}")
            if dt < 5: L.append(f"s_add_u32 s{S_VG}, s{S_VG}, 12288")
            return L
        side = {}
        for r in range(4): side.setdefault(1 + 2*r, []).append(ks4[r])
        for dt in range(4): side.setdefault(8 + dt, []).extend(pubtile(dt))
        run_stream(a, lq, Bs, None, side, 0, psave)
        for dt in (4, 5):
            for x in pubtile(dt): a.e(x)
        a.e(f"v_lshlrev_b32 v{V_T0+1}, 2, v{V_LANE}\ns_lshl_b32 s{S_T2}, s{S_WAVE}, 8\ns_add_u32 s{S_T2}, s{S_T2}, {PART_SZ}")
        a.e(f"buffer_store_dword v{V_KS4}, v{V_T0+1}, s[{SRD_O}:{SRD_O+3}], s{S_T2} offen {pub}")
    a.e(f"s_cmp_lg_u32 s{S_FAST}, 0\ns_cbranch_scc1 L_pubf")
    final_b(cfg.PUB)
    a.e("s_branch L_pubd")
    a.label("L_pubf")
    final_b("")
    a.label("L_pubd")
    lq.q = []
    stamp(a, 40)
    if cfg.DIAG: a.e("s_memrealtime s[76:77]\ns_memtime s[80:81]\ns_waitcnt lgkmcnt(0)\ns_mov_b32 s90, s76\ns_mov_b32 s91, s80")
    xs_addr(a, 0)
    V_ID = 206; V_SA = 192; V_KL = 196 - 196 + 64 + 0
    V_O8 = 204
    V_KL = 240
    a.e(f"""v_lshlrev_b32 v{V_XN}, 2, v176
v_add_u32 v{V_XN}, {L_XN + 8*128}, v{V_XN}
s_lshl_b32 s{S_T0}, s{S_WAVE}, 11
v_add_u32 v{V_PHW}, s{S_T0}, v{V_L16}
s_mul_i32 s{S_T0}, s{S_WAVE}, 12288
v_add_u32 v{V_PHR}, s{S_T0}, v{V_L16}
v_and_b32 v{V_T0}, 3, v{V_LANE}
v_mov_b32 v{V_T0+1}, 0x3f80
v_mov_b32 v{V_T0+2}, 0x3f800000
v_cmp_eq_u32 vcc, 0, v{V_T0}
v_cndmask_b32 v{V_ID}, 0, v{V_T0+1}, vcc
v_cmp_eq_u32 vcc, 1, v{V_T0}
v_cndmask_b32 v{V_ID}, v{V_ID}, v{V_T0+2}, vcc
v_cmp_eq_u32 vcc, 2, v{V_T0}
v_cndmask_b32 v{V_ID+1}, 0, v{V_T0+1}, vcc
v_cmp_eq_u32 vcc, 3, v{V_T0}
v_cndmask_b32 v{V_ID+1}, v{V_ID+1}, v{V_T0+2}, vcc
s_mul_i32 s{S_T0}, s{S_CHUNK}, 9216
s_mul_i32 s{S_T1}, s{S_WAVE}, 1536
s_add_u32 s{S_VG}, s{S_T0}, s{S_T1}
v_lshlrev_b32 v{V_O8}, 3, v{V_LANE}
v_add_u32 v{V_O8}, 1024, v{V_O8}""")
    stamp(a, 41)
    if cfg.SIGA_EARLY:
        a.e("s_waitcnt vmcnt(0)")
        stamp(a, 42)
        signal(a, 0, 6, 0, "A")
    a.e("s_barrier")
    stamp(a, 43)
    def qadv():
        for r in range(V_A, V_A+4): a.e(f"v_add_u32 v{r}, 12288, v{r}")
    Q0 = [itemA(j, V_D1, False) for j in range(12)]
    pend = prime(lq, Q0, 0)
    run_stream(a, lq, Q0, None, {}, 0, pend)
    qadv()
    if not cfg.SIGA_EARLY:
        a.e("s_waitcnt vmcnt(0)")
        stamp(a, 42)
        signal(a, 0, 6, 0, "A")
    a.e("s_barrier")
    def seqQ(par): return [itemA(j, V_D1 + 16*(1-par), False) for j in range(12)]
    pend = prime(lq, seqQ(0), 12)
    def sb_load_list(p0, p1):
        L = [f"s_add_u32 s{S_T2}, s{S_VG}, {p0*98304}"]
        for p in range(p0, p1):
            L.append(f"buffer_load_dwordx4 {vr(LAND+6*p,4)}, v{V_L16}, s[{SRD_W}:{SRD_W+3}], s{S_T2} offen {cfg.GET}")
            L.append(f"buffer_load_dwordx2 {vr(LAND+6*p+4,2)}, v{V_O8}, s[{SRD_W}:{SRD_W+3}], s{S_T2} offen {cfg.GET}")
            if p < p1 - 1: L.append(f"s_add_u32 s{S_T2}, s{S_T2}, 98304")
        return L
    def sb_sum_list():
        L = ["s_waitcnt vmcnt(8)"]
        for p in range(8):
            for c in range(3):
                cc = "0" if p == 0 else vr(V_SA+4*c, 4)
                L.append(f"v_mfma_f32_4x4x4_16b_bf16 {vr(V_SA+4*c,4)}, {vr(V_ID,2)}, {vr(LAND+6*p+2*c,2)}, {cc}")
        return L
    KL = [7, 8, 9, 205, V_KS4, 15, V_FL, V_T0+3]
    def ks_load_list():
        L = [f"v_lshlrev_b32 v{V_T0+2}, 2, v{V_LANE}", f"s_lshl_b32 s{S_T2}, s{S_WAVE}, 8", f"s_add_u32 s{S_T2}, s{S_T2}, {PART_SZ}"]
        for c in range(8):
            L.append(f"buffer_load_dword v{KL[c]}, v{V_T0+2}, s[{SRD_W}:{SRD_W+3}], s{S_T2} offen {cfg.GET}")
            if c < 7: L.append(f"s_add_u32 s{S_T2}, s{S_T2}, 98304")
        return L
    def ks_fin_list():
        K = KL[0]; K1 = KL[1]
        L = ["s_waitcnt vmcnt(0)"]
        for c in range(1, 8): L.append(f"v_add_f32 v{K}, v{K}, v{KL[c]}")
        L += [f"v_mov_b32 v{K1}, v{K}", "s_nop 1", f"v_permlane32_swap_b32 v{K}, v{K1}", "s_nop 1", f"v_add_f32 v{K}, v{K}, v{K1}",
              f"v_cvt_pk_bf16_f32 v{K}, v{K}, v{K}", f"v_and_b32 v{K1}, 31, v{V_LANE}", f"v_lshlrev_b32 v{K1}, 1, v{K1}",
              f"s_lshl_b32 s{S_T2}, s{S_WAVE}, 6", f"s_add_u32 s{S_T2}, s{S_T2}, {L_KS}", f"v_add_u32 v{K1}, s{S_T2}, v{K1}",
              lambda: lq.issue(f"ds_write_b16 v{K1}, v{K}", ("X",))]
        return L
    def sb_store(pub):
        a.e(f"buffer_store_dwordx4 {vr(LAND,4)}, v{V_L16}, s[{SRD_F}:{SRD_F+3}], s{S_VG} offen {pub}")
        a.e(f"buffer_store_dwordx2 {vr(LAND+4,2)}, v{V_O8}, s[{SRD_F}:{SRD_F+3}], s{S_VG} offen {pub}")
    def sigB():
        a.e("s_waitcnt vmcnt(0)")
        signal(a, 4, 6, 128, "B")
        lq.q = []
    for q in range(8):
        par = q % 2
        k0 = 12 if par == 0 else 0
        a.e("s_barrier")
        stamp(a, 44 + q)
        if 1 <= q <= 6:
            a.e(f"s_cmp_eq_u32 s{S_WAVE}, {q-1}\ns_cbranch_scc0 L_cpk_{q}")
            do_pickup(a)
            a.e("s_waitcnt lgkmcnt(0)")
            a.label(f"L_cpk_{q}")
        lq.issue(f"ds_read_b32 v{V_QN}, v{V_XN} offset:{q*128}", ("K", 0))
        side = {}
        el = exp_list(V_D1 + 16*par, lambda r: V_QN, V_PHI, cfg.QROUND)
        nlead = 16 if cfg.QROUND else 0
        el2 = el[:nlead] + [lambda: lq.wait(("K", 0))] + el[nlead:]
        spread(el2, 0 if cfg.QROUND else 1, 12, side)
        side.setdefault(11 - D, []).append(qadv)
        extra = []
        if q == cfg.QL1: extra = extra + sb_load_list(0, 4)
        if q == cfg.QL2: extra = extra + sb_load_list(4, 8) + ks_load_list()
        if q == cfg.QS: extra = extra + sb_sum_list()
        if q == cfg.QPB + 1: extra = extra + kv_load_list()
        if q == 7: extra = extra + kv_write_list()
        if extra: spread(extra, 0, 11, side)
        if q == cfg.QS + 1: side.setdefault(4, []).append(sigB)
        if q < 7:
            pend = run_stream(a, lq, seqQ(par), seqQ(1-par) if q < 6 else None, side, k0, pend)
        elif cfg.DENQ7:
            a.e(f"v_lshrrev_b32 v{V_A}, 5, v{V_LANE}\nv_lshlrev_b32 v{V_A}, 3, v{V_A}\nv_add_u32 v{V_A}, {L_KS}, v{V_A}")
            def itemD(f):
                o = 8*(f >> 1) + 4*(f & 1)
                def reads(b): return [f"ds_read2_b64 {vr(b,4)}, v{V_A} offset0:{o} offset1:{o+2}"]
                def mfma(b):
                    c = "0" if f == 0 else vr(V_D1, 16)
                    return f"v_mfma_f32_32x32x16_bf16 {vr(V_D1,16)}, {vr(b,4)}, {vr(V_PQ+4*f,4)}, {c}"
                return Item(("D", f), reads, mfma)
            Ds = [itemD(f) for f in range(12)]
            side[11 - D] = [x for x in side.get(11 - D, []) if x is not qadv]
            pd = prime(lq, Ds, 0)
            run_stream(a, lq, Ds, None, side, 0, pd)
        else:
            for p_ in range(12):
                for x in side.get(p_, []):
                    if x is qadv: continue
                    emit(a, x)
        stamp(a, 3 + 3*q, 3)
        for jj in range(2):
            lq.issue(f"ds_write_b128 v{V_PHW}, {vr(V_PHI+4*jj,4)} offset:{jj*1024}", ("W", jj))
        if q < 7: a.e(f"v_add_u32 v{V_PHW}, 12288, v{V_PHW}")
        if q == 0:
            a.e(f"s_cmp_lg_u32 s{S_WAVE}, 0\ns_cbranch_scc1 L_npa")
            poll_block(a, 0, "A")
            a.label("L_npa")
        if q == cfg.QS:
            for i in range(6): a.e(f"v_cvt_pk_bf16_f32 v{LAND+i}, v{V_SA+2*i}, v{V_SA+2*i+1}")
            for x in ks_fin_list(): emit(a, x)
            a.e(f"s_cmp_lg_u32 s{S_FAST}, 0\ns_cbranch_scc1 L_sbf")
            sb_store(cfg.PUB)
            a.e("s_branch L_sbd")
            a.label("L_sbf")
            sb_store("")
            a.label("L_sbd")
        if q == cfg.QPB:
            a.e(f"s_cmp_lg_u32 s{S_WAVE}, 0\ns_cbranch_scc1 L_npb")
            poll_block(a, 128, "B")
            a.label("L_npb")
        stamp(a, 4 + 3*q, 3)
        a.e("s_waitcnt lgkmcnt(0)")
        lq.q = []
    if cfg.DENQ7:
        a.e(f"v_add_f32 v144, {EPS}, v{V_D1}\nv_rcp_f32 v144, v144")
    stamp(a, 52)

def fin(a):
    a.label("L_fin")
    a.e("s_barrier")
    stamp(a, 54)
    a.e(f"s_cmp_eq_u32 s{S_WAVE}, 7\ns_cbranch_scc0 L_fpk")
    a.e(f"s_mul_i32 s{S_T0}, s{S_WAVE}, 12288\nv_add_u32 v{V_PHR}, s{S_T0}, v{V_L16}")
    do_pickup(a)
    a.e("s_waitcnt lgkmcnt(0)")
    a.label("L_fpk")
    stamp(a, 56)
    if cfg.DIAG: a.e("s_memrealtime s[76:77]\ns_memtime s[80:81]\ns_waitcnt lgkmcnt(0)\ns_mov_b32 s92, s76\ns_mov_b32 s93, s80")
    p2b(a)
    stamp(a, 57)
    if cfg.STAMPS: a.e("s_waitcnt vmcnt(0)")
    stamp(a, 58)
    stamp_flush(a)
    if cfg.DIAG:
        a.e("s_waitcnt vmcnt(0)")
        a.e("s_memrealtime s[76:77]\ns_memtime s[80:81]\ns_waitcnt lgkmcnt(0)\ns_mov_b32 s94, s76\ns_mov_b32 s95, s80")
        a.e(f"""s_cmp_lg_u32 s{S_WAVE}, 0
s_cbranch_scc1 L_end
s_cmp_lg_u32 s{S_CHUNK}, 3
s_cbranch_scc1 L_end
s_cmp_ge_u32 s{S_HEAD}, 8
s_cbranch_scc1 L_end
s_sub_u32 s88, s88, s86
s_sub_u32 s90, s90, s86
s_sub_u32 s92, s92, s86
s_sub_u32 s94, s94, s86
s_sub_u32 s89, s89, s87
s_sub_u32 s91, s91, s87
s_sub_u32 s93, s93, s87
s_sub_u32 s95, s95, s87
s_mov_b32 s96, s88
s_cmp_eq_u32 s{S_HEAD}, 1
s_cselect_b32 s96, s90, s96
s_cmp_eq_u32 s{S_HEAD}, 2
s_cselect_b32 s96, s92, s96
s_cmp_eq_u32 s{S_HEAD}, 3
s_cselect_b32 s96, s94, s96
s_cmp_eq_u32 s{S_HEAD}, 4
s_cselect_b32 s96, s89, s96
s_cmp_eq_u32 s{S_HEAD}, 5
s_cselect_b32 s96, s91, s96
s_cmp_eq_u32 s{S_HEAD}, 6
s_cselect_b32 s96, s93, s96
s_cmp_eq_u32 s{S_HEAD}, 7
s_cselect_b32 s96, s95, s96
s_lshl_b32 s97, s{S_HEAD}, 3
v_mov_b32 v2, s97
v_mov_b32 v3, s96
s_mov_b32 exec_lo, 1
s_mov_b32 exec_hi, 0
global_store_dword v2, v3, s[{S_DBG}:{S_DBG+1}] offset:4 sc1""")

def p2b(a):
    lq = LQ(a)
    V_O = 112
    V_DEN = 144
    V_KF = 148
    V_DN = 160
    V_T = 176
    V_R = 184
    srd(a, SRD_O, S_OUT, S_ROWOFF, 98304)
    a.e(f"""v_and_b32 v2, 31, v{V_LANE}
v_lshrrev_b32 v3, 5, v{V_LANE}
v_lshlrev_b32 v5, 3, v3
v_add_u32 v5, {L_KS}, v5
v_lshlrev_b32 v6, 4, v{V_LANE}
s_lshl_b32 s{S_T0}, s{S_WAVE}, 12
s_add_u32 s{S_T1}, s{S_T0}, {L_XS}
v_lshlrev_b32 v7, 7, v2
v_lshl_add_u32 v7, v3, 3, v7
v_add_u32 v7, s{S_T1}, v7
v_and_b32 v9, 7, v2
v_lshrrev_b32 v10, 3, v{V_LANE}
v_and_b32 v11, 7, v{V_LANE}
v_xor_b32 v12, v11, v10
v_lshlrev_b32 v8, 7, v10
v_lshl_add_u32 v8, v12, 4, v8
v_add_u32 v8, s{S_T1}, v8
s_lshl_b32 s{S_T0}, s{S_WAVE}, 5
v_add_u32 v4, s{S_T0}, v10
v_mul_u32_u24 v4, 384, v4
v_lshl_add_u32 v4, v11, 4, v4
v_lshl_add_u32 v7, v9, 4, v7""")
    def itemF(f, O):
        def reads(b): return [f"ds_read_b128 {vr(b,4)}, v6 offset:{f*1024}"]
        def mfma(b):
            c = "0" if f == 0 else vr(O, 16)
            return f"v_mfma_f32_32x32x16_bf16 {vr(O,16)}, {vr(b,4)}, {vr(V_PQ+4*f,4)}, {c}"
        return Item(("F", f), reads, mfma)
    def itemFn(f):
        def reads(b): return [f"ds_read_b128 {vr(b,4)}, v6 offset:{12288+f*1024}"]
        return Item(("F", f), reads, None)
    seq = lambda O: [itemF(f, O) for f in range(12)]
    nxt = [itemFn(f) for f in range(12)]
    def kread(f):
        o = 8*(f >> 1) + 4*(f & 1)
        lq.issue(f"ds_read2_b64 {vr(V_KF+4*(f%3),4)}, v5 offset0:{o} offset1:{o+2}", ("K", f))
    kread(0); kread(1)
    pend = prime(lq, seq(V_O), 0)
    for g in range(1, 8):
        a.e(f"v_xor_b32 v{199+g}, {g<<4}, v7")
    WA = lambda g: 7 if g == 0 else 199 + g
    if cfg.DENQ7: a.e(f"s_cmp_lt_u32 s{S_WAVE}, 6\ns_cbranch_scc1 L_noden")
    for f in range(12):
        lq.wait(("K", f))
        c = "0" if f == 0 else vr(V_DN, 16)
        a.e(f"v_mfma_f32_32x32x16_bf16 {vr(V_DN,16)}, {vr(V_KF+4*(f%3),4)}, {vr(V_PQ+4*f,4)}, {c}")
        if f + 2 < 12: kread(f + 2)
    a.e(f"s_nop 7\ns_nop 3\nv_add_f32 v{V_DEN}, {EPS}, v{V_DN}\nv_rcp_f32 v{V_DEN}, v{V_DEN}")
    if cfg.DENQ7:
        a.label("L_noden")
        a.e("s_waitcnt lgkmcnt(0)")
        lq.q = []
    pend = run_stream(a, lq, seq(V_O), nxt, {}, 0, pend)
    a.e(f"""v_add_u32 v6, 12288, v6""")
    def epi(O, odd):
        L = []
        for r in range(16): L.append(f"v_mul_f32 v{O+r}, v{O+r}, v{V_DEN}")
        for r in range(8): L.append(f"v_cvt_pk_bf16_f32 v{V_T+r}, v{O+2*r}, v{O+2*r+1}")
        for q in range(4):
            L.append(lambda q=q: lq.issue(f"ds_write_b64 v{WA(4*odd+q)}, {vr(V_T+2*q,2)}", ("W",)))
        if odd:
            for G in range(4):
                L.append(lambda G=G: lq.issue(f"ds_read_b128 {vr(V_R+4*G,4)}, v8 offset:{G*1024}", ("R", G)))
        return L
    def stores(pair):
        L = []
        for G in range(4):
            def st(G=G):
                lq.wait(("R", G))
                a.e(f"s_mov_b32 s{S_T}, {pair*128 + G*3072}")
                a.e(f"buffer_store_dwordx4 {vr(V_R+4*G,4)}, v4, s[{SRD_O}:{SRD_O+3}], s{S_T} offen {cfg.OUT_NT}")
            L.append(st)
        return L
    for dt in range(1, 6):
        O = V_O + 16*(dt % 2); Oprev = V_O + 16*((dt-1) % 2)
        side = {}
        if dt in (3, 5): spread(stores((dt-3)//2), 2, 6, side)
        spread(epi(Oprev, (dt-1) % 2), 1, 12, side)
        pend = run_stream(a, lq, seq(O), nxt if dt < 5 else None, side, 12*(dt % 2), pend)
        if dt < 5: a.e("v_add_u32 v6, 12288, v6")
    for x in epi(V_O+16, 1): emit(a, x)
    for x in stores(2): emit(a, x)
    a.e("s_waitcnt lgkmcnt(0)")

def kernel(a):
    a.e(f"""s_cmp_ge_u32 s2, 256
s_cbranch_scc1 L_end
s_load_dwordx8 s[8:15], s[0:1], 0
s_load_dwordx4 s[16:19], s[0:1], 32
s_load_dwordx2 s[20:21], s[0:1], 48
v_lshrrev_b32 v1, 6, v0
s_and_b32 s{S_HEAD}, s2, 31
s_lshr_b32 s{S_CHUNK}, s2, 5
v_readfirstlane_b32 s{S_WAVE}, v1
v_and_b32 v{V_LANE}, 63, v0
s_mul_i32 s{S_ROWOFF}, s{S_HEAD}, 786432
s_mul_i32 s26, s{S_CHUNK}, 98304
s_add_u32 s{S_ROWOFF}, s{S_ROWOFF}, s26
s_mov_b32 s{S_C12K}, 12288
s_mov_b32 s{S_CM24K}, -24576
s_lshl_b32 s{S_T0}, s{S_WAVE}, 2
s_lshr_b32 s{S_WAVE}, {hex(cfg.ROLEMAP)}, s{S_T0}
s_and_b32 s{S_WAVE}, s{S_WAVE}, 15
s_cmp_ge_u32 s{S_WAVE}, 6
s_waitcnt lgkmcnt(0)""")
    if cfg.STAMPS:
        a.e("v_mov_b32 v255, 0\nv_mov_b32 v254, 0"); stamp(a, 0); a.e(f"s_cmp_ge_u32 s{S_WAVE}, 6")
    if cfg.DIAG:
        a.e("s_memrealtime s[76:77]\ns_memtime s[80:81]\ns_waitcnt lgkmcnt(0)\ns_mov_b32 s86, s76\ns_mov_b32 s87, s80")
        a.e(f"s_cmp_ge_u32 s{S_WAVE}, 6")
    a.e("s_cbranch_scc1 L_prod")
    compute(a)
    a.e("s_branch L_fin")
    producer(a)
    fin(a)
    a.label("L_end")
    a.e("s_endpgm")

HEADER = open("standalone__linear_kernel_performer__prompt.s.ref").read().split("; Override launch")[0]

def main(path):
    a = Asm(); a.inprod = False; kernel(a)
    body = a.finalize()
    txt = HEADER + f"; @launch grid=(256,1,1) block=(512,1,1) lds={LDS_BYTES}\n"
    txt += f""".amdgcn_target "amdgcn-amd-amdhsa--gfx950"
.text
.globl {NAME}
.p2align 8
.type {NAME},@function
{NAME}:
{body}.section .rodata,"a"
.p2align 6
.amdhsa_kernel {NAME}
  .amdhsa_next_free_vgpr 256
  .amdhsa_next_free_sgpr 102
  .amdhsa_accum_offset 256
  .amdhsa_group_segment_fixed_size 0
  .amdhsa_kernarg_size 56
  .amdhsa_user_sgpr_count 2
  .amdhsa_user_sgpr_kernarg_segment_ptr 1
  .amdhsa_system_sgpr_workgroup_id_x 1
  .amdhsa_float_denorm_mode_32 3
.end_amdhsa_kernel
"""
    open(path, "w").write(txt)

if __name__ == "__main__":
    for arg in sys.argv[2:]:
        k, v = arg.split("=")
        cur = getattr(cfg, k)
        setattr(cfg, k, (v == "1") if isinstance(cur, bool) else (int(v, 0) if isinstance(cur, int) else v))
    main(sys.argv[1])
```

```python
import struct, sys
from asmlib import Asm, vr, sr

def f32hex(x): return "0x%08x" % struct.unpack("<I", struct.pack("<f", x))[0]
SCALE = f32hex(192 ** -0.25)
LOG2E = f32hex(1.4426950408889634)
EPS = f32hex(0.75e-6)

L_XS = 0x18000
XS_R = 3
L_XN = L_XS + 3*12288
L_KS = L_XN + 2048
L_CNT = L_KS + 512
LDS_BYTES = L_CNT + 64
PART_SZ = 73728
KSP_SZ = 1536
WS_FIN = 0x1900000
WS_FLG = 0x1D00000
WS_STAMP = 0x4000000

NAME = "standalone__linear_kernel_performer__prompt_kernel"
class Cfg:
    ROLEMAP = 0x75436210
    NT = "nt"
    STAMPS = 0
    GET = "sc1"
    DEPTH = 7
    OUT_NT = "sc1"
    QROUND = False
    CODEPF = True
    WAIT2 = True
    FASTEN = False
    QL1 = 1; QL2 = 2; QS = 3; QPB = 5
    X_NOEXP = False
    START2 = True
    SCR_WS = False
    DIAG = False
    SIGA_EARLY = True
    DENQ7 = True
    PREF = False
    TOUCH = False
    PREF_POL = ""
    PUB = "sc1"
cfg = Cfg()

S_Q, S_K, S_V, S_P = 8, 10, 12, 14
S_OUT, S_DBG, S_WS = 16, 18, 20
S_HEAD, S_CHUNK, S_WAVE, S_ROWOFF = 22, 23, 24, 25
S_FLG = 26
SRD_X, SRD_V, SRD_P, SRD_O, SRD_W, SRD_Q, SRD_F = 28, 32, 36, 40, 44, 64, 68
S_VG, S_CAND, S_NONCE, S_SLOT = 52, 53, 54, 55
S_T, S_T0, S_T1, S_T2, S_T3, S_VB, S_FAST, S_SPIN = 56, 57, 58, 59, 60, 61, 62, 63
S_DLT, S_XCC = 72, 73
S_C12K, S_CM24K = 82, 83

V_LANE = 1
V_A = 2
V_XN = 6
V_VE, V_VO = 7, 8
V_FL = 10
V_L16 = 11
V_KS4 = 12
V_PHR = 13
V_PHW = 14
V_P = 16
V_ACC = 64
V_D1 = 160
V_KN = 192
V_PHI = 208
V_FB = 216
V_L2E = 248
V_QN = 249
V_T0 = 250
V_ONES = 252
V_PQ = 64
V_RAW = 16
LAND = 112

class LQ:
    def __init__(self, a): self.a = a; self.q = []
    def issue(self, text, tag): self.a.e(text); self.q.append(tag)
    def wait(self, tag):
        if tag not in self.q: return
        i = len(self.q) - 1 - self.q[::-1].index(tag)
        n = len(self.q) - 1 - i
        assert n <= 15, (n, self.q)
        self.a.e(f"s_waitcnt lgkmcnt({n})")
        self.q = self.q[i+1:]

def _stamp(a, idx):
    a.e("s_memrealtime s[76:77]\ns_memtime s[80:81]\ns_waitcnt lgkmcnt(0)")
    a.e(f"s_mov_b32 m0, {idx}")
    a.e("v_writelane_b32 v255, s76, m0")
    a.e("v_writelane_b32 v254, s80, m0")
def stamp(a, idx, lvl=1):
    if cfg.STAMPS == 0 or (lvl > 1 and cfg.STAMPS != lvl and not (a.inprod and cfg.STAMPS > 1)): return
    _stamp(a, idx)
def stamp_idx(a, sreg, mul, add, lvl=2):
    if cfg.STAMPS == 0 or (lvl > 1 and cfg.STAMPS != lvl): return
    a.e(f"s_mul_i32 s78, s{sreg}, {mul}\ns_add_u32 s78, s78, {add}")
    _stamp(a, "s78")
def stamp_flush(a):
    if not cfg.STAMPS: return
    a.e(f"""s_mov_b64 exec, -1
s_lshl_b32 s72, s2, 3
s_add_u32 s72, s72, s{S_WAVE}
s_lshl_b32 s72, s72, 8
s_add_u32 s72, s72, {WS_STAMP}
s_add_u32 s74, s{S_WS}, s72
s_addc_u32 s75, s{S_WS+1}, 0
v_and_b32 v253, 63, v0
v_lshlrev_b32 v253, 2, v253
global_store_dword v253, v255, s[74:75]
s_add_u32 s74, s74, 0x100000
s_addc_u32 s75, s75, 0
global_store_dword v253, v254, s[74:75]""")

def srd(a, d, ptr, off, size):
    if off is None:
        a.e(f"s_mov_b32 s{d}, s{ptr}\ns_and_b32 s{d+1}, s{ptr+1}, 0xffff")
    else:
        a.e(f"s_add_u32 s{d}, s{ptr}, s{off}\ns_addc_u32 s{d+1}, s{ptr+1}, 0\ns_and_b32 s{d+1}, s{d+1}, 0xffff")
    a.e(f"s_mov_b32 s{d+2}, {size}\ns_mov_b32 s{d+3}, 0x20000")

def flag_base(a):
    a.e(f"""s_lshl_b32 s{S_T0}, s{S_HEAD}, 9
s_add_u32 s{S_T0}, s{S_T0}, {WS_FLG}
s_add_u32 s{S_FLG}, s{S_WS}, s{S_T0}
s_addc_u32 s{S_FLG+1}, s{S_WS+1}, 0""")

def exp_list(D, kn_of, phi, rnd=True):
    L = []
    if cfg.X_NOEXP: return L
    if rnd:
        for r in range(16): L.append(f"v_cvt_pk_bf16_f32 v{D+r}, 0, v{D+r}")
    for r in range(16): L.append(f"v_add_f32 v{D+r}, v{D+r}, v{kn_of(r)}")
    if rnd:
        for r in range(16): L.append(f"v_cvt_pk_bf16_f32 v{D+r}, 0, v{D+r}")
    for r in range(16): L.append(f"v_fma_f32 v{D+r}, v{D+r}, v{V_L2E}, -4.0")
    for r in range(16): L.append(f"v_exp_f32 v{D+r}, v{D+r}")
    for r in range(8): L.append(f"v_cvt_pk_bf16_f32 v{phi+r}, v{D+2*r}, v{D+2*r+1}")
    return L

def do_pickup(a):
    for f in range(12):
        a.e(f"ds_read_b128 {vr(V_PQ+4*f,4)}, v{V_PHR} offset:{f*1024}")

def kv_load_list():
    L = [f"s_mul_i32 s{S_T2}, s{S_WAVE}, 9216"]
    for i in range(9):
        L.append(f"buffer_load_dwordx4 {vr(LAND+4*i,4)}, v{V_L16}, s[{SRD_F}:{SRD_F+3}], s{S_T2} offen {cfg.GET}")
        if i < 8: L.append(f"s_add_u32 s{S_T2}, s{S_T2}, 1024")
    return L
def kv_write_list():
    L = [f"s_mul_i32 s{S_T1}, s{S_WAVE}, 9216", f"v_add_u32 v148, s{S_T1}, v{V_L16}"]
    for i in range(9):
        L.append(f"s_waitcnt vmcnt({8-i})")
        L.append(f"ds_write_b128 v148, {vr(LAND+4*i,4)} offset:{i*1024}")
    return L

P_SCHED = {
    "init": [("K",0), ("K",1), ("K",2), ("S",1), ("V",0), ("V",1)],
    ("c",0): [("K",3)], ("c",1): [("K",4)],
    ("b",2): [("S",3), ("V",2), ("K",5), ("V",3)],
    ("b",3): [("K",6), ("V",4)], ("b",4): [("K",7), ("V",5)], ("b",5): [("S",4), ("V",6), ("V",7)],
    ("b",6): [("Q",0), ("Q",1)], ("b",7): [("Q",2), ("Q",3)], ("b","7a"): [("Q",4), ("Q",5)], ("b","7b"): [("Q",6), ("Q",7)],
}

def producer(a):
    a.inprod = True
    if cfg.PREF:
        P_SCHED[("b",5)] = [("S",4), ("V",6), ("V",7), ("F",0)]
        P_SCHED[("b",6)] = [("Q",0), ("Q",1), ("F",1)]
        P_SCHED[("b",7)] = [("Q",2), ("Q",3), ("F",2)]
        P_SCHED[("b","7a")] = [("F",3), ("Q",4), ("Q",5)]
    if cfg.TOUCH:
        P_SCHED[("b",3)] = P_SCHED[("b",3)] + [("T",0)]
    if cfg.START2:
        P_SCHED["init"] = [("K",0), ("K",1), ("S",1)]
        P_SCHED[("c",0)] = [("K",2), ("V",0), ("K",3)]
        P_SCHED[("c",1)] = [("V",1), ("K",4)]
    TMP = 208; VSC = 224; VMK = 226; VDM = 227
    VS0, VS1, VS2, VS3 = 230, 232, 234, 236
    issued = []
    a.label("L_prod")
    srd(a, SRD_X, S_K, S_ROWOFF, 98304)
    a.e(f"""s_sub_u32 s{S_T0}, s{S_WAVE}, 6
s_lshl_b32 s{S_VG}, s{S_T0}, 1
s_lshl_b32 s{S_T0}, s{S_T0}, 4
v_lshrrev_b32 v7, 3, v{V_LANE}
v_and_b32 v8, 7, v{V_LANE}
v_add_u32 v9, s{S_T0}, v7
v_mul_u32_u24 v10, 384, v9
v_lshl_add_u32 v2, v8, 4, v10""")
    def sync_step(k):
        a.e(f"s_cmp_lg_u32 s{S_WAVE}, 6\ns_cbranch_scc1 L_sy{k}")
        if k == 1:
            flag_base(a)
            a.e(f"""v_lshlrev_b32 v{VS1}, 7, v7
v_lshl_add_u32 v{VS1}, v8, 2, v{VS1}
s_mov_b32 exec_lo, -1
s_mov_b32 exec_hi, 0
global_load_dword v{VS0}, v{VS1}, s[{S_FLG}:{S_FLG+1}] sc1
s_mov_b64 exec, -1""")
        elif k == 3:
            a.e(f"""v_subrev_u32 v{VS1}, 1, v{VS0}
v_mov_b32 v{VS1+1}, 1
v_lshlrev_b32 v{VS1+1}, v{VS1}, v{VS1+1}
v_mov_b32 v{VS2}, 0
v_mov_b32 v{VS2+1}, 0
v_cmp_gt_u32 vcc, 32, v{VS1}
s_nop 1
s_mov_b32 vcc_hi, 0
v_cndmask_b32 v{VS2}, 0, v{VS1+1}, vcc
v_subrev_u32 v{VS1}, 32, v{VS1}
v_cmp_gt_u32 vcc, 32, v{VS1}
s_nop 1
s_mov_b32 vcc_hi, 0
v_cndmask_b32 v{VS2+1}, 0, v{VS1+1}, vcc""")
            for r in (VS2, VS2+1):
                for sh in (1, 2, 4, 8):
                    a.e(f"v_or_b32_dpp v{r}, v{r}, v{r} row_shr:{sh} row_mask:0xf bank_mask:0xf")
            a.e(f"""v_readlane_b32 s74, v{VS2}, 15
v_readlane_b32 s{S_T0}, v{VS2}, 31
v_readlane_b32 s75, v{VS2+1}, 15
v_readlane_b32 s{S_T1}, v{VS2+1}, 31
s_or_b32 s74, s74, s{S_T0}
s_or_b32 s75, s75, s{S_T1}
s_ff0_i32_b64 s{S_CAND}, s[74:75]
s_add_u32 s{S_CAND}, s{S_CAND}, 1
s_getreg_b32 s{S_XCC}, hwreg(HW_REG_XCC_ID, 0, 4)
s_and_b32 s{S_XCC}, s{S_XCC}, 7
s_lshl_b32 s{S_XCC}, s{S_XCC}, 2
s_lshl_b32 s{S_T0}, 1, s{S_XCC}
v_mov_b32 v{VS2}, s{S_CAND}
v_mov_b32 v{VS2+1}, 0
s_lshl_b32 s{S_T1}, s{S_HEAD}, 3
v_mov_b32 v{VS3}, s{S_T1}
v_mov_b32 v{VS3+1}, s{S_T0}
s_mov_b32 exec_lo, 1
s_mov_b32 exec_hi, 0
global_atomic_cmpswap v{VS1}, v{VS3}, v[{VS2}:{VS2+1}], s[{S_DBG}:{S_DBG+1}] sc0 sc1
{"global_atomic_add v%d, v%d, s[%d:%d] offset:4 sc1" % (VS3, VS3+1, S_DBG, S_DBG+1) if cfg.FASTEN else "s_nop 0"}
s_mov_b64 exec, -1""")
        elif k == 4:
            a.e(f"""s_lshl_b32 s{S_T1}, s{S_HEAD}, 3
v_mov_b32 v{VS3}, s{S_T1}
s_mov_b32 exec_lo, 1
s_mov_b32 exec_hi, 0
global_load_dword v{VS0}, v{VS3}, s[{S_DBG}:{S_DBG+1}] offset:4 sc1
s_mov_b64 exec, -1""")
        elif k == 5:
            a.e(f"""v_readfirstlane_b32 s{S_NONCE}, v{VS1}
v_readfirstlane_b32 s{S_T0}, v{VS0}
s_cmp_eq_u32 s{S_NONCE}, 0
s_cselect_b32 s{S_NONCE}, s{S_CAND}, s{S_NONCE}
s_lshl_b32 s{S_T1}, 8, s{S_XCC}
s_cmp_eq_u32 s{S_T0}, s{S_T1}
s_cselect_b32 s{S_FAST}, {1 if cfg.FASTEN else 0}, 0
v_mov_b32 v{VS2}, s{S_NONCE}
v_mov_b32 v{VS2+1}, s{S_FAST}
v_mov_b32 v{VS3}, {L_CNT}
ds_write_b64 v{VS3}, v[{VS2}:{VS2+1}] offset:8
s_waitcnt lgkmcnt(0)""")
        a.label(f"L_sy{k}")
    def issue(tok):
        kind, t = tok
        if kind == "S":
            sync_step(t); return
        if kind == "T":
            issued.append(tok)
            srd(a, SRD_O, S_OUT, S_ROWOFF, 98304)
            a.e(f"s_mul_i32 s{S_T1}, s{S_HEAD}, {PART_SZ}\ns_add_u32 s{S_T1}, s{S_T1}, {WS_FIN}")
            srd(a, SRD_F, S_WS, S_T1, PART_SZ)
            a.e(f"v_mov_b32 v228, 0")
            for off in (0, 32768, 65536, 98304-64):
                a.e(f"s_mov_b32 s{S_T1}, {off}\nbuffer_load_dword v240, v228, s[{SRD_O}:{SRD_O+3}], s{S_T1} offen nt")
            for off in (0, PART_SZ-64):
                a.e(f"s_mov_b32 s{S_T1}, {off}\nbuffer_load_dword v240, v228, s[{SRD_F}:{SRD_F+3}], s{S_T1} offen nt")
            return
        if kind == "F":
            issued.append(tok)
            if t == 0:
                SP = S_WS if cfg.SCR_WS else S_OUT
                srd(a, SRD_O, SP, S_ROWOFF, 98304)
                a.e(f"s_mul_i32 s{S_T1}, s{S_HEAD}, {PART_SZ}\ns_add_u32 s{S_T1}, s{S_T1}, {WS_FIN}")
                srd(a, SRD_F, S_WS, S_T1, PART_SZ)
                a.e(f"v_lshlrev_b32 v228, 4, v{V_LANE}\ns_sub_u32 s{S_SLOT}, s{S_WAVE}, 6\ns_mul_i32 s{S_SLOT}, s{S_SLOT}, 36864")
            if t < 3:
                for i in range(12):
                    a.e(f"s_add_u32 s{S_T1}, s{S_SLOT}, {(t*12+i)*1024}")
                    a.e(f"buffer_load_dwordx4 v[240:243], v228, s[{SRD_O}:{SRD_O+3}], s{S_T1} offen {cfg.PREF_POL}")
            else:
                a.e(f"s_mul_i32 s{S_T0}, s{S_CHUNK}, 9216")
                for i in range(12):
                    if i < 9:
                        a.e(f"s_add_u32 s{S_T1}, s{S_T0}, {i*1024}")
                        a.e(f"buffer_load_dwordx4 v[240:243], v228, s[{SRD_F}:{SRD_F+3}], s{S_T1} offen {cfg.PREF_POL}")
                    elif i < 11:
                        a.e(f"s_mov_b32 s{S_T1}, {PART_SZ + (i-9)*1024}")
                        a.e(f"buffer_load_dwordx4 v[240:243], v228, s[{SRD_O}:{SRD_O+3}], s{S_T1} offen {cfg.PREF_POL}")
            return
        issued.append(tok)
        if kind in "KQ":
            srdn = SRD_X if kind == "K" else SRD_Q
            a.e(f"s_mov_b32 s{S_T1}, {t*12288}")
            for g in range(2):
                for cb in range(3):
                    r = V_RAW + 24*t + 12*g + 4*cb
                    a.e(f"buffer_load_dwordx4 {vr(r,4)}, v2, s[{srdn}:{srdn+3}], s{S_T1} offen offset:{g*3072+cb*128} {cfg.NT}")
        else:
            for e in range(2):
                for cb in range(3):
                    a.e(f"s_add_u32 m0, s{S_VB}, {t*12288 + cb*4096 + e*1024}\ns_add_u32 s{S_T1}, s{S_VG}, {t*12288 + e*3072 + cb*128}")
                    a.e(f"buffer_load_dwordx4 v{VDM}, s[{SRD_V}:{SRD_V+3}], s{S_T1} offen {cfg.NT} lds")
    def wait_for(tok):
        wt = lambda t: (12 if t[1] < 3 else 11) if t[0] == "F" else 6
        n = sum(wt(t) for t in issued[issued.index(tok)+1:])
        n = min(n, 63)
        a.e(f"s_waitcnt vmcnt({n})")
    def ev(key):
        for tok in P_SCHED.get(key, []): issue(tok)
    ninit = 2 if cfg.START2 else 3
    for tok in P_SCHED["init"][:ninit]: issue(tok)
    srd(a, SRD_V, S_V, S_ROWOFF, 98304)
    a.e(f"""v_mul_u32_u24 v11, 384, v7
v_lshrrev_b32 v12, 2, v{V_LANE}
v_and_b32 v12, 4, v12
v_xor_b32 v12, v12, v8
v_lshl_add_u32 v{VDM}, v12, 4, v11
s_lshl_b32 s{S_VB}, s{S_VG}, 10
s_mul_i32 s{S_VG}, s{S_VG}, 3072""")
    for tok in P_SCHED["init"][ninit:]: issue(tok)
    if cfg.CODEPF:
        a.e(f"""s_getpc_b64 s[90:91]
L_pcbase:
s_sub_u32 s90, s90, L_pcbase - {NAME}
s_subb_u32 s91, s91, 0
s_lshr_b32 s{S_T0}, s2, 3
s_and_b32 s{S_T0}, s{S_T0}, 31
s_lshl_b32 s{S_T0}, s{S_T0}, 10
s_sub_u32 s{S_T1}, s{S_WAVE}, 6
s_lshl_b32 s{S_T1}, s{S_T1}, 15
s_add_u32 s{S_T0}, s{S_T0}, s{S_T1}
v_lshlrev_b32 v11, 4, v{V_LANE}
v_add_u32 v11, s{S_T0}, v11
v_min_u32 v11, L_end - {NAME} - 16, v11
global_load_dwordx4 v[240:243], v11, s[90:91]""")
    srd(a, SRD_Q, S_Q, S_ROWOFF, 98304)
    a.e(f"""v_lshrrev_b32 v11, 1, v7
v_xor_b32 v11, v11, v8
v_lshlrev_b32 v12, 4, v11
v_lshlrev_b32 v10, 7, v9
v_add_u32 v3, v10, v12
v_xor_b32 v4, 64, v3
v_add_u32 v4, 1024, v4
v_lshlrev_b32 v5, 2, v9
v_add_u32 v5, {L_XN}, v5
v_mov_b32 v{VSC}, {SCALE}
v_mov_b32 v{VSC+1}, {SCALE}
v_mov_b32 v{VMK}, 0xffff0000
v_add_u32 v13, {L_XS}, v3
v_add_u32 v14, {L_XS}, v4""")
    def convert(kind, t):
        T = t if kind == "K" else 8 + t
        b = V_RAW + 24*t
        wait_for((kind, t))
        stamp(a, 2 + 3*T, 2)
        if kind == "K": A0, off = 13, (t % 3)*12288
        else: A0, off = 3, 0
        for g in range(2):
            nreg = TMP + 8 + g
            a.e(f"v_mov_b32 v{nreg}, 0\nv_mov_b32 v{nreg+2}, 0")
            for c4 in range(3):
                xs_ = [b + 12*g + 4*c4 + i for i in range(4)]
                for i, x in enumerate(xs_): a.e(f"v_lshlrev_b32 v{TMP+2*i}, 16, v{x}")
                for i, x in enumerate(xs_): a.e(f"v_and_b32 v{TMP+2*i+1}, v{VMK}, v{x}")
                for i, x in enumerate(xs_): a.e(f"v_pk_mul_f32 v[{TMP+2*i}:{TMP+2*i+1}], v[{TMP+2*i}:{TMP+2*i+1}], v[{VSC}:{VSC+1}]")
                for i, x in enumerate(xs_): a.e(f"v_cvt_pk_bf16_f32 v{x}, v{TMP+2*i}, v{TMP+2*i+1}")
                for i, x in enumerate(xs_): a.e(f"v_dot2c_f32_bf16 v{nreg + 2*(i&1)}, v{x}, v{x}")
                a.e(f"ds_write_b128 v{A0+g}, {vr(b+12*g+4*c4,4)} offset:{off + c4*4096}")
            a.e(f"v_add_f32 v{nreg}, v{nreg}, v{nreg+2}")
        for perm in ("quad_perm:[1,0,3,2]", "quad_perm:[2,3,0,1]", "row_half_mirror"):
            for g in range(2):
                nreg = TMP + 8 + g
                a.e(f"v_add_f32_dpp v{nreg}, v{nreg}, v{nreg} {perm} row_mask:0xf bank_mask:0xf")
        for g in range(2): a.e(f"v_cvt_pk_bf16_f32 v{TMP+8+g}, 0, v{TMP+8+g}")
        for g in range(2): a.e(f"v_mul_f32 v{TMP+8+g}, -0.5, v{TMP+8+g}")
        for g in range(2): a.e(f"ds_write_b32 v5, v{TMP+8+g} offset:{T*128 + g*32}")
        if kind == "Q": a.e("v_add_u32 v3, 12288, v3\nv_add_u32 v4, 12288, v4")
        a.e("s_waitcnt lgkmcnt(0)")
        stamp(a, 3 + 3*T, 2)
    for T in range(8):
        convert("K", T)
        ev(("c", T))
        if T == 1: a.e("s_barrier")
        if T == 2: a.e("s_barrier")
        if T >= 2:
            wait_for(("V", T - 2))
            a.e("s_barrier")
        stamp(a, 4 + 3*T, 2)
        ev(("b", T))
    wait_for(("V", 6))
    sync_step(5)
    a.e("s_barrier")
    ev(("b", "7a"))
    convert("Q", 0)
    wait_for(("V", 7))
    a.e("s_barrier")
    ev(("b", "7b"))
    convert("Q", 1)
    convert("Q", 2)
    a.e("s_barrier\ns_barrier\ns_barrier")
    for t in range(3, 8):
        convert("Q", t)
        a.e("s_barrier")
        pass
    a.e(f"v_lshlrev_b32 v{V_L16}, 4, v{V_LANE}")
    a.e(f"s_mul_i32 s{S_T1}, s{S_HEAD}, {PART_SZ}\ns_add_u32 s{S_T1}, s{S_T1}, {WS_FIN}")
    srd(a, SRD_F, S_WS, S_T1, PART_SZ)
    assert cfg.QPB in (4, 5, 6)
    a.e("s_barrier")
    if cfg.QPB <= 5:
        for x in kv_load_list(): a.e(x)
    a.e("s_barrier")
    if cfg.QPB == 6:
        for x in kv_load_list(): a.e(x)
    a.e(f"s_cmp_eq_u32 s{S_WAVE}, 6\ns_cbranch_scc0 L_pp6")
    a.e(f"s_mul_i32 s{S_T0}, s{S_WAVE}, 12288\nv_add_u32 v{V_PHR}, s{S_T0}, v{V_L16}")
    do_pickup(a)
    a.label("L_pp6")
    for x in kv_write_list(): a.e(x)
    a.e("s_waitcnt lgkmcnt(0)")
    a.e("s_branch L_fin")
    a.inprod = False

def FB(k): return V_FB + 4*(k % 8)
class Item:
    def __init__(self, tag, reads, mfma):
        self.tag = tag; self.reads = reads; self.mfma = mfma
def itemA(j, D, p1):
    def reads(b): return [f"ds_read_b128 {vr(b,4)}, v{V_A+(j&3)} offset:{(j>>2)*4096}"]
    def mfma(b):
        fp = vr(V_P+4*j, 4); c = "0" if j == 0 else vr(D, 16)
        return f"v_mfma_f32_32x32x16_bf16 {vr(D,16)}, {vr(b,4)}, {fp}, {c}" if p1 else f"v_mfma_f32_32x32x16_bf16 {vr(D,16)}, {fp}, {vr(b,4)}, {c}"
    return Item(("A", j), reads, mfma)
def itemB(idx):
    jj, dt = idx // 6, idx % 6
    base = V_VE if dt % 2 == 0 else V_VO
    def reads(b): return [f"ds_read_b64_tr_b16 {vr(b+2*u,2)}, v{base} offset:{(dt>>1)*4096+(16*jj+8*u)*128}" for u in range(2)]
    def mfma(b): return f"v_mfma_f32_32x32x16_bf16 {vr(V_ACC+16*dt,16)}, {vr(V_PHI+4*jj,4)}, {vr(b,4)}, {vr(V_ACC+16*dt,16)}"
    return Item(("B", idx), reads, mfma)
def issue_item(lq, it, k, uid):
    rs = it.reads(FB(k))
    for n, r in enumerate(rs): lq.issue(r, (uid, k, n))
    return (uid, k, len(rs)-1)
def emit(a, x):
    if callable(x): x()
    else: a.e(x)
def run_stream(a, lq, items, nxt, side, k0=0, pend=None, depth=None):
    D = depth or cfg.DEPTH
    n = len(items)
    pend = dict(pend or {})
    out = {}
    for k in range(n):
        if cfg.WAIT2 and k % 2 == 0 and k + 1 < n and (k + 1) in pend: lq.wait(pend[k + 1])
        lq.wait(pend[k])
        a.e(items[k].mfma(FB(k0 + k)))
        kk = k + D
        if kk < n:
            pend[kk] = issue_item(lq, items[kk], k0 + kk, "c")
        elif nxt is not None and kk - n < len(nxt):
            out[kk - n] = issue_item(lq, nxt[kk - n], k0 + kk, "n")
        for x in side.get(k, []): emit(a, x)
    return out
def prime(lq, items, k0=0, depth=None):
    D = depth or cfg.DEPTH
    return {k: issue_item(lq, items[k], k0 + k, "p") for k in range(D)}
def spread(L, lo, hi, side=None):
    side = side if side is not None else {}
    n = hi - lo
    k = 0
    for p in range(n):
        upto = (len(L) * (p + 1)) // n
        side.setdefault(lo + p, [])
        while k < upto:
            side[lo + p].append(L[k]); k += 1
    return side

def signal(a, lds_off, target, flag_off, name):
    a.e(f"""v_mov_b32 v{V_T0}, {L_CNT}
v_mov_b32 v{V_T0+1}, 1
s_mov_b32 exec_lo, 1
s_mov_b32 exec_hi, 0
ds_add_rtn_u32 v{V_T0+2}, v{V_T0}, v{V_T0+1} offset:{lds_off}
s_waitcnt lgkmcnt(0)
v_readfirstlane_b32 s{S_T0}, v{V_T0+2}
s_cmp_eq_u32 s{S_T0}, {target-1}
s_cbranch_scc0 L_sig_{name}
s_lshl_b32 s{S_T0}, s{S_CHUNK}, 2
v_mov_b32 v{V_T0}, s{S_T0}
v_mov_b32 v{V_T0+1}, s{S_NONCE}
s_cmp_lg_u32 s{S_FAST}, 0
s_cbranch_scc1 L_sigf_{name}
global_store_dword v{V_T0}, v{V_T0+1}, s[{S_FLG}:{S_FLG+1}] offset:{flag_off} sc1
s_branch L_sig_{name}""")
    a.label(f"L_sigf_{name}")
    a.e(f"global_store_dword v{V_T0}, v{V_T0+1}, s[{S_FLG}:{S_FLG+1}] offset:{flag_off+256}")
    a.label(f"L_sig_{name}")
    a.e("s_mov_b64 exec, -1")

def poll_block(a, flag_off, name):
    a.e(f"""s_mov_b32 s{S_SPIN}, 0
v_and_b32 v{V_T0}, 7, v{V_LANE}
v_lshlrev_b32 v{V_T0}, 2, v{V_T0}
v_and_b32 v{V_T0+1}, 8, v{V_LANE}
v_lshl_add_u32 v{V_T0}, v{V_T0+1}, 5, v{V_T0}""")
    a.label(f"L_poll_{name}")
    a.e(f"""s_mov_b32 exec_lo, 0xffff
s_mov_b32 exec_hi, 0
global_load_dword v{V_FL}, v{V_T0}, s[{S_FLG}:{S_FLG+1}] offset:{flag_off} sc1
s_mov_b64 exec, -1
s_waitcnt vmcnt(0)
v_cmp_eq_u32 vcc, s{S_NONCE}, v{V_FL}
s_nop 1
s_and_b32 s{S_T3}, vcc_lo, 0xffff
s_lshr_b32 s{S_T0}, s{S_T3}, 8
s_or_b32 s{S_T3}, s{S_T3}, s{S_T0}
s_and_b32 s{S_T3}, s{S_T3}, 0xff
s_cmp_eq_u32 s{S_T3}, 0xff
s_cbranch_scc1 L_polld_{name}
s_add_u32 s{S_SPIN}, s{S_SPIN}, 1
s_cmp_lt_u32 s{S_SPIN}, 0x80000
s_cbranch_scc1 L_poll_{name}""")
    a.label(f"L_polld_{name}")

def kn_reads(lq):
    def f():
        for q in range(4):
            lq.issue(f"ds_read_b128 {vr(V_KN+4*q,4)}, v{V_XN} offset:{q*32}", ("K", q))
        lq.a.e(f"v_add_u32 v{V_XN}, 128, v{V_XN}")
    return f
def xs_adv(a):
    def f():
        a.e(f"""s_add_u32 s{S_SLOT}, s{S_SLOT}, 1
s_cmp_eq_u32 s{S_SLOT}, {XS_R}
s_cselect_b32 s{S_DLT}, s{S_CM24K}, s{S_C12K}
s_cselect_b32 s{S_SLOT}, 0, s{S_SLOT}""")
        for r in range(V_A, V_A+4): a.e(f"v_add_u32 v{r}, s{S_DLT}, v{r}")
    return f
def xs_addr(a, base):
    a.e(f"""v_and_b32 v176, 31, v{V_LANE}
v_lshrrev_b32 v177, 5, v{V_LANE}
v_lshrrev_b32 v178, 1, v176
v_and_b32 v178, 7, v178
v_lshlrev_b32 v179, 7, v176
v_add_u32 v179, {base}, v179""")
    for k in range(4):
        a.e(f"""v_add_u32 v180, {2*k}, v177
v_xor_b32 v180, v180, v178
v_lshl_add_u32 v{V_A+k}, v180, 4, v179""")

def compute(a):
    lq = LQ(a)
    D = cfg.DEPTH
    a.e("s_setprio 3")
    a.e(f"""v_lshrrev_b32 v160, 3, v{V_LANE}
v_and_b32 v161, 7, v{V_LANE}
v_mul_u32_u24 v162, 384, v160
v_lshrrev_b32 v164, 1, v160
v_xor_b32 v164, v164, v161
v_lshl_add_u32 v164, v164, 4, v162
v_xor_b32 v165, 64, v164
s_mul_i32 s{S_T1}, s{S_WAVE}, 12288""")
    srd(a, SRD_P, S_P, S_T1, 12288)
    a.e(f"s_add_u32 s{S_T2}, s{S_T1}, 24576")
    for cb in range(3):
        for G in range(4):
            a.e(f"s_add_u32 m0, s{S_T2}, {cb*4096+G*1024}\ns_mov_b32 s{S_T3}, {G*3072+cb*128}")
            a.e(f"buffer_load_dwordx4 v{164+(G&1)}, s[{SRD_P}:{SRD_P+3}], s{S_T3} offen lds")
    a.e("s_setprio 0")
    xs_addr(a, L_XS)
    a.e(f"""v_lshlrev_b32 v{V_L16}, 4, v{V_LANE}
v_lshlrev_b32 v{V_XN}, 4, v177
v_add_u32 v{V_XN}, {L_XN}, v{V_XN}
v_and_b32 v178, 15, v{V_LANE}
v_lshrrev_b32 v179, 2, v178
v_lshl_add_u32 v179, v177, 2, v179
v_lshlrev_b32 v179, 7, v179
v_bfe_u32 v180, v{V_LANE}, 4, 1
v_lshl_add_u32 v179, v180, 5, v179
v_and_b32 v180, 3, v178
v_lshl_add_u32 v179, v180, 3, v179
v_bfe_u32 v180, v178, 3, 1
v_lshl_add_u32 v{V_VE}, v180, 6, v179
v_xor_b32 v180, 1, v180
v_lshl_add_u32 v{V_VO}, v180, 6, v179
v_add_u32 v{V_VE}, {2*12288}, v{V_VE}
v_add_u32 v{V_VO}, {2*12288}, v{V_VO}
v_mov_b32 v{V_L2E}, {LOG2E}
v_mov_b32 v181, {L_CNT}
v_mov_b32 v182, 0
v_mov_b32 v183, 0
ds_write_b64 v181, v[182:183]
v_mov_b32 v{V_ONES}, 0x3f803f80
v_mov_b32 v{V_ONES+1}, 0x3f803f80
s_mov_b32 s{S_SLOT}, 0""")
    for r in range(4): a.e(f"v_mov_b32 v{V_KS4+r}, 0")
    for r in range(96): a.e(f"v_mov_b32 v{V_ACC+r}, 0")
    for r in range(8): a.e(f"v_mov_b32 v{V_PHI+r}, 0")
    a.e(f"s_mul_i32 s{S_T1}, s{S_WAVE}, 12288\ns_add_u32 s{S_T1}, s{S_T1}, {24576 - L_XS}")
    for k in range(4): a.e(f"v_add_u32 v{184+k}, s{S_T1}, v{V_A+k}")
    flag_base(a)
    a.e("s_waitcnt vmcnt(0)")
    for j in range(12):
        a.e(f"ds_read_b128 {vr(V_P+4*j,4)}, v{184+(j&3)} offset:{(j>>2)*4096}")
    a.e("s_waitcnt lgkmcnt(0)")
    stamp(a, 1)
    a.e("s_barrier")
    stamp(a, 2)
    if cfg.DIAG: a.e("s_memrealtime s[76:77]\ns_memtime s[80:81]\ns_waitcnt lgkmcnt(0)\ns_mov_b32 s88, s76\ns_mov_b32 s89, s80")
    A0 = [itemA(j, V_D1, True) for j in range(12)]
    pend = prime(lq, A0, 0)
    run_stream(a, lq, A0, None, {}, 0, pend)
    xs_adv(a)()
    a.e("s_barrier")
    a.e(f"s_mov_b32 s{S_T}, 0")
    Bs = [itemB(i) for i in range(12)]
    ks4 = [f"v_mfma_f32_4x4x4_16b_bf16 {vr(V_KS4,4)}, {vr(V_ONES,2)}, {vr(V_PHI+2*r,2)}, {vr(V_KS4,4)}" for r in range(4)]
    def seqZ(par): return Bs + [itemA(j, V_D1 + 16*(1-par), True) for j in range(12)]
    KNPOS = 12
    kn_reads(lq)()
    pend = prime(lq, seqZ(0), 0)
    a.label("L_p1")
    for par in range(2):
        stamp_idx(a, S_T, 4, 3)
        a.e("s_barrier")
        stamp_idx(a, S_T, 4, 4)
        side = {}
        el = exp_list(V_D1 + 16*par, lambda r: V_KN + r, V_PHI)
        body, pack = (el[:-8], el[-8:]) if el else ([], [])
        el2 = body[:16] + [lambda: lq.wait(("K", 3))] + body[16:]
        for r in range(4): side.setdefault(1 + 3*r, []).append(ks4[r])
        spread(el2, 0, 22, side)
        spread(pack, 22, 24, side)
        if par == 0:
            side.setdefault(11 - D, []).extend([f"s_cmp_eq_u32 s{S_T}, 0", f"s_cselect_b32 s{S_T2}, s{S_CM24K}, s{S_C12K}", f"v_add_u32 v{V_VE}, s{S_T2}, v{V_VE}", f"v_add_u32 v{V_VO}, s{S_T2}, v{V_VO}"])
        else:
            side.setdefault(11 - D, []).extend([f"v_add_u32 v{V_VE}, 12288, v{V_VE}", f"v_add_u32 v{V_VO}, 12288, v{V_VO}"])
        side.setdefault(23 - D, []).append(xs_adv(a))
        side.setdefault(KNPOS, []).append(kn_reads(lq))
        pend = run_stream(a, lq, seqZ(par), seqZ(1-par), side, 0, pend)
        stamp_idx(a, S_T, 4, 6)
        a.e(f"s_add_u32 s{S_T}, s{S_T}, 1")
    a.e(f"s_cmp_lt_u32 s{S_T}, 8\ns_cbranch_scc1 L_p1")
    a.e(f"v_mov_b32 v{V_T0}, {L_CNT}")
    lq.issue(f"ds_read_b64 v[{V_T0+0}:{V_T0+1}], v{V_T0} offset:8", ("N",))
    SP = S_WS if cfg.SCR_WS else S_OUT
    srd(a, SRD_O, SP, S_ROWOFF, 98304)
    a.e(f"s_mul_i32 s{S_T1}, s{S_HEAD}, 786432")
    srd(a, SRD_W, SP, S_T1, 786432)
    a.e(f"s_mul_i32 s{S_T1}, s{S_HEAD}, {PART_SZ}\ns_add_u32 s{S_T1}, s{S_T1}, {WS_FIN}")
    srd(a, SRD_F, S_WS, S_T1, PART_SZ)
    lq.wait(("N",))
    a.e(f"v_readfirstlane_b32 s{S_NONCE}, v{V_T0}\nv_readfirstlane_b32 s{S_FAST}, v{V_T0+1}")
    a.e(f"s_lshl_b32 s{S_VG}, s{S_WAVE}, 11")
    qsave = list(lq.q); psave = dict(pend)
    def final_b(pub):
        lq.q = list(qsave)
        TB = V_D1
        def pubtile(dt):
            L = []
            for jj in range(2):
                tb = TB + 4*((dt*2+jj) % 8)
                for i in range(4):
                    L.append(f"v_cvt_pk_bf16_f32 v{tb+i}, v{V_ACC+16*dt+8*jj+2*i}, v{V_ACC+16*dt+8*jj+2*i+1}")
                L.append(f"buffer_store_dwordx4 {vr(tb,4)}, v{V_L16}, s[{SRD_O}:{SRD_O+3}], s{S_VG} offen offset:{jj*1024} {pub}")
            if dt < 5: L.append(f"s_add_u32 s{S_VG}, s{S_VG}, 12288")
            return L
        side = {}
        for r in range(4): side.setdefault(1 + 2*r, []).append(ks4[r])
        for dt in range(4): side.setdefault(8 + dt, []).extend(pubtile(dt))
        run_stream(a, lq, Bs, None, side, 0, psave)
        for dt in (4, 5):
            for x in pubtile(dt): a.e(x)
        a.e(f"v_lshlrev_b32 v{V_T0+1}, 2, v{V_LANE}\ns_lshl_b32 s{S_T2}, s{S_WAVE}, 8\ns_add_u32 s{S_T2}, s{S_T2}, {PART_SZ}")
        a.e(f"buffer_store_dword v{V_KS4}, v{V_T0+1}, s[{SRD_O}:{SRD_O+3}], s{S_T2} offen {pub}")
    a.e(f"s_cmp_lg_u32 s{S_FAST}, 0\ns_cbranch_scc1 L_pubf")
    final_b(cfg.PUB)
    a.e("s_branch L_pubd")
    a.label("L_pubf")
    final_b("")
    a.label("L_pubd")
    lq.q = []
    stamp(a, 40)
    if cfg.DIAG: a.e("s_memrealtime s[76:77]\ns_memtime s[80:81]\ns_waitcnt lgkmcnt(0)\ns_mov_b32 s90, s76\ns_mov_b32 s91, s80")
    xs_addr(a, 0)
    V_ID = 206; V_SA = 192; V_KL = 196 - 196 + 64 + 0
    V_O8 = 204
    V_KL = 240
    a.e(f"""v_lshlrev_b32 v{V_XN}, 2, v176
v_add_u32 v{V_XN}, {L_XN + 8*128}, v{V_XN}
s_lshl_b32 s{S_T0}, s{S_WAVE}, 11
v_add_u32 v{V_PHW}, s{S_T0}, v{V_L16}
s_mul_i32 s{S_T0}, s{S_WAVE}, 12288
v_add_u32 v{V_PHR}, s{S_T0}, v{V_L16}
v_and_b32 v{V_T0}, 3, v{V_LANE}
v_mov_b32 v{V_T0+1}, 0x3f80
v_mov_b32 v{V_T0+2}, 0x3f800000
v_cmp_eq_u32 vcc, 0, v{V_T0}
v_cndmask_b32 v{V_ID}, 0, v{V_T0+1}, vcc
v_cmp_eq_u32 vcc, 1, v{V_T0}
v_cndmask_b32 v{V_ID}, v{V_ID}, v{V_T0+2}, vcc
v_cmp_eq_u32 vcc, 2, v{V_T0}
v_cndmask_b32 v{V_ID+1}, 0, v{V_T0+1}, vcc
v_cmp_eq_u32 vcc, 3, v{V_T0}
v_cndmask_b32 v{V_ID+1}, v{V_ID+1}, v{V_T0+2}, vcc
s_mul_i32 s{S_T0}, s{S_CHUNK}, 9216
s_mul_i32 s{S_T1}, s{S_WAVE}, 1536
s_add_u32 s{S_VG}, s{S_T0}, s{S_T1}
v_lshlrev_b32 v{V_O8}, 3, v{V_LANE}
v_add_u32 v{V_O8}, 1024, v{V_O8}""")
    stamp(a, 41)
    if cfg.SIGA_EARLY:
        a.e("s_waitcnt vmcnt(0)")
        stamp(a, 42)
        signal(a, 0, 6, 0, "A")
    a.e("s_barrier")
    stamp(a, 43)
    def qadv():
        for r in range(V_A, V_A+4): a.e(f"v_add_u32 v{r}, 12288, v{r}")
    Q0 = [itemA(j, V_D1, False) for j in range(12)]
    pend = prime(lq, Q0, 0)
    run_stream(a, lq, Q0, None, {}, 0, pend)
    qadv()
    if not cfg.SIGA_EARLY:
        a.e("s_waitcnt vmcnt(0)")
        stamp(a, 42)
        signal(a, 0, 6, 0, "A")
    a.e("s_barrier")
    def seqQ(par): return [itemA(j, V_D1 + 16*(1-par), False) for j in range(12)]
    pend = prime(lq, seqQ(0), 12)
    def sb_load_list(p0, p1):
        L = [f"s_add_u32 s{S_T2}, s{S_VG}, {p0*98304}"]
        for p in range(p0, p1):
            L.append(f"buffer_load_dwordx4 {vr(LAND+6*p,4)}, v{V_L16}, s[{SRD_W}:{SRD_W+3}], s{S_T2} offen {cfg.GET}")
            L.append(f"buffer_load_dwordx2 {vr(LAND+6*p+4,2)}, v{V_O8}, s[{SRD_W}:{SRD_W+3}], s{S_T2} offen {cfg.GET}")
            if p < p1 - 1: L.append(f"s_add_u32 s{S_T2}, s{S_T2}, 98304")
        return L
    def sb_sum_list():
        L = ["s_waitcnt vmcnt(8)"]
        for p in range(8):
            for c in range(3):
                cc = "0" if p == 0 else vr(V_SA+4*c, 4)
                L.append(f"v_mfma_f32_4x4x4_16b_bf16 {vr(V_SA+4*c,4)}, {vr(V_ID,2)}, {vr(LAND+6*p+2*c,2)}, {cc}")
        return L
    KL = [7, 8, 9, 205, V_KS4, 15, V_FL, V_T0+3]
    def ks_load_list():
        L = [f"v_lshlrev_b32 v{V_T0+2}, 2, v{V_LANE}", f"s_lshl_b32 s{S_T2}, s{S_WAVE}, 8", f"s_add_u32 s{S_T2}, s{S_T2}, {PART_SZ}"]
        for c in range(8):
            L.append(f"buffer_load_dword v{KL[c]}, v{V_T0+2}, s[{SRD_W}:{SRD_W+3}], s{S_T2} offen {cfg.GET}")
            if c < 7: L.append(f"s_add_u32 s{S_T2}, s{S_T2}, 98304")
        return L
    def ks_fin_list():
        K = KL[0]; K1 = KL[1]
        L = ["s_waitcnt vmcnt(0)"]
        for c in range(1, 8): L.append(f"v_add_f32 v{K}, v{K}, v{KL[c]}")
        L += [f"v_mov_b32 v{K1}, v{K}", "s_nop 1", f"v_permlane32_swap_b32 v{K}, v{K1}", "s_nop 1", f"v_add_f32 v{K}, v{K}, v{K1}",
              f"v_cvt_pk_bf16_f32 v{K}, v{K}, v{K}", f"v_and_b32 v{K1}, 31, v{V_LANE}", f"v_lshlrev_b32 v{K1}, 1, v{K1}",
              f"s_lshl_b32 s{S_T2}, s{S_WAVE}, 6", f"s_add_u32 s{S_T2}, s{S_T2}, {L_KS}", f"v_add_u32 v{K1}, s{S_T2}, v{K1}",
              lambda: lq.issue(f"ds_write_b16 v{K1}, v{K}", ("X",))]
        return L
    def sb_store(pub):
        a.e(f"buffer_store_dwordx4 {vr(LAND,4)}, v{V_L16}, s[{SRD_F}:{SRD_F+3}], s{S_VG} offen {pub}")
        a.e(f"buffer_store_dwordx2 {vr(LAND+4,2)}, v{V_O8}, s[{SRD_F}:{SRD_F+3}], s{S_VG} offen {pub}")
    def sigB():
        a.e("s_waitcnt vmcnt(0)")
        signal(a, 4, 6, 128, "B")
        lq.q = []
    for q in range(8):
        par = q % 2
        k0 = 12 if par == 0 else 0
        a.e("s_barrier")
        stamp(a, 44 + q)
        if 1 <= q <= 6:
            a.e(f"s_cmp_eq_u32 s{S_WAVE}, {q-1}\ns_cbranch_scc0 L_cpk_{q}")
            do_pickup(a)
            a.e("s_waitcnt lgkmcnt(0)")
            a.label(f"L_cpk_{q}")
        lq.issue(f"ds_read_b32 v{V_QN}, v{V_XN} offset:{q*128}", ("K", 0))
        side = {}
        el = exp_list(V_D1 + 16*par, lambda r: V_QN, V_PHI, cfg.QROUND)
        nlead = 16 if cfg.QROUND else 0
        el2 = el[:nlead] + [lambda: lq.wait(("K", 0))] + el[nlead:]
        spread(el2, 0 if cfg.QROUND else 1, 12, side)
        side.setdefault(11 - D, []).append(qadv)
        extra = []
        if q == cfg.QL1: extra = extra + sb_load_list(0, 4)
        if q == cfg.QL2: extra = extra + sb_load_list(4, 8) + ks_load_list()
        if q == cfg.QS: extra = extra + sb_sum_list()
        if q == cfg.QPB + 1: extra = extra + kv_load_list()
        if q == 7: extra = extra + kv_write_list()
        if extra: spread(extra, 0, 11, side)
        if q == cfg.QS + 1: side.setdefault(4, []).append(sigB)
        if q < 7:
            pend = run_stream(a, lq, seqQ(par), seqQ(1-par) if q < 6 else None, side, k0, pend)
        elif cfg.DENQ7:
            a.e(f"v_lshrrev_b32 v{V_A}, 5, v{V_LANE}\nv_lshlrev_b32 v{V_A}, 3, v{V_A}\nv_add_u32 v{V_A}, {L_KS}, v{V_A}")
            def itemD(f):
                o = 8*(f >> 1) + 4*(f & 1)
                def reads(b): return [f"ds_read2_b64 {vr(b,4)}, v{V_A} offset0:{o} offset1:{o+2}"]
                def mfma(b):
                    c = "0" if f == 0 else vr(V_D1, 16)
                    return f"v_mfma_f32_32x32x16_bf16 {vr(V_D1,16)}, {vr(b,4)}, {vr(V_PQ+4*f,4)}, {c}"
                return Item(("D", f), reads, mfma)
            Ds = [itemD(f) for f in range(12)]
            side[11 - D] = [x for x in side.get(11 - D, []) if x is not qadv]
            pd = prime(lq, Ds, 0)
            run_stream(a, lq, Ds, None, side, 0, pd)
        else:
            for p_ in range(12):
                for x in side.get(p_, []):
                    if x is qadv: continue
                    emit(a, x)
        stamp(a, 3 + 3*q, 3)
        for jj in range(2):
            lq.issue(f"ds_write_b128 v{V_PHW}, {vr(V_PHI+4*jj,4)} offset:{jj*1024}", ("W", jj))
        if q < 7: a.e(f"v_add_u32 v{V_PHW}, 12288, v{V_PHW}")
        if q == 0:
            a.e(f"s_cmp_lg_u32 s{S_WAVE}, 0\ns_cbranch_scc1 L_npa")
            poll_block(a, 0, "A")
            a.label("L_npa")
        if q == cfg.QS:
            for i in range(6): a.e(f"v_cvt_pk_bf16_f32 v{LAND+i}, v{V_SA+2*i}, v{V_SA+2*i+1}")
            for x in ks_fin_list(): emit(a, x)
            a.e(f"s_cmp_lg_u32 s{S_FAST}, 0\ns_cbranch_scc1 L_sbf")
            sb_store(cfg.PUB)
            a.e("s_branch L_sbd")
            a.label("L_sbf")
            sb_store("")
            a.label("L_sbd")
        if q == cfg.QPB:
            a.e(f"s_cmp_lg_u32 s{S_WAVE}, 0\ns_cbranch_scc1 L_npb")
            poll_block(a, 128, "B")
            a.label("L_npb")
        stamp(a, 4 + 3*q, 3)
        a.e("s_waitcnt lgkmcnt(0)")
        lq.q = []
    if cfg.DENQ7:
        a.e(f"v_add_f32 v144, {EPS}, v{V_D1}\nv_rcp_f32 v144, v144")
    stamp(a, 52)

def fin(a):
    a.label("L_fin")
    a.e("s_barrier")
    stamp(a, 54)
    a.e(f"s_cmp_eq_u32 s{S_WAVE}, 7\ns_cbranch_scc0 L_fpk")
    a.e(f"s_mul_i32 s{S_T0}, s{S_WAVE}, 12288\nv_add_u32 v{V_PHR}, s{S_T0}, v{V_L16}")
    do_pickup(a)
    a.e("s_waitcnt lgkmcnt(0)")
    a.label("L_fpk")
    stamp(a, 56)
    if cfg.DIAG: a.e("s_memrealtime s[76:77]\ns_memtime s[80:81]\ns_waitcnt lgkmcnt(0)\ns_mov_b32 s92, s76\ns_mov_b32 s93, s80")
    p2b(a)
    stamp(a, 57)
    if cfg.STAMPS: a.e("s_waitcnt vmcnt(0)")
    stamp(a, 58)
    stamp_flush(a)
    if cfg.DIAG:
        a.e("s_waitcnt vmcnt(0)")
        a.e("s_memrealtime s[76:77]\ns_memtime s[80:81]\ns_waitcnt lgkmcnt(0)\ns_mov_b32 s94, s76\ns_mov_b32 s95, s80")
        a.e(f"""s_cmp_lg_u32 s{S_WAVE}, 0
s_cbranch_scc1 L_end
s_cmp_lg_u32 s{S_CHUNK}, 3
s_cbranch_scc1 L_end
s_cmp_ge_u32 s{S_HEAD}, 8
s_cbranch_scc1 L_end
s_sub_u32 s88, s88, s86
s_sub_u32 s90, s90, s86
s_sub_u32 s92, s92, s86
s_sub_u32 s94, s94, s86
s_sub_u32 s89, s89, s87
s_sub_u32 s91, s91, s87
s_sub_u32 s93, s93, s87
s_sub_u32 s95, s95, s87
s_mov_b32 s96, s88
s_cmp_eq_u32 s{S_HEAD}, 1
s_cselect_b32 s96, s90, s96
s_cmp_eq_u32 s{S_HEAD}, 2
s_cselect_b32 s96, s92, s96
s_cmp_eq_u32 s{S_HEAD}, 3
s_cselect_b32 s96, s94, s96
s_cmp_eq_u32 s{S_HEAD}, 4
s_cselect_b32 s96, s89, s96
s_cmp_eq_u32 s{S_HEAD}, 5
s_cselect_b32 s96, s91, s96
s_cmp_eq_u32 s{S_HEAD}, 6
s_cselect_b32 s96, s93, s96
s_cmp_eq_u32 s{S_HEAD}, 7
s_cselect_b32 s96, s95, s96
s_lshl_b32 s97, s{S_HEAD}, 3
v_mov_b32 v2, s97
v_mov_b32 v3, s96
s_mov_b32 exec_lo, 1
s_mov_b32 exec_hi, 0
global_store_dword v2, v3, s[{S_DBG}:{S_DBG+1}] offset:4 sc1""")

def p2b(a):
    lq = LQ(a)
    V_O = 112
    V_DEN = 144
    V_KF = 148
    V_DN = 160
    V_T = 176
    V_R = 184
    srd(a, SRD_O, S_OUT, S_ROWOFF, 98304)
    a.e(f"""v_and_b32 v2, 31, v{V_LANE}
v_lshrrev_b32 v3, 5, v{V_LANE}
v_lshlrev_b32 v5, 3, v3
v_add_u32 v5, {L_KS}, v5
v_lshlrev_b32 v6, 4, v{V_LANE}
s_lshl_b32 s{S_T0}, s{S_WAVE}, 12
s_add_u32 s{S_T1}, s{S_T0}, {L_XS}
v_lshlrev_b32 v7, 7, v2
v_lshl_add_u32 v7, v3, 3, v7
v_add_u32 v7, s{S_T1}, v7
v_and_b32 v9, 7, v2
v_lshrrev_b32 v10, 3, v{V_LANE}
v_and_b32 v11, 7, v{V_LANE}
v_xor_b32 v12, v11, v10
v_lshlrev_b32 v8, 7, v10
v_lshl_add_u32 v8, v12, 4, v8
v_add_u32 v8, s{S_T1}, v8
s_lshl_b32 s{S_T0}, s{S_WAVE}, 5
v_add_u32 v4, s{S_T0}, v10
v_mul_u32_u24 v4, 384, v4
v_lshl_add_u32 v4, v11, 4, v4
v_lshl_add_u32 v7, v9, 4, v7""")
    def itemF(f, O):
        def reads(b): return [f"ds_read_b128 {vr(b,4)}, v6 offset:{f*1024}"]
        def mfma(b):
            c = "0" if f == 0 else vr(O, 16)
            return f"v_mfma_f32_32x32x16_bf16 {vr(O,16)}, {vr(b,4)}, {vr(V_PQ+4*f,4)}, {c}"
        return Item(("F", f), reads, mfma)
    def itemFn(f):
        def reads(b): return [f"ds_read_b128 {vr(b,4)}, v6 offset:{12288+f*1024}"]
        return Item(("F", f), reads, None)
    seq = lambda O: [itemF(f, O) for f in range(12)]
    nxt = [itemFn(f) for f in range(12)]
    def kread(f):
        o = 8*(f >> 1) + 4*(f & 1)
        lq.issue(f"ds_read2_b64 {vr(V_KF+4*(f%3),4)}, v5 offset0:{o} offset1:{o+2}", ("K", f))
    kread(0); kread(1)
    pend = prime(lq, seq(V_O), 0)
    for g in range(1, 8):
        a.e(f"v_xor_b32 v{199+g}, {g<<4}, v7")
    WA = lambda g: 7 if g == 0 else 199 + g
    if cfg.DENQ7: a.e(f"s_cmp_lt_u32 s{S_WAVE}, 6\ns_cbranch_scc1 L_noden")
    for f in range(12):
        lq.wait(("K", f))
        c = "0" if f == 0 else vr(V_DN, 16)
        a.e(f"v_mfma_f32_32x32x16_bf16 {vr(V_DN,16)}, {vr(V_KF+4*(f%3),4)}, {vr(V_PQ+4*f,4)}, {c}")
        if f + 2 < 12: kread(f + 2)
    a.e(f"s_nop 7\ns_nop 3\nv_add_f32 v{V_DEN}, {EPS}, v{V_DN}\nv_rcp_f32 v{V_DEN}, v{V_DEN}")
    if cfg.DENQ7:
        a.label("L_noden")
        a.e("s_waitcnt lgkmcnt(0)")
        lq.q = []
    pend = run_stream(a, lq, seq(V_O), nxt, {}, 0, pend)
    a.e(f"""v_add_u32 v6, 12288, v6""")
    def epi(O, odd):
        L = []
        for r in range(16): L.append(f"v_mul_f32 v{O+r}, v{O+r}, v{V_DEN}")
        for r in range(8): L.append(f"v_cvt_pk_bf16_f32 v{V_T+r}, v{O+2*r}, v{O+2*r+1}")
        for q in range(4):
            L.append(lambda q=q: lq.issue(f"ds_write_b64 v{WA(4*odd+q)}, {vr(V_T+2*q,2)}", ("W",)))
        if odd:
            for G in range(4):
                L.append(lambda G=G: lq.issue(f"ds_read_b128 {vr(V_R+4*G,4)}, v8 offset:{G*1024}", ("R", G)))
        return L
    def stores(pair):
        L = []
        for G in range(4):
            def st(G=G):
                lq.wait(("R", G))
                a.e(f"s_mov_b32 s{S_T}, {pair*128 + G*3072}")
                a.e(f"buffer_store_dwordx4 {vr(V_R+4*G,4)}, v4, s[{SRD_O}:{SRD_O+3}], s{S_T} offen {cfg.OUT_NT}")
            L.append(st)
        return L
    for dt in range(1, 6):
        O = V_O + 16*(dt % 2); Oprev = V_O + 16*((dt-1) % 2)
        side = {}
        if dt in (3, 5): spread(stores((dt-3)//2), 2, 6, side)
        spread(epi(Oprev, (dt-1) % 2), 1, 12, side)
        pend = run_stream(a, lq, seq(O), nxt if dt < 5 else None, side, 12*(dt % 2), pend)
        if dt < 5: a.e("v_add_u32 v6, 12288, v6")
    for x in epi(V_O+16, 1): emit(a, x)
    for x in stores(2): emit(a, x)
    a.e("s_waitcnt lgkmcnt(0)")

def kernel(a):
    a.e(f"""s_cmp_ge_u32 s2, 256
s_cbranch_scc1 L_end
s_load_dwordx8 s[8:15], s[0:1], 0
s_load_dwordx4 s[16:19], s[0:1], 32
s_load_dwordx2 s[20:21], s[0:1], 48
v_lshrrev_b32 v1, 6, v0
s_and_b32 s{S_HEAD}, s2, 31
s_lshr_b32 s{S_CHUNK}, s2, 5
v_readfirstlane_b32 s{S_WAVE}, v1
v_and_b32 v{V_LANE}, 63, v0
s_mul_i32 s{S_ROWOFF}, s{S_HEAD}, 786432
s_mul_i32 s26, s{S_CHUNK}, 98304
s_add_u32 s{S_ROWOFF}, s{S_ROWOFF}, s26
s_mov_b32 s{S_C12K}, 12288
s_mov_b32 s{S_CM24K}, -24576
s_lshl_b32 s{S_T0}, s{S_WAVE}, 2
s_lshr_b32 s{S_WAVE}, {hex(cfg.ROLEMAP)}, s{S_T0}
s_and_b32 s{S_WAVE}, s{S_WAVE}, 15
s_cmp_ge_u32 s{S_WAVE}, 6
s_waitcnt lgkmcnt(0)""")
    if cfg.STAMPS:
        a.e("v_mov_b32 v255, 0\nv_mov_b32 v254, 0"); stamp(a, 0); a.e(f"s_cmp_ge_u32 s{S_WAVE}, 6")
    if cfg.DIAG:
        a.e("s_memrealtime s[76:77]\ns_memtime s[80:81]\ns_waitcnt lgkmcnt(0)\ns_mov_b32 s86, s76\ns_mov_b32 s87, s80")
        a.e(f"s_cmp_ge_u32 s{S_WAVE}, 6")
    a.e("s_cbranch_scc1 L_prod")
    compute(a)
    a.e("s_branch L_fin")
    producer(a)
    fin(a)
    a.label("L_end")
    a.e("s_endpgm")

HEADER = open("standalone__linear_kernel_performer__prompt.s.ref").read().split("; Override launch")[0]

def main(path):
    a = Asm(); a.inprod = False; kernel(a)
    body = a.finalize()
    txt = HEADER + f"; @launch grid=(256,1,1) block=(512,1,1) lds={LDS_BYTES}\n"
    txt += f""".amdgcn_target "amdgcn-amd-amdhsa--gfx950"
.text
.globl {NAME}
.p2align 8
.type {NAME},@function
{NAME}:
{body}.section .rodata,"a"
.p2align 6
.amdhsa_kernel {NAME}
  .amdhsa_next_free_vgpr 256
  .amdhsa_next_free_sgpr 102
  .amdhsa_accum_offset 256
  .amdhsa_group_segment_fixed_size 0
  .amdhsa_kernarg_size 56
  .amdhsa_user_sgpr_count 2
  .amdhsa_user_sgpr_kernarg_segment_ptr 1
  .amdhsa_system_sgpr_workgroup_id_x 1
  .amdhsa_float_denorm_mode_32 3
.end_amdhsa_kernel
"""
    open(path, "w").write(txt)

if __name__ == "__main__":
    for arg in sys.argv[2:]:
        k, v = arg.split("=")
        cur = getattr(cfg, k)
        setattr(cfg, k, (v == "1") if isinstance(cur, bool) else (int(v, 0) if isinstance(cur, int) else v))
    main(sys.argv[1])
```

```python
import struct, sys
from asmlib import Asm, vr, sr

def f32hex(x): return "0x%08x" % struct.unpack("<I", struct.pack("<f", x))[0]
SCALE = f32hex(192 ** -0.25)
LOG2E = f32hex(1.4426950408889634)
EPS = f32hex(0.75e-6)

L_XS = 0x18000
XS_R = 3
L_XN = L_XS + 3*12288
L_KS = L_XN + 2048
L_CNT = L_KS + 512
LDS_BYTES = L_CNT + 64
PART_SZ = 73728
KSP_SZ = 1536
WS_FIN = 0x1900000
WS_FLG = 0x1D00000
WS_STAMP = 0x4000000

NAME = "standalone__linear_kernel_performer__prompt_kernel"
class Cfg:
    ROLEMAP = 0x75436210
    NT = "nt"
    STAMPS = 0
    GET = "sc1"
    DEPTH = 7
    OUT_NT = "sc1"
    QROUND = False
    CODEPF = True
    WAIT2 = True
    FASTEN = False
    QL1 = 1; QL2 = 2; QS = 3; QPB = 5
    X_NOEXP = False
    START2 = True
    SCR_WS = False
    DIAG = False
    SIGA_EARLY = True
    DENQ7 = True
    PREF = False
    TOUCH = False
    EORD = 3
    WBL2 = 0
    PREF_POL = ""
    PUB = "sc1"
cfg = Cfg()

S_Q, S_K, S_V, S_P = 8, 10, 12, 14
S_OUT, S_DBG, S_WS = 16, 18, 20
S_HEAD, S_CHUNK, S_WAVE, S_ROWOFF = 22, 23, 24, 25
S_FLG = 26
SRD_X, SRD_V, SRD_P, SRD_O, SRD_W, SRD_Q, SRD_F = 28, 32, 36, 40, 44, 64, 68
S_VG, S_CAND, S_NONCE, S_SLOT = 52, 53, 54, 55
S_T, S_T0, S_T1, S_T2, S_T3, S_VB, S_FAST, S_SPIN = 56, 57, 58, 59, 60, 61, 62, 63
S_DLT, S_XCC = 72, 73
S_C12K, S_CM24K = 82, 83

V_LANE = 1
V_A = 2
V_XN = 6
V_VE, V_VO = 7, 8
V_FL = 10
V_L16 = 11
V_KS4 = 12
V_PHR = 13
V_PHW = 14
V_P = 16
V_ACC = 64
V_D1 = 160
V_KN = 192
V_PHI = 208
V_FB = 216
V_L2E = 248
V_QN = 249
V_T0 = 250
V_ONES = 252
V_PQ = 64
V_RAW = 16
LAND = 112

class LQ:
    def __init__(self, a): self.a = a; self.q = []
    def issue(self, text, tag): self.a.e(text); self.q.append(tag)
    def wait(self, tag):
        if tag not in self.q: return
        i = len(self.q) - 1 - self.q[::-1].index(tag)
        n = len(self.q) - 1 - i
        assert n <= 15, (n, self.q)
        self.a.e(f"s_waitcnt lgkmcnt({n})")
        self.q = self.q[i+1:]

def _stamp(a, idx):
    a.e("s_memrealtime s[76:77]\ns_memtime s[80:81]\ns_waitcnt lgkmcnt(0)")
    a.e(f"s_mov_b32 m0, {idx}")
    a.e("v_writelane_b32 v255, s76, m0")
    a.e("v_writelane_b32 v254, s80, m0")
def stamp(a, idx, lvl=1):
    if cfg.STAMPS == 0 or (lvl > 1 and cfg.STAMPS != lvl and not (a.inprod and cfg.STAMPS > 1)): return
    _stamp(a, idx)
def stamp_idx(a, sreg, mul, add, lvl=2):
    if cfg.STAMPS == 0 or (lvl > 1 and cfg.STAMPS != lvl): return
    a.e(f"s_mul_i32 s78, s{sreg}, {mul}\ns_add_u32 s78, s78, {add}")
    _stamp(a, "s78")
def stamp_flush(a):
    if not cfg.STAMPS: return
    a.e(f"""s_mov_b64 exec, -1
s_lshl_b32 s72, s2, 3
s_add_u32 s72, s72, s{S_WAVE}
s_lshl_b32 s72, s72, 8
s_add_u32 s72, s72, {WS_STAMP}
s_add_u32 s74, s{S_WS}, s72
s_addc_u32 s75, s{S_WS+1}, 0
v_and_b32 v253, 63, v0
v_lshlrev_b32 v253, 2, v253
global_store_dword v253, v255, s[74:75]
s_add_u32 s74, s74, 0x100000
s_addc_u32 s75, s75, 0
global_store_dword v253, v254, s[74:75]""")

def srd(a, d, ptr, off, size):
    if off is None:
        a.e(f"s_mov_b32 s{d}, s{ptr}\ns_and_b32 s{d+1}, s{ptr+1}, 0xffff")
    else:
        a.e(f"s_add_u32 s{d}, s{ptr}, s{off}\ns_addc_u32 s{d+1}, s{ptr+1}, 0\ns_and_b32 s{d+1}, s{d+1}, 0xffff")
    a.e(f"s_mov_b32 s{d+2}, {size}\ns_mov_b32 s{d+3}, 0x20000")

def flag_base(a):
    a.e(f"""s_lshl_b32 s{S_T0}, s{S_HEAD}, 9
s_add_u32 s{S_T0}, s{S_T0}, {WS_FLG}
s_add_u32 s{S_FLG}, s{S_WS}, s{S_T0}
s_addc_u32 s{S_FLG+1}, s{S_WS+1}, 0""")

def exp_list(D, kn_of, phi, rnd=True):
    L = []
    if cfg.X_NOEXP: return L
    if rnd:
        for r in range(16): L.append(f"v_cvt_pk_bf16_f32 v{D+r}, 0, v{D+r}")
    for r in range(16): L.append(f"v_add_f32 v{D+r}, v{D+r}, v{kn_of(r)}")
    if rnd:
        for r in range(16): L.append(f"v_cvt_pk_bf16_f32 v{D+r}, 0, v{D+r}")
    for r in range(16): L.append(f"v_fma_f32 v{D+r}, v{D+r}, v{V_L2E}, -4.0")
    for r in range(16): L.append(f"v_exp_f32 v{D+r}, v{D+r}")
    for r in range(8): L.append(f"v_cvt_pk_bf16_f32 v{phi+r}, v{D+2*r}, v{D+2*r+1}")
    return L

def do_pickup(a):
    for f in range(12):
        a.e(f"ds_read_b128 {vr(V_PQ+4*f,4)}, v{V_PHR} offset:{f*1024}")

def kv_load_list():
    L = [f"s_mul_i32 s{S_T2}, s{S_WAVE}, 9216"]
    for i in range(9):
        L.append(f"buffer_load_dwordx4 {vr(LAND+4*i,4)}, v{V_L16}, s[{SRD_F}:{SRD_F+3}], s{S_T2} offen {cfg.GET}")
        if i < 8: L.append(f"s_add_u32 s{S_T2}, s{S_T2}, 1024")
    return L
def kv_write_list():
    L = [f"s_mul_i32 s{S_T1}, s{S_WAVE}, 9216", f"v_add_u32 v148, s{S_T1}, v{V_L16}"]
    for i in range(9):
        L.append(f"s_waitcnt vmcnt({8-i})")
        L.append(f"ds_write_b128 v148, {vr(LAND+4*i,4)} offset:{i*1024}")
    return L

P_SCHED = {
    "init": [("K",0), ("K",1), ("K",2), ("S",1), ("V",0), ("V",1)],
    ("c",0): [("K",3)], ("c",1): [("K",4)],
    ("b",2): [("S",3), ("V",2), ("K",5), ("V",3)],
    ("b",3): [("K",6), ("V",4)], ("b",4): [("K",7), ("V",5)], ("b",5): [("S",4), ("V",6), ("V",7)],
    ("b",6): [("Q",0), ("Q",1)], ("b",7): [("Q",2), ("Q",3)], ("b","7a"): [("Q",4), ("Q",5)], ("b","7b"): [("Q",6), ("Q",7)],
}

def producer(a):
    a.inprod = True
    if cfg.PREF:
        P_SCHED[("b",5)] = [("S",4), ("V",6), ("V",7), ("F",0)]
        P_SCHED[("b",6)] = [("Q",0), ("Q",1), ("F",1)]
        P_SCHED[("b",7)] = [("Q",2), ("Q",3), ("F",2)]
        P_SCHED[("b","7a")] = [("F",3), ("Q",4), ("Q",5)]
    if cfg.TOUCH:
        P_SCHED[("b",3)] = P_SCHED[("b",3)] + [("T",0)]
    if cfg.START2:
        P_SCHED["init"] = [("K",0), ("K",1), ("S",1)]
        P_SCHED[("c",0)] = [("K",2), ("V",0), ("K",3)]
        P_SCHED[("c",1)] = [("V",1), ("K",4)]
    TMP = 208; VSC = 224; VMK = 226; VDM = 227
    VS0, VS1, VS2, VS3 = 230, 232, 234, 236
    issued = []
    a.label("L_prod")
    srd(a, SRD_X, S_K, S_ROWOFF, 98304)
    a.e(f"""s_sub_u32 s{S_T0}, s{S_WAVE}, 6
s_lshl_b32 s{S_VG}, s{S_T0}, 1
s_lshl_b32 s{S_T0}, s{S_T0}, 4
v_lshrrev_b32 v7, 3, v{V_LANE}
v_and_b32 v8, 7, v{V_LANE}
v_add_u32 v9, s{S_T0}, v7
v_mul_u32_u24 v10, 384, v9
v_lshl_add_u32 v2, v8, 4, v10""")
    def sync_step(k):
        a.e(f"s_cmp_lg_u32 s{S_WAVE}, 6\ns_cbranch_scc1 L_sy{k}")
        if k == 1:
            flag_base(a)
            a.e(f"""v_lshlrev_b32 v{VS1}, 7, v7
v_lshl_add_u32 v{VS1}, v8, 2, v{VS1}
s_mov_b32 exec_lo, -1
s_mov_b32 exec_hi, 0
global_load_dword v{VS0}, v{VS1}, s[{S_FLG}:{S_FLG+1}] sc1
s_mov_b64 exec, -1""")
        elif k == 3:
            a.e(f"""v_subrev_u32 v{VS1}, 1, v{VS0}
v_mov_b32 v{VS1+1}, 1
v_lshlrev_b32 v{VS1+1}, v{VS1}, v{VS1+1}
v_mov_b32 v{VS2}, 0
v_mov_b32 v{VS2+1}, 0
v_cmp_gt_u32 vcc, 32, v{VS1}
s_nop 1
s_mov_b32 vcc_hi, 0
v_cndmask_b32 v{VS2}, 0, v{VS1+1}, vcc
v_subrev_u32 v{VS1}, 32, v{VS1}
v_cmp_gt_u32 vcc, 32, v{VS1}
s_nop 1
s_mov_b32 vcc_hi, 0
v_cndmask_b32 v{VS2+1}, 0, v{VS1+1}, vcc""")
            for r in (VS2, VS2+1):
                for sh in (1, 2, 4, 8):
                    a.e(f"v_or_b32_dpp v{r}, v{r}, v{r} row_shr:{sh} row_mask:0xf bank_mask:0xf")
            a.e(f"""v_readlane_b32 s74, v{VS2}, 15
v_readlane_b32 s{S_T0}, v{VS2}, 31
v_readlane_b32 s75, v{VS2+1}, 15
v_readlane_b32 s{S_T1}, v{VS2+1}, 31
s_or_b32 s74, s74, s{S_T0}
s_or_b32 s75, s75, s{S_T1}
s_ff0_i32_b64 s{S_CAND}, s[74:75]
s_add_u32 s{S_CAND}, s{S_CAND}, 1
s_getreg_b32 s{S_XCC}, hwreg(HW_REG_XCC_ID, 0, 4)
s_and_b32 s{S_XCC}, s{S_XCC}, 7
s_lshl_b32 s{S_XCC}, s{S_XCC}, 2
s_lshl_b32 s{S_T0}, 1, s{S_XCC}
v_mov_b32 v{VS2}, s{S_CAND}
v_mov_b32 v{VS2+1}, 0
s_lshl_b32 s{S_T1}, s{S_HEAD}, 3
v_mov_b32 v{VS3}, s{S_T1}
v_mov_b32 v{VS3+1}, s{S_T0}
s_mov_b32 exec_lo, 1
s_mov_b32 exec_hi, 0
global_atomic_cmpswap v{VS1}, v{VS3}, v[{VS2}:{VS2+1}], s[{S_DBG}:{S_DBG+1}] sc0 sc1
{"global_atomic_add v%d, v%d, s[%d:%d] offset:4 sc1" % (VS3, VS3+1, S_DBG, S_DBG+1) if cfg.FASTEN else "s_nop 0"}
s_mov_b64 exec, -1""")
        elif k == 4:
            a.e(f"""s_lshl_b32 s{S_T1}, s{S_HEAD}, 3
v_mov_b32 v{VS3}, s{S_T1}
s_mov_b32 exec_lo, 1
s_mov_b32 exec_hi, 0
global_load_dword v{VS0}, v{VS3}, s[{S_DBG}:{S_DBG+1}] offset:4 sc1
s_mov_b64 exec, -1""")
        elif k == 5:
            a.e(f"""v_readfirstlane_b32 s{S_NONCE}, v{VS1}
v_readfirstlane_b32 s{S_T0}, v{VS0}
s_cmp_eq_u32 s{S_NONCE}, 0
s_cselect_b32 s{S_NONCE}, s{S_CAND}, s{S_NONCE}
s_lshl_b32 s{S_T1}, 8, s{S_XCC}
s_cmp_eq_u32 s{S_T0}, s{S_T1}
s_cselect_b32 s{S_FAST}, {1 if cfg.FASTEN else 0}, 0
v_mov_b32 v{VS2}, s{S_NONCE}
v_mov_b32 v{VS2+1}, s{S_FAST}
v_mov_b32 v{VS3}, {L_CNT}
ds_write_b64 v{VS3}, v[{VS2}:{VS2+1}] offset:8
s_waitcnt lgkmcnt(0)""")
        a.label(f"L_sy{k}")
    def issue(tok):
        kind, t = tok
        if kind == "S":
            sync_step(t); return
        if kind == "T":
            issued.append(tok)
            srd(a, SRD_O, S_OUT, S_ROWOFF, 98304)
            a.e(f"s_mul_i32 s{S_T1}, s{S_HEAD}, {PART_SZ}\ns_add_u32 s{S_T1}, s{S_T1}, {WS_FIN}")
            srd(a, SRD_F, S_WS, S_T1, PART_SZ)
            a.e(f"v_mov_b32 v228, 0")
            for off in (0, 32768, 65536, 98304-64):
                a.e(f"s_mov_b32 s{S_T1}, {off}\nbuffer_load_dword v240, v228, s[{SRD_O}:{SRD_O+3}], s{S_T1} offen nt")
            for off in (0, PART_SZ-64):
                a.e(f"s_mov_b32 s{S_T1}, {off}\nbuffer_load_dword v240, v228, s[{SRD_F}:{SRD_F+3}], s{S_T1} offen nt")
            return
        if kind == "F":
            issued.append(tok)
            if t == 0:
                SP = S_WS if cfg.SCR_WS else S_OUT
                srd(a, SRD_O, SP, S_ROWOFF, 98304)
                a.e(f"s_mul_i32 s{S_T1}, s{S_HEAD}, {PART_SZ}\ns_add_u32 s{S_T1}, s{S_T1}, {WS_FIN}")
                srd(a, SRD_F, S_WS, S_T1, PART_SZ)
                a.e(f"v_lshlrev_b32 v228, 4, v{V_LANE}\ns_sub_u32 s{S_SLOT}, s{S_WAVE}, 6\ns_mul_i32 s{S_SLOT}, s{S_SLOT}, 36864")
            if t < 3:
                for i in range(12):
                    a.e(f"s_add_u32 s{S_T1}, s{S_SLOT}, {(t*12+i)*1024}")
                    a.e(f"buffer_load_dwordx4 v[240:243], v228, s[{SRD_O}:{SRD_O+3}], s{S_T1} offen {cfg.PREF_POL}")
            else:
                a.e(f"s_mul_i32 s{S_T0}, s{S_CHUNK}, 9216")
                for i in range(12):
                    if i < 9:
                        a.e(f"s_add_u32 s{S_T1}, s{S_T0}, {i*1024}")
                        a.e(f"buffer_load_dwordx4 v[240:243], v228, s[{SRD_F}:{SRD_F+3}], s{S_T1} offen {cfg.PREF_POL}")
                    elif i < 11:
                        a.e(f"s_mov_b32 s{S_T1}, {PART_SZ + (i-9)*1024}")
                        a.e(f"buffer_load_dwordx4 v[240:243], v228, s[{SRD_O}:{SRD_O+3}], s{S_T1} offen {cfg.PREF_POL}")
            return
        issued.append(tok)
        if kind in "KQ":
            srdn = SRD_X if kind == "K" else SRD_Q
            a.e(f"s_mov_b32 s{S_T1}, {t*12288}")
            for g in range(2):
                for cb in range(3):
                    r = V_RAW + 24*t + 12*g + 4*cb
                    a.e(f"buffer_load_dwordx4 {vr(r,4)}, v2, s[{srdn}:{srdn+3}], s{S_T1} offen offset:{g*3072+cb*128} {cfg.NT}")
        else:
            for e in range(2):
                for cb in range(3):
                    a.e(f"s_add_u32 m0, s{S_VB}, {t*12288 + cb*4096 + e*1024}\ns_add_u32 s{S_T1}, s{S_VG}, {t*12288 + e*3072 + cb*128}")
                    a.e(f"buffer_load_dwordx4 v{VDM}, s[{SRD_V}:{SRD_V+3}], s{S_T1} offen {cfg.NT} lds")
    def wait_for(tok):
        wt = lambda t: (12 if t[1] < 3 else 11) if t[0] == "F" else 6
        n = sum(wt(t) for t in issued[issued.index(tok)+1:])
        n = min(n, 63)
        a.e(f"s_waitcnt vmcnt({n})")
    def ev(key):
        for tok in P_SCHED.get(key, []): issue(tok)
    ninit = 2 if cfg.START2 else 3
    for tok in P_SCHED["init"][:ninit]: issue(tok)
    srd(a, SRD_V, S_V, S_ROWOFF, 98304)
    a.e(f"""v_mul_u32_u24 v11, 384, v7
v_lshrrev_b32 v12, 2, v{V_LANE}
v_and_b32 v12, 4, v12
v_xor_b32 v12, v12, v8
v_lshl_add_u32 v{VDM}, v12, 4, v11
s_lshl_b32 s{S_VB}, s{S_VG}, 10
s_mul_i32 s{S_VG}, s{S_VG}, 3072""")
    for tok in P_SCHED["init"][ninit:]: issue(tok)
    if cfg.CODEPF:
        a.e(f"""s_getpc_b64 s[90:91]
L_pcbase:
s_sub_u32 s90, s90, L_pcbase - {NAME}
s_subb_u32 s91, s91, 0
s_lshr_b32 s{S_T0}, s2, 3
s_and_b32 s{S_T0}, s{S_T0}, 31
s_lshl_b32 s{S_T0}, s{S_T0}, 10
s_sub_u32 s{S_T1}, s{S_WAVE}, 6
s_lshl_b32 s{S_T1}, s{S_T1}, 15
s_add_u32 s{S_T0}, s{S_T0}, s{S_T1}
v_lshlrev_b32 v11, 4, v{V_LANE}
v_add_u32 v11, s{S_T0}, v11
v_min_u32 v11, L_end - {NAME} - 16, v11
global_load_dwordx4 v[240:243], v11, s[90:91]""")
    srd(a, SRD_Q, S_Q, S_ROWOFF, 98304)
    a.e(f"""v_lshrrev_b32 v11, 1, v7
v_xor_b32 v11, v11, v8
v_lshlrev_b32 v12, 4, v11
v_lshlrev_b32 v10, 7, v9
v_add_u32 v3, v10, v12
v_xor_b32 v4, 64, v3
v_add_u32 v4, 1024, v4
v_lshlrev_b32 v5, 2, v9
v_add_u32 v5, {L_XN}, v5
v_mov_b32 v{VSC}, {SCALE}
v_mov_b32 v{VSC+1}, {SCALE}
v_mov_b32 v{VMK}, 0xffff0000
v_add_u32 v13, {L_XS}, v3
v_add_u32 v14, {L_XS}, v4""")
    def convert(kind, t):
        T = t if kind == "K" else 8 + t
        b = V_RAW + 24*t
        wait_for((kind, t))
        stamp(a, 2 + 3*T, 2)
        if kind == "K": A0, off = 13, (t % 3)*12288
        else: A0, off = 3, 0
        for g in range(2):
            nreg = TMP + 8 + g
            a.e(f"v_mov_b32 v{nreg}, 0\nv_mov_b32 v{nreg+2}, 0")
            for c4 in range(3):
                xs_ = [b + 12*g + 4*c4 + i for i in range(4)]
                for i, x in enumerate(xs_): a.e(f"v_lshlrev_b32 v{TMP+2*i}, 16, v{x}")
                for i, x in enumerate(xs_): a.e(f"v_and_b32 v{TMP+2*i+1}, v{VMK}, v{x}")
                for i, x in enumerate(xs_): a.e(f"v_pk_mul_f32 v[{TMP+2*i}:{TMP+2*i+1}], v[{TMP+2*i}:{TMP+2*i+1}], v[{VSC}:{VSC+1}]")
                for i, x in enumerate(xs_): a.e(f"v_cvt_pk_bf16_f32 v{x}, v{TMP+2*i}, v{TMP+2*i+1}")
                for i, x in enumerate(xs_): a.e(f"v_dot2c_f32_bf16 v{nreg + 2*(i&1)}, v{x}, v{x}")
                a.e(f"ds_write_b128 v{A0+g}, {vr(b+12*g+4*c4,4)} offset:{off + c4*4096}")
            a.e(f"v_add_f32 v{nreg}, v{nreg}, v{nreg+2}")
        for perm in ("quad_perm:[1,0,3,2]", "quad_perm:[2,3,0,1]", "row_half_mirror"):
            for g in range(2):
                nreg = TMP + 8 + g
                a.e(f"v_add_f32_dpp v{nreg}, v{nreg}, v{nreg} {perm} row_mask:0xf bank_mask:0xf")
        for g in range(2): a.e(f"v_cvt_pk_bf16_f32 v{TMP+8+g}, 0, v{TMP+8+g}")
        for g in range(2): a.e(f"v_mul_f32 v{TMP+8+g}, -0.5, v{TMP+8+g}")
        for g in range(2): a.e(f"ds_write_b32 v5, v{TMP+8+g} offset:{T*128 + g*32}")
        if kind == "Q": a.e("v_add_u32 v3, 12288, v3\nv_add_u32 v4, 12288, v4")
        a.e("s_waitcnt lgkmcnt(0)")
        stamp(a, 3 + 3*T, 2)
    for T in range(8):
        convert("K", T)
        ev(("c", T))
        if T == 1: a.e("s_barrier")
        if T == 2: a.e("s_barrier")
        if T >= 2:
            wait_for(("V", T - 2))
            a.e("s_barrier")
        stamp(a, 4 + 3*T, 2)
        ev(("b", T))
    wait_for(("V", 6))
    sync_step(5)
    a.e("s_barrier")
    ev(("b", "7a"))
    convert("Q", 0)
    wait_for(("V", 7))
    a.e("s_barrier")
    ev(("b", "7b"))
    convert("Q", 1)
    convert("Q", 2)
    a.e("s_barrier\ns_barrier\ns_barrier")
    for t in range(3, 8):
        convert("Q", t)
        a.e("s_barrier")
        pass
    a.e(f"v_lshlrev_b32 v{V_L16}, 4, v{V_LANE}")
    a.e(f"s_mul_i32 s{S_T1}, s{S_HEAD}, {PART_SZ}\ns_add_u32 s{S_T1}, s{S_T1}, {WS_FIN}")
    srd(a, SRD_F, S_WS, S_T1, PART_SZ)
    assert cfg.QPB in (4, 5, 6)
    a.e("s_barrier")
    if cfg.QPB <= 5:
        for x in kv_load_list(): a.e(x)
    a.e("s_barrier")
    if cfg.QPB == 6:
        for x in kv_load_list(): a.e(x)
    a.e(f"s_cmp_eq_u32 s{S_WAVE}, 6\ns_cbranch_scc0 L_pp6")
    a.e(f"s_mul_i32 s{S_T0}, s{S_WAVE}, 12288\nv_add_u32 v{V_PHR}, s{S_T0}, v{V_L16}")
    do_pickup(a)
    a.label("L_pp6")
    for x in kv_write_list(): a.e(x)
    a.e("s_waitcnt lgkmcnt(0)")
    a.e("s_branch L_fin")
    a.inprod = False

def FB(k): return V_FB + 4*(k % 8)
class Item:
    def __init__(self, tag, reads, mfma):
        self.tag = tag; self.reads = reads; self.mfma = mfma
def itemA(j, D, p1):
    def reads(b): return [f"ds_read_b128 {vr(b,4)}, v{V_A+(j&3)} offset:{(j>>2)*4096}"]
    def mfma(b):
        fp = vr(V_P+4*j, 4); c = "0" if j == 0 else vr(D, 16)
        return f"v_mfma_f32_32x32x16_bf16 {vr(D,16)}, {vr(b,4)}, {fp}, {c}" if p1 else f"v_mfma_f32_32x32x16_bf16 {vr(D,16)}, {fp}, {vr(b,4)}, {c}"
    return Item(("A", j), reads, mfma)
def itemB(idx):
    jj, dt = idx // 6, idx % 6
    base = V_VE if dt % 2 == 0 else V_VO
    def reads(b): return [f"ds_read_b64_tr_b16 {vr(b+2*u,2)}, v{base} offset:{(dt>>1)*4096+(16*jj+8*u)*128}" for u in range(2)]
    def mfma(b): return f"v_mfma_f32_32x32x16_bf16 {vr(V_ACC+16*dt,16)}, {vr(V_PHI+4*jj,4)}, {vr(b,4)}, {vr(V_ACC+16*dt,16)}"
    return Item(("B", idx), reads, mfma)
def issue_item(lq, it, k, uid):
    rs = it.reads(FB(k))
    for n, r in enumerate(rs): lq.issue(r, (uid, k, n))
    return (uid, k, len(rs)-1)
def emit(a, x):
    if callable(x): x()
    else: a.e(x)
def run_stream(a, lq, items, nxt, side, k0=0, pend=None, depth=None):
    D = depth or cfg.DEPTH
    n = len(items)
    pend = dict(pend or {})
    out = {}
    for k in range(n):
        if cfg.WAIT2 and k % 2 == 0 and k + 1 < n and (k + 1) in pend: lq.wait(pend[k + 1])
        lq.wait(pend[k])
        a.e(items[k].mfma(FB(k0 + k)))
        kk = k + D
        if kk < n:
            pend[kk] = issue_item(lq, items[kk], k0 + kk, "c")
        elif nxt is not None and kk - n < len(nxt):
            out[kk - n] = issue_item(lq, nxt[kk - n], k0 + kk, "n")
        for x in side.get(k, []): emit(a, x)
    return out
def prime(lq, items, k0=0, depth=None):
    D = depth or cfg.DEPTH
    return {k: issue_item(lq, items[k], k0 + k, "p") for k in range(D)}
def spread(L, lo, hi, side=None):
    side = side if side is not None else {}
    n = hi - lo
    k = 0
    for p in range(n):
        upto = (len(L) * (p + 1)) // n
        side.setdefault(lo + p, [])
        while k < upto:
            side[lo + p].append(L[k]); k += 1
    return side

def signal(a, lds_off, target, flag_off, name):
    a.e(f"""v_mov_b32 v{V_T0}, {L_CNT}
v_mov_b32 v{V_T0+1}, 1
s_mov_b32 exec_lo, 1
s_mov_b32 exec_hi, 0
ds_add_rtn_u32 v{V_T0+2}, v{V_T0}, v{V_T0+1} offset:{lds_off}
s_waitcnt lgkmcnt(0)
v_readfirstlane_b32 s{S_T0}, v{V_T0+2}
s_cmp_eq_u32 s{S_T0}, {target-1}
s_cbranch_scc0 L_sig_{name}
s_lshl_b32 s{S_T0}, s{S_CHUNK}, 2
v_mov_b32 v{V_T0}, s{S_T0}
v_mov_b32 v{V_T0+1}, s{S_NONCE}
s_cmp_lg_u32 s{S_FAST}, 0
s_cbranch_scc1 L_sigf_{name}
global_store_dword v{V_T0}, v{V_T0+1}, s[{S_FLG}:{S_FLG+1}] offset:{flag_off} sc1
s_branch L_sig_{name}""")
    a.label(f"L_sigf_{name}")
    a.e(f"global_store_dword v{V_T0}, v{V_T0+1}, s[{S_FLG}:{S_FLG+1}] offset:{flag_off+256}")
    a.label(f"L_sig_{name}")
    a.e("s_mov_b64 exec, -1")

def poll_block(a, flag_off, name):
    a.e(f"""s_mov_b32 s{S_SPIN}, 0
v_and_b32 v{V_T0}, 7, v{V_LANE}
v_lshlrev_b32 v{V_T0}, 2, v{V_T0}
v_and_b32 v{V_T0+1}, 8, v{V_LANE}
v_lshl_add_u32 v{V_T0}, v{V_T0+1}, 5, v{V_T0}""")
    a.label(f"L_poll_{name}")
    a.e(f"""s_mov_b32 exec_lo, 0xffff
s_mov_b32 exec_hi, 0
global_load_dword v{V_FL}, v{V_T0}, s[{S_FLG}:{S_FLG+1}] offset:{flag_off} sc1
s_mov_b64 exec, -1
s_waitcnt vmcnt(0)
v_cmp_eq_u32 vcc, s{S_NONCE}, v{V_FL}
s_nop 1
s_and_b32 s{S_T3}, vcc_lo, 0xffff
s_lshr_b32 s{S_T0}, s{S_T3}, 8
s_or_b32 s{S_T3}, s{S_T3}, s{S_T0}
s_and_b32 s{S_T3}, s{S_T3}, 0xff
s_cmp_eq_u32 s{S_T3}, 0xff
s_cbranch_scc1 L_polld_{name}
s_add_u32 s{S_SPIN}, s{S_SPIN}, 1
s_cmp_lt_u32 s{S_SPIN}, 0x80000
s_cbranch_scc1 L_poll_{name}""")
    a.label(f"L_polld_{name}")

def kn_reads(lq):
    def f():
        for q in range(4):
            lq.issue(f"ds_read_b128 {vr(V_KN+4*q,4)}, v{V_XN} offset:{q*32}", ("K", q))
        lq.a.e(f"v_add_u32 v{V_XN}, 128, v{V_XN}")
    return f
def xs_adv(a):
    def f():
        a.e(f"""s_add_u32 s{S_SLOT}, s{S_SLOT}, 1
s_cmp_eq_u32 s{S_SLOT}, {XS_R}
s_cselect_b32 s{S_DLT}, s{S_CM24K}, s{S_C12K}
s_cselect_b32 s{S_SLOT}, 0, s{S_SLOT}""")
        for r in range(V_A, V_A+4): a.e(f"v_add_u32 v{r}, s{S_DLT}, v{r}")
    return f
def xs_addr(a, base):
    a.e(f"""v_and_b32 v176, 31, v{V_LANE}
v_lshrrev_b32 v177, 5, v{V_LANE}
v_lshrrev_b32 v178, 1, v176
v_and_b32 v178, 7, v178
v_lshlrev_b32 v179, 7, v176
v_add_u32 v179, {base}, v179""")
    for k in range(4):
        a.e(f"""v_add_u32 v180, {2*k}, v177
v_xor_b32 v180, v180, v178
v_lshl_add_u32 v{V_A+k}, v180, 4, v179""")

def compute(a):
    lq = LQ(a)
    D = cfg.DEPTH
    a.e("s_setprio 3")
    a.e(f"""v_lshrrev_b32 v160, 3, v{V_LANE}
v_and_b32 v161, 7, v{V_LANE}
v_mul_u32_u24 v162, 384, v160
v_lshrrev_b32 v164, 1, v160
v_xor_b32 v164, v164, v161
v_lshl_add_u32 v164, v164, 4, v162
v_xor_b32 v165, 64, v164
s_mul_i32 s{S_T1}, s{S_WAVE}, 12288""")
    srd(a, SRD_P, S_P, S_T1, 12288)
    a.e(f"s_add_u32 s{S_T2}, s{S_T1}, 24576")
    for cb in range(3):
        for G in range(4):
            a.e(f"s_add_u32 m0, s{S_T2}, {cb*4096+G*1024}\ns_mov_b32 s{S_T3}, {G*3072+cb*128}")
            a.e(f"buffer_load_dwordx4 v{164+(G&1)}, s[{SRD_P}:{SRD_P+3}], s{S_T3} offen lds")
    a.e("s_setprio 0")
    xs_addr(a, L_XS)
    a.e(f"""v_lshlrev_b32 v{V_L16}, 4, v{V_LANE}
v_lshlrev_b32 v{V_XN}, 4, v177
v_add_u32 v{V_XN}, {L_XN}, v{V_XN}
v_and_b32 v178, 15, v{V_LANE}
v_lshrrev_b32 v179, 2, v178
v_lshl_add_u32 v179, v177, 2, v179
v_lshlrev_b32 v179, 7, v179
v_bfe_u32 v180, v{V_LANE}, 4, 1
v_lshl_add_u32 v179, v180, 5, v179
v_and_b32 v180, 3, v178
v_lshl_add_u32 v179, v180, 3, v179
v_bfe_u32 v180, v178, 3, 1
v_lshl_add_u32 v{V_VE}, v180, 6, v179
v_xor_b32 v180, 1, v180
v_lshl_add_u32 v{V_VO}, v180, 6, v179
v_mov_b32 v{V_L2E}, {LOG2E}
v_mov_b32 v181, {L_CNT}
v_mov_b32 v182, 0
v_mov_b32 v183, 0
ds_write_b64 v181, v[182:183]
v_mov_b32 v{V_ONES}, 0x3f803f80
v_mov_b32 v{V_ONES+1}, 0x3f803f80
s_mov_b32 s{S_SLOT}, 0""")
    for r in range(4): a.e(f"v_mov_b32 v{V_KS4+r}, 0")
    for r in range(96): a.e(f"v_mov_b32 v{V_ACC+r}, 0")
    for r in range(8): a.e(f"v_mov_b32 v{V_PHI+r}, 0")
    a.e(f"s_mul_i32 s{S_T1}, s{S_WAVE}, 12288\ns_add_u32 s{S_T1}, s{S_T1}, {24576 - L_XS}")
    for k in range(4): a.e(f"v_add_u32 v{184+k}, s{S_T1}, v{V_A+k}")
    flag_base(a)
    a.e("s_waitcnt vmcnt(0)")
    for j in range(12):
        a.e(f"ds_read_b128 {vr(V_P+4*j,4)}, v{184+(j&3)} offset:{(j>>2)*4096}")
    a.e("s_waitcnt lgkmcnt(0)")
    stamp(a, 1)
    a.e("s_barrier")
    stamp(a, 2)
    if cfg.DIAG: a.e("s_memrealtime s[76:77]\ns_memtime s[80:81]\ns_waitcnt lgkmcnt(0)\ns_mov_b32 s88, s76\ns_mov_b32 s89, s80")
    A0 = [itemA(j, V_D1, True) for j in range(12)]
    pend = prime(lq, A0, 0)
    run_stream(a, lq, A0, None, {}, 0, pend)
    xs_adv(a)()
    a.e("s_barrier")
    a.e(f"s_mov_b32 s{S_T}, 0")
    Bs = [itemB(i) for i in range(12)]
    ks4 = [f"v_mfma_f32_4x4x4_16b_bf16 {vr(V_KS4,4)}, {vr(V_ONES,2)}, {vr(V_PHI+2*r,2)}, {vr(V_KS4,4)}" for r in range(4)]
    def seqZ(par): return Bs + [itemA(j, V_D1 + 16*(1-par), True) for j in range(12)]
    vadv = [f"v_add_u32 v{V_VE}, 12288, v{V_VE}", f"v_add_u32 v{V_VO}, 12288, v{V_VO}"]
    def e_order(el):
        if not el: return [], []
        if cfg.EORD == 0: return el[:-8], el[-8:]
        d = cfg.EORD
        items = []
        for k in range(2, 5):
            for r in range(16): items.append((r + k*d, k, el[16*k + r]))
        items.sort(key=lambda t: (t[0], -t[1]))
        return el[:32] + [x[2] for x in items], el[-8:]
    KNPOS = 12
    kwait = lambda: lq.wait(("K", 3))
    def with_kwait(body):
        idx = next(n for n, x in enumerate(body) if x.startswith("v_add_f32"))
        return body[:idx] + [kwait] + body[idx:]
    kn_reads(lq)()
    A1 = [itemA(j, V_D1 + 16, True) for j in range(12)]
    pend = prime(lq, A1, 0)
    stamp_idx(a, S_T, 4, 3)
    a.e("s_barrier")
    stamp_idx(a, S_T, 4, 4)
    el = exp_list(V_D1, lambda r: V_KN + r, V_PHI)
    side = {}
    if el:
        e0 = el[:16] + [kwait] + el[16:]
        spread(e0[:33], 0, 4, side)
        spread(e0[33:], 5, 12, side)
    side.setdefault(4, []).append(kn_reads(lq))
    side.setdefault(11 - D, []).append(xs_adv(a))
    assert 11 - D == 4
    pend = run_stream(a, lq, A1, seqZ(1), side, 0, pend)
    stamp_idx(a, S_T, 4, 6)
    a.e(f"s_mov_b32 s{S_T}, 1")
    a.label("L_p1")
    for par in (1, 0):
        stamp_idx(a, S_T, 4, 3)
        a.e("s_barrier")
        stamp_idx(a, S_T, 4, 4)
        side = {}
        body, pack = e_order(exp_list(V_D1 + 16*par, lambda r: V_KN + r, V_PHI))
        for r in range(4): side.setdefault(1 + 3*r, []).append(ks4[r])
        if body:
            spread(with_kwait(body), 0, 22, side)
            spread(pack, 22, 24, side)
        side.setdefault(11 - D, []).extend(vadv)
        side.setdefault(23 - D, []).append(xs_adv(a))
        side.setdefault(KNPOS, []).append(kn_reads(lq))
        pend = run_stream(a, lq, seqZ(par), seqZ(1-par), side, 12, pend)
        stamp_idx(a, S_T, 4, 6)
        a.e(f"s_add_u32 s{S_T}, s{S_T}, 1")
    a.e(f"s_cmp_lt_u32 s{S_T}, 7\ns_cbranch_scc1 L_p1")
    stamp_idx(a, S_T, 4, 3)
    a.e("s_barrier")
    stamp_idx(a, S_T, 4, 4)
    side = {}
    el = exp_list(V_D1 + 16, lambda r: V_KN + r, V_PHI)
    for r in range(4): side.setdefault(1 + 3*r, []).append(ks4[r])
    if el:
        spread(with_kwait(el[:-8]), 0, 12, side)
        side.setdefault(11, []).extend(el[-8:])
    side.setdefault(11 - D, []).extend(vadv)
    pend = run_stream(a, lq, Bs, Bs, side, 12, pend)
    stamp_idx(a, S_T, 4, 6)
    a.e(f"v_mov_b32 v{V_T0}, {L_CNT}")
    lq.issue(f"ds_read_b64 v[{V_T0+0}:{V_T0+1}], v{V_T0} offset:8", ("N",))
    SP = S_WS if cfg.SCR_WS else S_OUT
    srd(a, SRD_O, SP, S_ROWOFF, 98304)
    a.e(f"s_mul_i32 s{S_T1}, s{S_HEAD}, 786432")
    srd(a, SRD_W, SP, S_T1, 786432)
    a.e(f"s_mul_i32 s{S_T1}, s{S_HEAD}, {PART_SZ}\ns_add_u32 s{S_T1}, s{S_T1}, {WS_FIN}")
    srd(a, SRD_F, S_WS, S_T1, PART_SZ)
    lq.wait(("N",))
    a.e(f"v_readfirstlane_b32 s{S_NONCE}, v{V_T0}\nv_readfirstlane_b32 s{S_FAST}, v{V_T0+1}")
    a.e(f"s_lshl_b32 s{S_VG}, s{S_WAVE}, 11")
    qsave = list(lq.q); psave = dict(pend)
    def final_b(pub):
        lq.q = list(qsave)
        TB = V_D1
        def pubtile(dt):
            L = []
            for jj in range(2):
                tb = TB + 4*((dt*2+jj) % 8)
                for i in range(4):
                    L.append(f"v_cvt_pk_bf16_f32 v{tb+i}, v{V_ACC+16*dt+8*jj+2*i}, v{V_ACC+16*dt+8*jj+2*i+1}")
                L.append(f"buffer_store_dwordx4 {vr(tb,4)}, v{V_L16}, s[{SRD_O}:{SRD_O+3}], s{S_VG} offen offset:{jj*1024} {pub}")
            if dt < 5: L.append(f"s_add_u32 s{S_VG}, s{S_VG}, 12288")
            return L
        side = {}
        for r in range(4): side.setdefault(1 + 2*r, []).append(ks4[r])
        for dt in range(4): side.setdefault(8 + dt, []).extend(pubtile(dt))
        run_stream(a, lq, Bs, None, side, 0, psave)
        for dt in (4, 5):
            for x in pubtile(dt): a.e(x)
        a.e(f"v_lshlrev_b32 v{V_T0+1}, 2, v{V_LANE}\ns_lshl_b32 s{S_T2}, s{S_WAVE}, 8\ns_add_u32 s{S_T2}, s{S_T2}, {PART_SZ}")
        a.e(f"buffer_store_dword v{V_KS4}, v{V_T0+1}, s[{SRD_O}:{SRD_O+3}], s{S_T2} offen {pub}")
    a.e(f"s_cmp_lg_u32 s{S_FAST}, 0\ns_cbranch_scc1 L_pubf")
    final_b(cfg.PUB)
    a.e("s_branch L_pubd")
    a.label("L_pubf")
    final_b("")
    a.label("L_pubd")
    lq.q = []
    stamp(a, 40)
    if cfg.DIAG: a.e("s_memrealtime s[76:77]\ns_memtime s[80:81]\ns_waitcnt lgkmcnt(0)\ns_mov_b32 s90, s76\ns_mov_b32 s91, s80")
    xs_addr(a, 0)
    V_ID = 206; V_SA = 192; V_KL = 196 - 196 + 64 + 0
    V_O8 = 204
    V_KL = 240
    a.e(f"""v_lshlrev_b32 v{V_XN}, 2, v176
v_add_u32 v{V_XN}, {L_XN + 8*128}, v{V_XN}
s_lshl_b32 s{S_T0}, s{S_WAVE}, 11
v_add_u32 v{V_PHW}, s{S_T0}, v{V_L16}
s_mul_i32 s{S_T0}, s{S_WAVE}, 12288
v_add_u32 v{V_PHR}, s{S_T0}, v{V_L16}
v_and_b32 v{V_T0}, 3, v{V_LANE}
v_mov_b32 v{V_T0+1}, 0x3f80
v_mov_b32 v{V_T0+2}, 0x3f800000
v_cmp_eq_u32 vcc, 0, v{V_T0}
v_cndmask_b32 v{V_ID}, 0, v{V_T0+1}, vcc
v_cmp_eq_u32 vcc, 1, v{V_T0}
v_cndmask_b32 v{V_ID}, v{V_ID}, v{V_T0+2}, vcc
v_cmp_eq_u32 vcc, 2, v{V_T0}
v_cndmask_b32 v{V_ID+1}, 0, v{V_T0+1}, vcc
v_cmp_eq_u32 vcc, 3, v{V_T0}
v_cndmask_b32 v{V_ID+1}, v{V_ID+1}, v{V_T0+2}, vcc
s_mul_i32 s{S_T0}, s{S_CHUNK}, 9216
s_mul_i32 s{S_T1}, s{S_WAVE}, 1536
s_add_u32 s{S_VG}, s{S_T0}, s{S_T1}
v_lshlrev_b32 v{V_O8}, 3, v{V_LANE}
v_add_u32 v{V_O8}, 1024, v{V_O8}""")
    stamp(a, 41)
    if cfg.SIGA_EARLY:
        a.e("s_waitcnt vmcnt(0)")
        stamp(a, 42)
        signal(a, 0, 6, 0, "A")
    a.e("s_barrier")
    stamp(a, 43)
    def qadv():
        for r in range(V_A, V_A+4): a.e(f"v_add_u32 v{r}, 12288, v{r}")
    Q0 = [itemA(j, V_D1, False) for j in range(12)]
    pend = prime(lq, Q0, 0)
    run_stream(a, lq, Q0, None, {}, 0, pend)
    qadv()
    if not cfg.SIGA_EARLY:
        a.e("s_waitcnt vmcnt(0)")
        stamp(a, 42)
        signal(a, 0, 6, 0, "A")
    a.e("s_barrier")
    def seqQ(par): return [itemA(j, V_D1 + 16*(1-par), False) for j in range(12)]
    pend = prime(lq, seqQ(0), 12)
    def sb_load_list(p0, p1):
        L = [f"s_add_u32 s{S_T2}, s{S_VG}, {p0*98304}"]
        for p in range(p0, p1):
            L.append(f"buffer_load_dwordx4 {vr(LAND+6*p,4)}, v{V_L16}, s[{SRD_W}:{SRD_W+3}], s{S_T2} offen {cfg.GET}")
            L.append(f"buffer_load_dwordx2 {vr(LAND+6*p+4,2)}, v{V_O8}, s[{SRD_W}:{SRD_W+3}], s{S_T2} offen {cfg.GET}")
            if p < p1 - 1: L.append(f"s_add_u32 s{S_T2}, s{S_T2}, 98304")
        return L
    def sb_sum_list():
        L = ["s_waitcnt vmcnt(8)"]
        for p in range(8):
            for c in range(3):
                cc = "0" if p == 0 else vr(V_SA+4*c, 4)
                L.append(f"v_mfma_f32_4x4x4_16b_bf16 {vr(V_SA+4*c,4)}, {vr(V_ID,2)}, {vr(LAND+6*p+2*c,2)}, {cc}")
        return L
    KL = [7, 8, 9, 205, V_KS4, 15, V_FL, V_T0+3]
    def ks_load_list():
        L = [f"v_lshlrev_b32 v{V_T0+2}, 2, v{V_LANE}", f"s_lshl_b32 s{S_T2}, s{S_WAVE}, 8", f"s_add_u32 s{S_T2}, s{S_T2}, {PART_SZ}"]
        for c in range(8):
            L.append(f"buffer_load_dword v{KL[c]}, v{V_T0+2}, s[{SRD_W}:{SRD_W+3}], s{S_T2} offen {cfg.GET}")
            if c < 7: L.append(f"s_add_u32 s{S_T2}, s{S_T2}, 98304")
        return L
    def ks_fin_list():
        K = KL[0]; K1 = KL[1]
        L = ["s_waitcnt vmcnt(0)"]
        for c in range(1, 8): L.append(f"v_add_f32 v{K}, v{K}, v{KL[c]}")
        L += [f"v_mov_b32 v{K1}, v{K}", "s_nop 1", f"v_permlane32_swap_b32 v{K}, v{K1}", "s_nop 1", f"v_add_f32 v{K}, v{K}, v{K1}",
              f"v_cvt_pk_bf16_f32 v{K}, v{K}, v{K}", f"v_and_b32 v{K1}, 31, v{V_LANE}", f"v_lshlrev_b32 v{K1}, 1, v{K1}",
              f"s_lshl_b32 s{S_T2}, s{S_WAVE}, 6", f"s_add_u32 s{S_T2}, s{S_T2}, {L_KS}", f"v_add_u32 v{K1}, s{S_T2}, v{K1}",
              lambda: lq.issue(f"ds_write_b16 v{K1}, v{K}", ("X",))]
        return L
    def sb_store(pub):
        a.e(f"buffer_store_dwordx4 {vr(LAND,4)}, v{V_L16}, s[{SRD_F}:{SRD_F+3}], s{S_VG} offen {pub}")
        a.e(f"buffer_store_dwordx2 {vr(LAND+4,2)}, v{V_O8}, s[{SRD_F}:{SRD_F+3}], s{S_VG} offen {pub}")
    def sigB():
        a.e("s_waitcnt vmcnt(0)")
        signal(a, 4, 6, 128, "B")
        lq.q = []
    for q in range(8):
        par = q % 2
        k0 = 12 if par == 0 else 0
        a.e("s_barrier")
        stamp(a, 44 + q)
        if 1 <= q <= 6:
            a.e(f"s_cmp_eq_u32 s{S_WAVE}, {q-1}\ns_cbranch_scc0 L_cpk_{q}")
            do_pickup(a)
            a.e("s_waitcnt lgkmcnt(0)")
            a.label(f"L_cpk_{q}")
        lq.issue(f"ds_read_b32 v{V_QN}, v{V_XN} offset:{q*128}", ("K", 0))
        side = {}
        el = exp_list(V_D1 + 16*par, lambda r: V_QN, V_PHI, cfg.QROUND)
        nlead = 16 if cfg.QROUND else 0
        el2 = el[:nlead] + [lambda: lq.wait(("K", 0))] + el[nlead:]
        spread(el2, 0 if cfg.QROUND else 1, 12, side)
        side.setdefault(11 - D, []).append(qadv)
        extra = []
        if q == cfg.QL1: extra = extra + sb_load_list(0, 4)
        if q == cfg.QL2: extra = extra + sb_load_list(4, 8) + ks_load_list()
        if q == cfg.QS: extra = extra + sb_sum_list()
        if q == cfg.QPB + 1: extra = extra + kv_load_list()
        if q == 7: extra = extra + kv_write_list()
        if extra: spread(extra, 0, 11, side)
        if q == cfg.QS + 1: side.setdefault(4, []).append(sigB)
        if q < 7:
            pend = run_stream(a, lq, seqQ(par), seqQ(1-par) if q < 6 else None, side, k0, pend)
        elif cfg.DENQ7:
            a.e(f"v_lshrrev_b32 v{V_A}, 5, v{V_LANE}\nv_lshlrev_b32 v{V_A}, 3, v{V_A}\nv_add_u32 v{V_A}, {L_KS}, v{V_A}")
            def itemD(f):
                o = 8*(f >> 1) + 4*(f & 1)
                def reads(b): return [f"ds_read2_b64 {vr(b,4)}, v{V_A} offset0:{o} offset1:{o+2}"]
                def mfma(b):
                    c = "0" if f == 0 else vr(V_D1, 16)
                    return f"v_mfma_f32_32x32x16_bf16 {vr(V_D1,16)}, {vr(b,4)}, {vr(V_PQ+4*f,4)}, {c}"
                return Item(("D", f), reads, mfma)
            Ds = [itemD(f) for f in range(12)]
            side[11 - D] = [x for x in side.get(11 - D, []) if x is not qadv]
            pd = prime(lq, Ds, 0)
            run_stream(a, lq, Ds, None, side, 0, pd)
        else:
            for p_ in range(12):
                for x in side.get(p_, []):
                    if x is qadv: continue
                    emit(a, x)
        stamp(a, 3 + 3*q, 3)
        for jj in range(2):
            lq.issue(f"ds_write_b128 v{V_PHW}, {vr(V_PHI+4*jj,4)} offset:{jj*1024}", ("W", jj))
        if q < 7: a.e(f"v_add_u32 v{V_PHW}, 12288, v{V_PHW}")
        if q == 0:
            a.e(f"s_cmp_lg_u32 s{S_WAVE}, 0\ns_cbranch_scc1 L_npa")
            poll_block(a, 0, "A")
            if cfg.WBL2:
                a.e(f"s_cmp_eq_u32 s{S_FAST}, 0\ns_cbranch_scc1 L_npa")
                if cfg.WBL2 == 1: a.e(f"s_cmp_lg_u32 s{S_CHUNK}, 0\ns_cbranch_scc1 L_npa")
                a.e("buffer_wbl2 sc1")
            a.label("L_npa")
        if q == cfg.QS:
            for i in range(6): a.e(f"v_cvt_pk_bf16_f32 v{LAND+i}, v{V_SA+2*i}, v{V_SA+2*i+1}")
            for x in ks_fin_list(): emit(a, x)
            a.e(f"s_cmp_lg_u32 s{S_FAST}, 0\ns_cbranch_scc1 L_sbf")
            sb_store(cfg.PUB)
            a.e("s_branch L_sbd")
            a.label("L_sbf")
            sb_store("")
            a.label("L_sbd")
        if q == cfg.QPB:
            a.e(f"s_cmp_lg_u32 s{S_WAVE}, 0\ns_cbranch_scc1 L_npb")
            poll_block(a, 128, "B")
            a.label("L_npb")
        stamp(a, 4 + 3*q, 3)
        a.e("s_waitcnt lgkmcnt(0)")
        lq.q = []
    if cfg.DENQ7:
        a.e(f"v_add_f32 v144, {EPS}, v{V_D1}\nv_rcp_f32 v144, v144")
    stamp(a, 52)

def fin(a):
    a.label("L_fin")
    a.e("s_barrier")
    stamp(a, 54)
    a.e(f"s_cmp_eq_u32 s{S_WAVE}, 7\ns_cbranch_scc0 L_fpk")
    a.e(f"s_mul_i32 s{S_T0}, s{S_WAVE}, 12288\nv_add_u32 v{V_PHR}, s{S_T0}, v{V_L16}")
    do_pickup(a)
    a.e("s_waitcnt lgkmcnt(0)")
    a.label("L_fpk")
    stamp(a, 56)
    if cfg.DIAG: a.e("s_memrealtime s[76:77]\ns_memtime s[80:81]\ns_waitcnt lgkmcnt(0)\ns_mov_b32 s92, s76\ns_mov_b32 s93, s80")
    p2b(a)
    stamp(a, 57)
    if cfg.STAMPS: a.e("s_waitcnt vmcnt(0)")
    stamp(a, 58)
    stamp_flush(a)
    if cfg.DIAG:
        a.e("s_waitcnt vmcnt(0)")
        a.e("s_memrealtime s[76:77]\ns_memtime s[80:81]\ns_waitcnt lgkmcnt(0)\ns_mov_b32 s94, s76\ns_mov_b32 s95, s80")
        a.e(f"""s_cmp_lg_u32 s{S_WAVE}, 0
s_cbranch_scc1 L_end
s_cmp_lg_u32 s{S_CHUNK}, 3
s_cbranch_scc1 L_end
s_cmp_ge_u32 s{S_HEAD}, 8
s_cbranch_scc1 L_end
s_sub_u32 s88, s88, s86
s_sub_u32 s90, s90, s86
s_sub_u32 s92, s92, s86
s_sub_u32 s94, s94, s86
s_sub_u32 s89, s89, s87
s_sub_u32 s91, s91, s87
s_sub_u32 s93, s93, s87
s_sub_u32 s95, s95, s87
s_mov_b32 s96, s88
s_cmp_eq_u32 s{S_HEAD}, 1
s_cselect_b32 s96, s90, s96
s_cmp_eq_u32 s{S_HEAD}, 2
s_cselect_b32 s96, s92, s96
s_cmp_eq_u32 s{S_HEAD}, 3
s_cselect_b32 s96, s94, s96
s_cmp_eq_u32 s{S_HEAD}, 4
s_cselect_b32 s96, s89, s96
s_cmp_eq_u32 s{S_HEAD}, 5
s_cselect_b32 s96, s91, s96
s_cmp_eq_u32 s{S_HEAD}, 6
s_cselect_b32 s96, s93, s96
s_cmp_eq_u32 s{S_HEAD}, 7
s_cselect_b32 s96, s95, s96
s_lshl_b32 s97, s{S_HEAD}, 3
v_mov_b32 v2, s97
v_mov_b32 v3, s96
s_mov_b32 exec_lo, 1
s_mov_b32 exec_hi, 0
global_store_dword v2, v3, s[{S_DBG}:{S_DBG+1}] offset:4 sc1""")

def p2b(a):
    lq = LQ(a)
    V_O = 112
    V_DEN = 144
    V_KF = 148
    V_DN = 160
    V_T = 176
    V_R = 184
    srd(a, SRD_O, S_OUT, S_ROWOFF, 98304)
    a.e(f"""v_and_b32 v2, 31, v{V_LANE}
v_lshrrev_b32 v3, 5, v{V_LANE}
v_lshlrev_b32 v5, 3, v3
v_add_u32 v5, {L_KS}, v5
v_lshlrev_b32 v6, 4, v{V_LANE}
s_lshl_b32 s{S_T0}, s{S_WAVE}, 12
s_add_u32 s{S_T1}, s{S_T0}, {L_XS}
v_lshlrev_b32 v7, 7, v2
v_lshl_add_u32 v7, v3, 3, v7
v_add_u32 v7, s{S_T1}, v7
v_and_b32 v9, 7, v2
v_lshrrev_b32 v10, 3, v{V_LANE}
v_and_b32 v11, 7, v{V_LANE}
v_xor_b32 v12, v11, v10
v_lshlrev_b32 v8, 7, v10
v_lshl_add_u32 v8, v12, 4, v8
v_add_u32 v8, s{S_T1}, v8
s_lshl_b32 s{S_T0}, s{S_WAVE}, 5
v_add_u32 v4, s{S_T0}, v10
v_mul_u32_u24 v4, 384, v4
v_lshl_add_u32 v4, v11, 4, v4
v_lshl_add_u32 v7, v9, 4, v7""")
    def itemF(f, O):
        def reads(b): return [f"ds_read_b128 {vr(b,4)}, v6 offset:{f*1024}"]
        def mfma(b):
            c = "0" if f == 0 else vr(O, 16)
            return f"v_mfma_f32_32x32x16_bf16 {vr(O,16)}, {vr(b,4)}, {vr(V_PQ+4*f,4)}, {c}"
        return Item(("F", f), reads, mfma)
    def itemFn(f):
        def reads(b): return [f"ds_read_b128 {vr(b,4)}, v6 offset:{12288+f*1024}"]
        return Item(("F", f), reads, None)
    seq = lambda O: [itemF(f, O) for f in range(12)]
    nxt = [itemFn(f) for f in range(12)]
    def kread(f):
        o = 8*(f >> 1) + 4*(f & 1)
        lq.issue(f"ds_read2_b64 {vr(V_KF+4*(f%3),4)}, v5 offset0:{o} offset1:{o+2}", ("K", f))
    kread(0); kread(1)
    pend = prime(lq, seq(V_O), 0)
    for g in range(1, 8):
        a.e(f"v_xor_b32 v{199+g}, {g<<4}, v7")
    WA = lambda g: 7 if g == 0 else 199 + g
    if cfg.DENQ7: a.e(f"s_cmp_lt_u32 s{S_WAVE}, 6\ns_cbranch_scc1 L_noden")
    for f in range(12):
        lq.wait(("K", f))
        c = "0" if f == 0 else vr(V_DN, 16)
        a.e(f"v_mfma_f32_32x32x16_bf16 {vr(V_DN,16)}, {vr(V_KF+4*(f%3),4)}, {vr(V_PQ+4*f,4)}, {c}")
        if f + 2 < 12: kread(f + 2)
    a.e(f"s_nop 7\ns_nop 3\nv_add_f32 v{V_DEN}, {EPS}, v{V_DN}\nv_rcp_f32 v{V_DEN}, v{V_DEN}")
    if cfg.DENQ7:
        a.label("L_noden")
        a.e("s_waitcnt lgkmcnt(0)")
        lq.q = []
    pend = run_stream(a, lq, seq(V_O), nxt, {}, 0, pend)
    a.e(f"""v_add_u32 v6, 12288, v6""")
    def epi(O, odd):
        L = []
        for r in range(16): L.append(f"v_mul_f32 v{O+r}, v{O+r}, v{V_DEN}")
        for r in range(8): L.append(f"v_cvt_pk_bf16_f32 v{V_T+r}, v{O+2*r}, v{O+2*r+1}")
        for q in range(4):
            L.append(lambda q=q: lq.issue(f"ds_write_b64 v{WA(4*odd+q)}, {vr(V_T+2*q,2)}", ("W",)))
        if odd:
            for G in range(4):
                L.append(lambda G=G: lq.issue(f"ds_read_b128 {vr(V_R+4*G,4)}, v8 offset:{G*1024}", ("R", G)))
        return L
    def stores(pair):
        L = []
        for G in range(4):
            def st(G=G):
                lq.wait(("R", G))
                a.e(f"s_mov_b32 s{S_T}, {pair*128 + G*3072}")
                a.e(f"buffer_store_dwordx4 {vr(V_R+4*G,4)}, v4, s[{SRD_O}:{SRD_O+3}], s{S_T} offen {cfg.OUT_NT}")
            L.append(st)
        return L
    for dt in range(1, 6):
        O = V_O + 16*(dt % 2); Oprev = V_O + 16*((dt-1) % 2)
        side = {}
        if dt in (3, 5): spread(stores((dt-3)//2), 2, 6, side)
        spread(epi(Oprev, (dt-1) % 2), 1, 12, side)
        pend = run_stream(a, lq, seq(O), nxt if dt < 5 else None, side, 12*(dt % 2), pend)
        if dt < 5: a.e("v_add_u32 v6, 12288, v6")
    for x in epi(V_O+16, 1): emit(a, x)
    for x in stores(2): emit(a, x)
    a.e("s_waitcnt lgkmcnt(0)")

def kernel(a):
    a.e(f"""s_cmp_ge_u32 s2, 256
s_cbranch_scc1 L_end
s_load_dwordx8 s[8:15], s[0:1], 0
s_load_dwordx4 s[16:19], s[0:1], 32
s_load_dwordx2 s[20:21], s[0:1], 48
v_lshrrev_b32 v1, 6, v0
s_and_b32 s{S_HEAD}, s2, 31
s_lshr_b32 s{S_CHUNK}, s2, 5
v_readfirstlane_b32 s{S_WAVE}, v1
v_and_b32 v{V_LANE}, 63, v0
s_mul_i32 s{S_ROWOFF}, s{S_HEAD}, 786432
s_mul_i32 s26, s{S_CHUNK}, 98304
s_add_u32 s{S_ROWOFF}, s{S_ROWOFF}, s26
s_mov_b32 s{S_C12K}, 12288
s_mov_b32 s{S_CM24K}, -24576
s_lshl_b32 s{S_T0}, s{S_WAVE}, 2
s_lshr_b32 s{S_WAVE}, {hex(cfg.ROLEMAP)}, s{S_T0}
s_and_b32 s{S_WAVE}, s{S_WAVE}, 15
s_cmp_ge_u32 s{S_WAVE}, 6
s_waitcnt lgkmcnt(0)""")
    if cfg.STAMPS:
        a.e("v_mov_b32 v255, 0\nv_mov_b32 v254, 0"); stamp(a, 0); a.e(f"s_cmp_ge_u32 s{S_WAVE}, 6")
    if cfg.DIAG:
        a.e("s_memrealtime s[76:77]\ns_memtime s[80:81]\ns_waitcnt lgkmcnt(0)\ns_mov_b32 s86, s76\ns_mov_b32 s87, s80")
        a.e(f"s_cmp_ge_u32 s{S_WAVE}, 6")
    a.e("s_cbranch_scc1 L_prod")
    compute(a)
    a.e("s_branch L_fin")
    producer(a)
    fin(a)
    a.label("L_end")
    a.e("s_endpgm")

HEADER = open("standalone__linear_kernel_performer__prompt.s.ref").read().split("; Override launch")[0]

def main(path):
    a = Asm(); a.inprod = False; kernel(a)
    body = a.finalize()
    txt = HEADER + f"; @launch grid=(256,1,1) block=(512,1,1) lds={LDS_BYTES}\n"
    txt += f""".amdgcn_target "amdgcn-amd-amdhsa--gfx950"
.text
.globl {NAME}
.p2align 8
.type {NAME},@function
{NAME}:
{body}.section .rodata,"a"
.p2align 6
.amdhsa_kernel {NAME}
  .amdhsa_next_free_vgpr 256
  .amdhsa_next_free_sgpr 102
  .amdhsa_accum_offset 256
  .amdhsa_group_segment_fixed_size 0
  .amdhsa_kernarg_size 56
  .amdhsa_user_sgpr_count 2
  .amdhsa_user_sgpr_kernarg_segment_ptr 1
  .amdhsa_system_sgpr_workgroup_id_x 1
  .amdhsa_float_denorm_mode_32 3
.end_amdhsa_kernel
"""
    open(path, "w").write(txt)

if __name__ == "__main__":
    for arg in sys.argv[2:]:
        k, v = arg.split("=")
        cur = getattr(cfg, k)
        setattr(cfg, k, (v == "1") if isinstance(cur, bool) else (int(v, 0) if isinstance(cur, int) else v))
    main(sys.argv[1])
```

```python
import struct, sys
from asmlib import Asm, vr, sr

def f32hex(x): return "0x%08x" % struct.unpack("<I", struct.pack("<f", x))[0]
SCALE = f32hex(192 ** -0.25)
LOG2E = f32hex(1.4426950408889634)
EPS = f32hex(0.75e-6)

L_XS = 0x18000
XS_R = 3
L_XN = L_XS + 3*12288
L_KS = L_XN + 2048
L_CNT = L_KS + 512
LDS_BYTES = L_CNT + 64
PART_SZ = 73728
KSP_SZ = 1536
WS_FIN = 0x1900000
WS_FLG = 0x1D00000
WS_STAMP = 0x4000000

NAME = "standalone__linear_kernel_performer__prompt_kernel"
class Cfg:
    ROLEMAP = 0x75436210
    NT = "nt"
    STAMPS = 0
    GET = "sc1"
    DEPTH = 7
    OUT_NT = "sc1"
    QROUND = False
    CODEPF = True
    WAIT2 = True
    FASTEN = False
    QL1 = 1; QL2 = 2; QS = 3; QPB = 5
    X_NOEXP = False
    START2 = True
    SCR_WS = False
    DIAG = False
    SIGA_EARLY = True
    DENQ7 = True
    PREF = False
    TOUCH = False
    EORD = 3
    WBL2 = 0
    PREF_ALL = False
    PREF_POL = ""
    PUB = "sc1"
cfg = Cfg()

S_Q, S_K, S_V, S_P = 8, 10, 12, 14
S_OUT, S_DBG, S_WS = 16, 18, 20
S_HEAD, S_CHUNK, S_WAVE, S_ROWOFF = 22, 23, 24, 25
S_FLG = 26
SRD_X, SRD_V, SRD_P, SRD_O, SRD_W, SRD_Q, SRD_F = 28, 32, 36, 40, 44, 64, 68
S_VG, S_CAND, S_NONCE, S_SLOT = 52, 53, 54, 55
S_T, S_T0, S_T1, S_T2, S_T3, S_VB, S_FAST, S_SPIN = 56, 57, 58, 59, 60, 61, 62, 63
S_DLT, S_XCC = 72, 73
S_C12K, S_CM24K = 82, 83

V_LANE = 1
V_A = 2
V_XN = 6
V_VE, V_VO = 7, 8
V_FL = 10
V_L16 = 11
V_KS4 = 12
V_PHR = 13
V_PHW = 14
V_P = 16
V_ACC = 64
V_D1 = 160
V_KN = 192
V_PHI = 208
V_FB = 216
V_L2E = 248
V_QN = 249
V_T0 = 250
V_ONES = 252
V_PQ = 64
V_RAW = 16
LAND = 112

class LQ:
    def __init__(self, a): self.a = a; self.q = []
    def issue(self, text, tag): self.a.e(text); self.q.append(tag)
    def wait(self, tag):
        if tag not in self.q: return
        i = len(self.q) - 1 - self.q[::-1].index(tag)
        n = len(self.q) - 1 - i
        assert n <= 15, (n, self.q)
        self.a.e(f"s_waitcnt lgkmcnt({n})")
        self.q = self.q[i+1:]

def _stamp(a, idx):
    a.e("s_memrealtime s[76:77]\ns_memtime s[80:81]\ns_waitcnt lgkmcnt(0)")
    a.e(f"s_mov_b32 m0, {idx}")
    a.e("v_writelane_b32 v255, s76, m0")
    a.e("v_writelane_b32 v254, s80, m0")
def stamp(a, idx, lvl=1):
    if cfg.STAMPS == 0 or (lvl > 1 and cfg.STAMPS != lvl and not (a.inprod and cfg.STAMPS > 1)): return
    _stamp(a, idx)
def stamp_idx(a, sreg, mul, add, lvl=2):
    if cfg.STAMPS == 0 or (lvl > 1 and cfg.STAMPS != lvl): return
    a.e(f"s_mul_i32 s78, s{sreg}, {mul}\ns_add_u32 s78, s78, {add}")
    _stamp(a, "s78")
def stamp_flush(a):
    if not cfg.STAMPS: return
    a.e(f"""s_mov_b64 exec, -1
s_lshl_b32 s72, s2, 3
s_add_u32 s72, s72, s{S_WAVE}
s_lshl_b32 s72, s72, 8
s_add_u32 s72, s72, {WS_STAMP}
s_add_u32 s74, s{S_WS}, s72
s_addc_u32 s75, s{S_WS+1}, 0
v_and_b32 v253, 63, v0
v_lshlrev_b32 v253, 2, v253
global_store_dword v253, v255, s[74:75]
s_add_u32 s74, s74, 0x100000
s_addc_u32 s75, s75, 0
global_store_dword v253, v254, s[74:75]""")

def srd(a, d, ptr, off, size):
    if off is None:
        a.e(f"s_mov_b32 s{d}, s{ptr}\ns_and_b32 s{d+1}, s{ptr+1}, 0xffff")
    else:
        a.e(f"s_add_u32 s{d}, s{ptr}, s{off}\ns_addc_u32 s{d+1}, s{ptr+1}, 0\ns_and_b32 s{d+1}, s{d+1}, 0xffff")
    a.e(f"s_mov_b32 s{d+2}, {size}\ns_mov_b32 s{d+3}, 0x20000")

def flag_base(a):
    a.e(f"""s_lshl_b32 s{S_T0}, s{S_HEAD}, 9
s_add_u32 s{S_T0}, s{S_T0}, {WS_FLG}
s_add_u32 s{S_FLG}, s{S_WS}, s{S_T0}
s_addc_u32 s{S_FLG+1}, s{S_WS+1}, 0""")

def exp_list(D, kn_of, phi, rnd=True):
    L = []
    if cfg.X_NOEXP: return L
    if rnd:
        for r in range(16): L.append(f"v_cvt_pk_bf16_f32 v{D+r}, 0, v{D+r}")
    for r in range(16): L.append(f"v_add_f32 v{D+r}, v{D+r}, v{kn_of(r)}")
    if rnd:
        for r in range(16): L.append(f"v_cvt_pk_bf16_f32 v{D+r}, 0, v{D+r}")
    for r in range(16): L.append(f"v_fma_f32 v{D+r}, v{D+r}, v{V_L2E}, -4.0")
    for r in range(16): L.append(f"v_exp_f32 v{D+r}, v{D+r}")
    for r in range(8): L.append(f"v_cvt_pk_bf16_f32 v{phi+r}, v{D+2*r}, v{D+2*r+1}")
    return L

def do_pickup(a):
    for f in range(12):
        a.e(f"ds_read_b128 {vr(V_PQ+4*f,4)}, v{V_PHR} offset:{f*1024}")

def kv_load_list():
    L = [f"s_mul_i32 s{S_T2}, s{S_WAVE}, 9216"]
    for i in range(9):
        L.append(f"buffer_load_dwordx4 {vr(LAND+4*i,4)}, v{V_L16}, s[{SRD_F}:{SRD_F+3}], s{S_T2} offen {cfg.GET}")
        if i < 8: L.append(f"s_add_u32 s{S_T2}, s{S_T2}, 1024")
    return L
def kv_write_list():
    L = [f"s_mul_i32 s{S_T1}, s{S_WAVE}, 9216", f"v_add_u32 v148, s{S_T1}, v{V_L16}"]
    for i in range(9):
        L.append(f"s_waitcnt vmcnt({8-i})")
        L.append(f"ds_write_b128 v148, {vr(LAND+4*i,4)} offset:{i*1024}")
    return L

P_SCHED = {
    "init": [("K",0), ("K",1), ("K",2), ("S",1), ("V",0), ("V",1)],
    ("c",0): [("K",3)], ("c",1): [("K",4)],
    ("b",2): [("S",3), ("V",2), ("K",5), ("V",3)],
    ("b",3): [("K",6), ("V",4)], ("b",4): [("K",7), ("V",5)], ("b",5): [("S",4), ("V",6), ("V",7)],
    ("b",6): [("Q",0), ("Q",1)], ("b",7): [("Q",2), ("Q",3)], ("b","7a"): [("Q",4), ("Q",5)], ("b","7b"): [("Q",6), ("Q",7)],
}

def producer(a):
    a.inprod = True
    if cfg.PREF:
        P_SCHED[("b",5)] = [("S",4), ("V",6), ("V",7), ("F",0)]
        P_SCHED[("b",6)] = [("Q",0), ("Q",1), ("F",1)]
        P_SCHED[("b",7)] = [("Q",2), ("Q",3), ("F",2)]
        P_SCHED[("b","7a")] = [("F",3), ("Q",4), ("Q",5)]
        if cfg.PREF_ALL: P_SCHED[("b","7b")] = [("Q",6), ("Q",7), ("F",4)]
    if cfg.TOUCH:
        P_SCHED[("b",3)] = P_SCHED[("b",3)] + [("T",0)]
    if cfg.START2:
        P_SCHED["init"] = [("K",0), ("K",1), ("S",1)]
        P_SCHED[("c",0)] = [("K",2), ("V",0), ("K",3)]
        P_SCHED[("c",1)] = [("V",1), ("K",4)]
    TMP = 208; VSC = 224; VMK = 226; VDM = 227
    VS0, VS1, VS2, VS3 = 230, 232, 234, 236
    issued = []
    a.label("L_prod")
    srd(a, SRD_X, S_K, S_ROWOFF, 98304)
    a.e(f"""s_sub_u32 s{S_T0}, s{S_WAVE}, 6
s_lshl_b32 s{S_VG}, s{S_T0}, 1
s_lshl_b32 s{S_T0}, s{S_T0}, 4
v_lshrrev_b32 v7, 3, v{V_LANE}
v_and_b32 v8, 7, v{V_LANE}
v_add_u32 v9, s{S_T0}, v7
v_mul_u32_u24 v10, 384, v9
v_lshl_add_u32 v2, v8, 4, v10""")
    def sync_step(k):
        a.e(f"s_cmp_lg_u32 s{S_WAVE}, 6\ns_cbranch_scc1 L_sy{k}")
        if k == 1:
            flag_base(a)
            a.e(f"""v_lshlrev_b32 v{VS1}, 7, v7
v_lshl_add_u32 v{VS1}, v8, 2, v{VS1}
s_mov_b32 exec_lo, -1
s_mov_b32 exec_hi, 0
global_load_dword v{VS0}, v{VS1}, s[{S_FLG}:{S_FLG+1}] sc1
s_mov_b64 exec, -1""")
        elif k == 3:
            a.e(f"""v_subrev_u32 v{VS1}, 1, v{VS0}
v_mov_b32 v{VS1+1}, 1
v_lshlrev_b32 v{VS1+1}, v{VS1}, v{VS1+1}
v_mov_b32 v{VS2}, 0
v_mov_b32 v{VS2+1}, 0
v_cmp_gt_u32 vcc, 32, v{VS1}
s_nop 1
s_mov_b32 vcc_hi, 0
v_cndmask_b32 v{VS2}, 0, v{VS1+1}, vcc
v_subrev_u32 v{VS1}, 32, v{VS1}
v_cmp_gt_u32 vcc, 32, v{VS1}
s_nop 1
s_mov_b32 vcc_hi, 0
v_cndmask_b32 v{VS2+1}, 0, v{VS1+1}, vcc""")
            for r in (VS2, VS2+1):
                for sh in (1, 2, 4, 8):
                    a.e(f"v_or_b32_dpp v{r}, v{r}, v{r} row_shr:{sh} row_mask:0xf bank_mask:0xf")
            a.e(f"""v_readlane_b32 s74, v{VS2}, 15
v_readlane_b32 s{S_T0}, v{VS2}, 31
v_readlane_b32 s75, v{VS2+1}, 15
v_readlane_b32 s{S_T1}, v{VS2+1}, 31
s_or_b32 s74, s74, s{S_T0}
s_or_b32 s75, s75, s{S_T1}
s_ff0_i32_b64 s{S_CAND}, s[74:75]
s_add_u32 s{S_CAND}, s{S_CAND}, 1
s_getreg_b32 s{S_XCC}, hwreg(HW_REG_XCC_ID, 0, 4)
s_and_b32 s{S_XCC}, s{S_XCC}, 7
s_lshl_b32 s{S_XCC}, s{S_XCC}, 2
s_lshl_b32 s{S_T0}, 1, s{S_XCC}
v_mov_b32 v{VS2}, s{S_CAND}
v_mov_b32 v{VS2+1}, 0
s_lshl_b32 s{S_T1}, s{S_HEAD}, 3
v_mov_b32 v{VS3}, s{S_T1}
v_mov_b32 v{VS3+1}, s{S_T0}
s_mov_b32 exec_lo, 1
s_mov_b32 exec_hi, 0
global_atomic_cmpswap v{VS1}, v{VS3}, v[{VS2}:{VS2+1}], s[{S_DBG}:{S_DBG+1}] sc0 sc1
{"global_atomic_add v%d, v%d, s[%d:%d] offset:4 sc1" % (VS3, VS3+1, S_DBG, S_DBG+1) if cfg.FASTEN else "s_nop 0"}
s_mov_b64 exec, -1""")
        elif k == 4:
            a.e(f"""s_lshl_b32 s{S_T1}, s{S_HEAD}, 3
v_mov_b32 v{VS3}, s{S_T1}
s_mov_b32 exec_lo, 1
s_mov_b32 exec_hi, 0
global_load_dword v{VS0}, v{VS3}, s[{S_DBG}:{S_DBG+1}] offset:4 sc1
s_mov_b64 exec, -1""")
        elif k == 5:
            a.e(f"""v_readfirstlane_b32 s{S_NONCE}, v{VS1}
v_readfirstlane_b32 s{S_T0}, v{VS0}
s_cmp_eq_u32 s{S_NONCE}, 0
s_cselect_b32 s{S_NONCE}, s{S_CAND}, s{S_NONCE}
s_lshl_b32 s{S_T1}, 8, s{S_XCC}
s_cmp_eq_u32 s{S_T0}, s{S_T1}
s_cselect_b32 s{S_FAST}, {1 if cfg.FASTEN else 0}, 0
v_mov_b32 v{VS2}, s{S_NONCE}
v_mov_b32 v{VS2+1}, s{S_FAST}
v_mov_b32 v{VS3}, {L_CNT}
ds_write_b64 v{VS3}, v[{VS2}:{VS2+1}] offset:8
s_waitcnt lgkmcnt(0)""")
        a.label(f"L_sy{k}")
    def issue(tok):
        kind, t = tok
        if kind == "S":
            sync_step(t); return
        if kind == "T":
            issued.append(tok)
            srd(a, SRD_O, S_OUT, S_ROWOFF, 98304)
            a.e(f"s_mul_i32 s{S_T1}, s{S_HEAD}, {PART_SZ}\ns_add_u32 s{S_T1}, s{S_T1}, {WS_FIN}")
            srd(a, SRD_F, S_WS, S_T1, PART_SZ)
            a.e(f"v_mov_b32 v228, 0")
            for off in (0, 32768, 65536, 98304-64):
                a.e(f"s_mov_b32 s{S_T1}, {off}\nbuffer_load_dword v240, v228, s[{SRD_O}:{SRD_O+3}], s{S_T1} offen nt")
            for off in (0, PART_SZ-64):
                a.e(f"s_mov_b32 s{S_T1}, {off}\nbuffer_load_dword v240, v228, s[{SRD_F}:{SRD_F+3}], s{S_T1} offen nt")
            return
        if kind == "F":
            issued.append(tok)
            if t == 0:
                SP = S_WS if cfg.SCR_WS else S_OUT
                srd(a, SRD_O, SP, S_ROWOFF, 98304)
                a.e(f"s_mul_i32 s{S_T1}, s{S_HEAD}, {PART_SZ}\ns_add_u32 s{S_T1}, s{S_T1}, {WS_FIN}")
                srd(a, SRD_F, S_WS, S_T1, PART_SZ)
                a.e(f"v_lshlrev_b32 v228, 4, v{V_LANE}\ns_sub_u32 s{S_SLOT}, s{S_WAVE}, 6\ns_mul_i32 s{S_SLOT}, s{S_SLOT}, 36864")
            if t == 4:
                a.e(f"s_sub_u32 s{S_T0}, s{S_WAVE}, 6\ns_mul_i32 s{S_T0}, s{S_T0}, 12288")
                for i in range(12):
                    a.e(f"s_add_u32 s{S_T1}, s{S_T0}, {73728 + i*1024}")
                    a.e(f"buffer_load_dwordx4 v[240:243], v228, s[{SRD_O}:{SRD_O+3}], s{S_T1} offen {cfg.PREF_POL}")
            elif t < 3:
                for i in range(12):
                    a.e(f"s_add_u32 s{S_T1}, s{S_SLOT}, {(t*12+i)*1024}")
                    a.e(f"buffer_load_dwordx4 v[240:243], v228, s[{SRD_O}:{SRD_O+3}], s{S_T1} offen {cfg.PREF_POL}")
            else:
                a.e(f"s_mul_i32 s{S_T0}, s{S_CHUNK}, 9216")
                for i in range(12):
                    if i < 9:
                        a.e(f"s_add_u32 s{S_T1}, s{S_T0}, {i*1024}")
                        a.e(f"buffer_load_dwordx4 v[240:243], v228, s[{SRD_F}:{SRD_F+3}], s{S_T1} offen {cfg.PREF_POL}")
                    elif i < 11:
                        a.e(f"s_mov_b32 s{S_T1}, {PART_SZ + (i-9)*1024}")
                        a.e(f"buffer_load_dwordx4 v[240:243], v228, s[{SRD_O}:{SRD_O+3}], s{S_T1} offen {cfg.PREF_POL}")
            return
        issued.append(tok)
        if kind in "KQ":
            srdn = SRD_X if kind == "K" else SRD_Q
            a.e(f"s_mov_b32 s{S_T1}, {t*12288}")
            for g in range(2):
                for cb in range(3):
                    r = V_RAW + 24*t + 12*g + 4*cb
                    a.e(f"buffer_load_dwordx4 {vr(r,4)}, v2, s[{srdn}:{srdn+3}], s{S_T1} offen offset:{g*3072+cb*128} {cfg.NT}")
        else:
            for e in range(2):
                for cb in range(3):
                    a.e(f"s_add_u32 m0, s{S_VB}, {t*12288 + cb*4096 + e*1024}\ns_add_u32 s{S_T1}, s{S_VG}, {t*12288 + e*3072 + cb*128}")
                    a.e(f"buffer_load_dwordx4 v{VDM}, s[{SRD_V}:{SRD_V+3}], s{S_T1} offen {cfg.NT} lds")
    def wait_for(tok):
        wt = lambda t: (11 if t[1] == 3 else 12) if t[0] == "F" else 6
        n = sum(wt(t) for t in issued[issued.index(tok)+1:])
        n = min(n, 63)
        a.e(f"s_waitcnt vmcnt({n})")
    def ev(key):
        for tok in P_SCHED.get(key, []): issue(tok)
    ninit = 2 if cfg.START2 else 3
    for tok in P_SCHED["init"][:ninit]: issue(tok)
    srd(a, SRD_V, S_V, S_ROWOFF, 98304)
    a.e(f"""v_mul_u32_u24 v11, 384, v7
v_lshrrev_b32 v12, 2, v{V_LANE}
v_and_b32 v12, 4, v12
v_xor_b32 v12, v12, v8
v_lshl_add_u32 v{VDM}, v12, 4, v11
s_lshl_b32 s{S_VB}, s{S_VG}, 10
s_mul_i32 s{S_VG}, s{S_VG}, 3072""")
    for tok in P_SCHED["init"][ninit:]: issue(tok)
    if cfg.CODEPF:
        a.e(f"""s_getpc_b64 s[90:91]
L_pcbase:
s_sub_u32 s90, s90, L_pcbase - {NAME}
s_subb_u32 s91, s91, 0
s_lshr_b32 s{S_T0}, s2, 3
s_and_b32 s{S_T0}, s{S_T0}, 31
s_lshl_b32 s{S_T0}, s{S_T0}, 10
s_sub_u32 s{S_T1}, s{S_WAVE}, 6
s_lshl_b32 s{S_T1}, s{S_T1}, 15
s_add_u32 s{S_T0}, s{S_T0}, s{S_T1}
v_lshlrev_b32 v11, 4, v{V_LANE}
v_add_u32 v11, s{S_T0}, v11
v_min_u32 v11, L_end - {NAME} - 16, v11
global_load_dwordx4 v[240:243], v11, s[90:91]""")
    srd(a, SRD_Q, S_Q, S_ROWOFF, 98304)
    a.e(f"""v_lshrrev_b32 v11, 1, v7
v_xor_b32 v11, v11, v8
v_lshlrev_b32 v12, 4, v11
v_lshlrev_b32 v10, 7, v9
v_add_u32 v3, v10, v12
v_xor_b32 v4, 64, v3
v_add_u32 v4, 1024, v4
v_lshlrev_b32 v5, 2, v9
v_add_u32 v5, {L_XN}, v5
v_mov_b32 v{VSC}, {SCALE}
v_mov_b32 v{VSC+1}, {SCALE}
v_mov_b32 v{VMK}, 0xffff0000
v_add_u32 v13, {L_XS}, v3
v_add_u32 v14, {L_XS}, v4""")
    def convert(kind, t):
        T = t if kind == "K" else 8 + t
        b = V_RAW + 24*t
        wait_for((kind, t))
        stamp(a, 2 + 3*T, 2)
        if kind == "K": A0, off = 13, (t % 3)*12288
        else: A0, off = 3, 0
        for g in range(2):
            nreg = TMP + 8 + g
            a.e(f"v_mov_b32 v{nreg}, 0\nv_mov_b32 v{nreg+2}, 0")
            for c4 in range(3):
                xs_ = [b + 12*g + 4*c4 + i for i in range(4)]
                for i, x in enumerate(xs_): a.e(f"v_lshlrev_b32 v{TMP+2*i}, 16, v{x}")
                for i, x in enumerate(xs_): a.e(f"v_and_b32 v{TMP+2*i+1}, v{VMK}, v{x}")
                for i, x in enumerate(xs_): a.e(f"v_pk_mul_f32 v[{TMP+2*i}:{TMP+2*i+1}], v[{TMP+2*i}:{TMP+2*i+1}], v[{VSC}:{VSC+1}]")
                for i, x in enumerate(xs_): a.e(f"v_cvt_pk_bf16_f32 v{x}, v{TMP+2*i}, v{TMP+2*i+1}")
                for i, x in enumerate(xs_): a.e(f"v_dot2c_f32_bf16 v{nreg + 2*(i&1)}, v{x}, v{x}")
                a.e(f"ds_write_b128 v{A0+g}, {vr(b+12*g+4*c4,4)} offset:{off + c4*4096}")
            a.e(f"v_add_f32 v{nreg}, v{nreg}, v{nreg+2}")
        for perm in ("quad_perm:[1,0,3,2]", "quad_perm:[2,3,0,1]", "row_half_mirror"):
            for g in range(2):
                nreg = TMP + 8 + g
                a.e(f"v_add_f32_dpp v{nreg}, v{nreg}, v{nreg} {perm} row_mask:0xf bank_mask:0xf")
        for g in range(2): a.e(f"v_cvt_pk_bf16_f32 v{TMP+8+g}, 0, v{TMP+8+g}")
        for g in range(2): a.e(f"v_mul_f32 v{TMP+8+g}, -0.5, v{TMP+8+g}")
        for g in range(2): a.e(f"ds_write_b32 v5, v{TMP+8+g} offset:{T*128 + g*32}")
        if kind == "Q": a.e("v_add_u32 v3, 12288, v3\nv_add_u32 v4, 12288, v4")
        a.e("s_waitcnt lgkmcnt(0)")
        stamp(a, 3 + 3*T, 2)
    for T in range(8):
        convert("K", T)
        ev(("c", T))
        if T == 1: a.e("s_barrier")
        if T == 2: a.e("s_barrier")
        if T >= 2:
            wait_for(("V", T - 2))
            a.e("s_barrier")
        stamp(a, 4 + 3*T, 2)
        ev(("b", T))
    wait_for(("V", 6))
    sync_step(5)
    a.e("s_barrier")
    ev(("b", "7a"))
    convert("Q", 0)
    wait_for(("V", 7))
    a.e("s_barrier")
    ev(("b", "7b"))
    convert("Q", 1)
    convert("Q", 2)
    a.e("s_barrier\ns_barrier\ns_barrier")
    for t in range(3, 8):
        convert("Q", t)
        a.e("s_barrier")
        pass
    if cfg.WBL2:
        a.e(f"s_cmp_lg_u32 s{S_WAVE}, 7\ns_cbranch_scc1 L_nowb")
        if cfg.WBL2 == 1: a.e(f"s_cmp_lg_u32 s{S_CHUNK}, 0\ns_cbranch_scc1 L_nowb")
        a.e("buffer_wbl2 sc1")
        a.label("L_nowb")
    a.e(f"v_lshlrev_b32 v{V_L16}, 4, v{V_LANE}")
    a.e(f"s_mul_i32 s{S_T1}, s{S_HEAD}, {PART_SZ}\ns_add_u32 s{S_T1}, s{S_T1}, {WS_FIN}")
    srd(a, SRD_F, S_WS, S_T1, PART_SZ)
    assert cfg.QPB in (4, 5, 6)
    a.e("s_barrier")
    if cfg.QPB <= 5:
        for x in kv_load_list(): a.e(x)
    a.e("s_barrier")
    if cfg.QPB == 6:
        for x in kv_load_list(): a.e(x)
    a.e(f"s_cmp_eq_u32 s{S_WAVE}, 6\ns_cbranch_scc0 L_pp6")
    a.e(f"s_mul_i32 s{S_T0}, s{S_WAVE}, 12288\nv_add_u32 v{V_PHR}, s{S_T0}, v{V_L16}")
    do_pickup(a)
    a.label("L_pp6")
    for x in kv_write_list(): a.e(x)
    a.e("s_waitcnt lgkmcnt(0)")
    a.e("s_branch L_fin")
    a.inprod = False

def FB(k): return V_FB + 4*(k % 8)
class Item:
    def __init__(self, tag, reads, mfma):
        self.tag = tag; self.reads = reads; self.mfma = mfma
def itemA(j, D, p1):
    def reads(b): return [f"ds_read_b128 {vr(b,4)}, v{V_A+(j&3)} offset:{(j>>2)*4096}"]
    def mfma(b):
        fp = vr(V_P+4*j, 4); c = "0" if j == 0 else vr(D, 16)
        return f"v_mfma_f32_32x32x16_bf16 {vr(D,16)}, {vr(b,4)}, {fp}, {c}" if p1 else f"v_mfma_f32_32x32x16_bf16 {vr(D,16)}, {fp}, {vr(b,4)}, {c}"
    return Item(("A", j), reads, mfma)
def itemB(idx):
    jj, dt = idx // 6, idx % 6
    base = V_VE if dt % 2 == 0 else V_VO
    def reads(b): return [f"ds_read_b64_tr_b16 {vr(b+2*u,2)}, v{base} offset:{(dt>>1)*4096+(16*jj+8*u)*128}" for u in range(2)]
    def mfma(b): return f"v_mfma_f32_32x32x16_bf16 {vr(V_ACC+16*dt,16)}, {vr(V_PHI+4*jj,4)}, {vr(b,4)}, {vr(V_ACC+16*dt,16)}"
    return Item(("B", idx), reads, mfma)
def issue_item(lq, it, k, uid):
    rs = it.reads(FB(k))
    for n, r in enumerate(rs): lq.issue(r, (uid, k, n))
    return (uid, k, len(rs)-1)
def emit(a, x):
    if callable(x): x()
    else: a.e(x)
def run_stream(a, lq, items, nxt, side, k0=0, pend=None, depth=None):
    D = depth or cfg.DEPTH
    n = len(items)
    pend = dict(pend or {})
    out = {}
    for k in range(n):
        if cfg.WAIT2 and k % 2 == 0 and k + 1 < n and (k + 1) in pend: lq.wait(pend[k + 1])
        lq.wait(pend[k])
        a.e(items[k].mfma(FB(k0 + k)))
        kk = k + D
        if kk < n:
            pend[kk] = issue_item(lq, items[kk], k0 + kk, "c")
        elif nxt is not None and kk - n < len(nxt):
            out[kk - n] = issue_item(lq, nxt[kk - n], k0 + kk, "n")
        for x in side.get(k, []): emit(a, x)
    return out
def prime(lq, items, k0=0, depth=None):
    D = depth or cfg.DEPTH
    return {k: issue_item(lq, items[k], k0 + k, "p") for k in range(D)}
def spread(L, lo, hi, side=None):
    side = side if side is not None else {}
    n = hi - lo
    k = 0
    for p in range(n):
        upto = (len(L) * (p + 1)) // n
        side.setdefault(lo + p, [])
        while k < upto:
            side[lo + p].append(L[k]); k += 1
    return side

def signal(a, lds_off, target, flag_off, name):
    a.e(f"""v_mov_b32 v{V_T0}, {L_CNT}
v_mov_b32 v{V_T0+1}, 1
s_mov_b32 exec_lo, 1
s_mov_b32 exec_hi, 0
ds_add_rtn_u32 v{V_T0+2}, v{V_T0}, v{V_T0+1} offset:{lds_off}
s_waitcnt lgkmcnt(0)
v_readfirstlane_b32 s{S_T0}, v{V_T0+2}
s_cmp_eq_u32 s{S_T0}, {target-1}
s_cbranch_scc0 L_sig_{name}
s_lshl_b32 s{S_T0}, s{S_CHUNK}, 2
v_mov_b32 v{V_T0}, s{S_T0}
v_mov_b32 v{V_T0+1}, s{S_NONCE}
s_cmp_lg_u32 s{S_FAST}, 0
s_cbranch_scc1 L_sigf_{name}
global_store_dword v{V_T0}, v{V_T0+1}, s[{S_FLG}:{S_FLG+1}] offset:{flag_off} sc1
s_branch L_sig_{name}""")
    a.label(f"L_sigf_{name}")
    a.e(f"global_store_dword v{V_T0}, v{V_T0+1}, s[{S_FLG}:{S_FLG+1}] offset:{flag_off+256}")
    a.label(f"L_sig_{name}")
    a.e("s_mov_b64 exec, -1")

def poll_block(a, flag_off, name):
    a.e(f"""s_mov_b32 s{S_SPIN}, 0
v_and_b32 v{V_T0}, 7, v{V_LANE}
v_lshlrev_b32 v{V_T0}, 2, v{V_T0}
v_and_b32 v{V_T0+1}, 8, v{V_LANE}
v_lshl_add_u32 v{V_T0}, v{V_T0+1}, 5, v{V_T0}""")
    a.label(f"L_poll_{name}")
    a.e(f"""s_mov_b32 exec_lo, 0xffff
s_mov_b32 exec_hi, 0
global_load_dword v{V_FL}, v{V_T0}, s[{S_FLG}:{S_FLG+1}] offset:{flag_off} sc1
s_mov_b64 exec, -1
s_waitcnt vmcnt(0)
v_cmp_eq_u32 vcc, s{S_NONCE}, v{V_FL}
s_nop 1
s_and_b32 s{S_T3}, vcc_lo, 0xffff
s_lshr_b32 s{S_T0}, s{S_T3}, 8
s_or_b32 s{S_T3}, s{S_T3}, s{S_T0}
s_and_b32 s{S_T3}, s{S_T3}, 0xff
s_cmp_eq_u32 s{S_T3}, 0xff
s_cbranch_scc1 L_polld_{name}
s_add_u32 s{S_SPIN}, s{S_SPIN}, 1
s_cmp_lt_u32 s{S_SPIN}, 0x80000
s_cbranch_scc1 L_poll_{name}""")
    a.label(f"L_polld_{name}")

def kn_reads(lq):
    def f():
        for q in range(4):
            lq.issue(f"ds_read_b128 {vr(V_KN+4*q,4)}, v{V_XN} offset:{q*32}", ("K", q))
        lq.a.e(f"v_add_u32 v{V_XN}, 128, v{V_XN}")
    return f
def xs_adv(a):
    def f():
        a.e(f"""s_add_u32 s{S_SLOT}, s{S_SLOT}, 1
s_cmp_eq_u32 s{S_SLOT}, {XS_R}
s_cselect_b32 s{S_DLT}, s{S_CM24K}, s{S_C12K}
s_cselect_b32 s{S_SLOT}, 0, s{S_SLOT}""")
        for r in range(V_A, V_A+4): a.e(f"v_add_u32 v{r}, s{S_DLT}, v{r}")
    return f
def xs_addr(a, base):
    a.e(f"""v_and_b32 v176, 31, v{V_LANE}
v_lshrrev_b32 v177, 5, v{V_LANE}
v_lshrrev_b32 v178, 1, v176
v_and_b32 v178, 7, v178
v_lshlrev_b32 v179, 7, v176
v_add_u32 v179, {base}, v179""")
    for k in range(4):
        a.e(f"""v_add_u32 v180, {2*k}, v177
v_xor_b32 v180, v180, v178
v_lshl_add_u32 v{V_A+k}, v180, 4, v179""")

def compute(a):
    lq = LQ(a)
    D = cfg.DEPTH
    a.e("s_setprio 3")
    a.e(f"""v_lshrrev_b32 v160, 3, v{V_LANE}
v_and_b32 v161, 7, v{V_LANE}
v_mul_u32_u24 v162, 384, v160
v_lshrrev_b32 v164, 1, v160
v_xor_b32 v164, v164, v161
v_lshl_add_u32 v164, v164, 4, v162
v_xor_b32 v165, 64, v164
s_mul_i32 s{S_T1}, s{S_WAVE}, 12288""")
    srd(a, SRD_P, S_P, S_T1, 12288)
    a.e(f"s_add_u32 s{S_T2}, s{S_T1}, 24576")
    for cb in range(3):
        for G in range(4):
            a.e(f"s_add_u32 m0, s{S_T2}, {cb*4096+G*1024}\ns_mov_b32 s{S_T3}, {G*3072+cb*128}")
            a.e(f"buffer_load_dwordx4 v{164+(G&1)}, s[{SRD_P}:{SRD_P+3}], s{S_T3} offen lds")
    a.e("s_setprio 0")
    xs_addr(a, L_XS)
    a.e(f"""v_lshlrev_b32 v{V_L16}, 4, v{V_LANE}
v_lshlrev_b32 v{V_XN}, 4, v177
v_add_u32 v{V_XN}, {L_XN}, v{V_XN}
v_and_b32 v178, 15, v{V_LANE}
v_lshrrev_b32 v179, 2, v178
v_lshl_add_u32 v179, v177, 2, v179
v_lshlrev_b32 v179, 7, v179
v_bfe_u32 v180, v{V_LANE}, 4, 1
v_lshl_add_u32 v179, v180, 5, v179
v_and_b32 v180, 3, v178
v_lshl_add_u32 v179, v180, 3, v179
v_bfe_u32 v180, v178, 3, 1
v_lshl_add_u32 v{V_VE}, v180, 6, v179
v_xor_b32 v180, 1, v180
v_lshl_add_u32 v{V_VO}, v180, 6, v179
v_mov_b32 v{V_L2E}, {LOG2E}
v_mov_b32 v181, {L_CNT}
v_mov_b32 v182, 0
v_mov_b32 v183, 0
ds_write_b64 v181, v[182:183]
v_mov_b32 v{V_ONES}, 0x3f803f80
v_mov_b32 v{V_ONES+1}, 0x3f803f80
s_mov_b32 s{S_SLOT}, 0""")
    for r in range(4): a.e(f"v_mov_b32 v{V_KS4+r}, 0")
    for r in range(96): a.e(f"v_mov_b32 v{V_ACC+r}, 0")
    for r in range(8): a.e(f"v_mov_b32 v{V_PHI+r}, 0")
    a.e(f"s_mul_i32 s{S_T1}, s{S_WAVE}, 12288\ns_add_u32 s{S_T1}, s{S_T1}, {24576 - L_XS}")
    for k in range(4): a.e(f"v_add_u32 v{184+k}, s{S_T1}, v{V_A+k}")
    flag_base(a)
    a.e("s_waitcnt vmcnt(0)")
    for j in range(12):
        a.e(f"ds_read_b128 {vr(V_P+4*j,4)}, v{184+(j&3)} offset:{(j>>2)*4096}")
    a.e("s_waitcnt lgkmcnt(0)")
    stamp(a, 1)
    a.e("s_barrier")
    stamp(a, 2)
    if cfg.DIAG: a.e("s_memrealtime s[76:77]\ns_memtime s[80:81]\ns_waitcnt lgkmcnt(0)\ns_mov_b32 s88, s76\ns_mov_b32 s89, s80")
    A0 = [itemA(j, V_D1, True) for j in range(12)]
    pend = prime(lq, A0, 0)
    run_stream(a, lq, A0, None, {}, 0, pend)
    xs_adv(a)()
    a.e("s_barrier")
    a.e(f"s_mov_b32 s{S_T}, 0")
    Bs = [itemB(i) for i in range(12)]
    ks4 = [f"v_mfma_f32_4x4x4_16b_bf16 {vr(V_KS4,4)}, {vr(V_ONES,2)}, {vr(V_PHI+2*r,2)}, {vr(V_KS4,4)}" for r in range(4)]
    def seqZ(par): return Bs + [itemA(j, V_D1 + 16*(1-par), True) for j in range(12)]
    vadv = [f"v_add_u32 v{V_VE}, 12288, v{V_VE}", f"v_add_u32 v{V_VO}, 12288, v{V_VO}"]
    def e_order(el):
        if not el: return [], []
        if cfg.EORD == 0: return el[:-8], el[-8:]
        d = cfg.EORD
        items = []
        for k in range(2, 5):
            for r in range(16): items.append((r + k*d, k, el[16*k + r]))
        items.sort(key=lambda t: (t[0], -t[1]))
        return el[:32] + [x[2] for x in items], el[-8:]
    KNPOS = 12
    kwait = lambda: lq.wait(("K", 3))
    def with_kwait(body):
        idx = next(n for n, x in enumerate(body) if x.startswith("v_add_f32"))
        return body[:idx] + [kwait] + body[idx:]
    kn_reads(lq)()
    A1 = [itemA(j, V_D1 + 16, True) for j in range(12)]
    pend = prime(lq, A1, 0)
    stamp_idx(a, S_T, 4, 3)
    a.e("s_barrier")
    stamp_idx(a, S_T, 4, 4)
    el = exp_list(V_D1, lambda r: V_KN + r, V_PHI)
    side = {}
    if el:
        e0 = el[:16] + [kwait] + el[16:]
        spread(e0[:33], 0, 4, side)
        spread(e0[33:], 5, 12, side)
    side.setdefault(4, []).append(kn_reads(lq))
    side.setdefault(11 - D, []).append(xs_adv(a))
    assert 11 - D == 4
    pend = run_stream(a, lq, A1, seqZ(1), side, 0, pend)
    stamp_idx(a, S_T, 4, 6)
    a.e(f"s_mov_b32 s{S_T}, 1")
    a.label("L_p1")
    for par in (1, 0):
        stamp_idx(a, S_T, 4, 3)
        a.e("s_barrier")
        stamp_idx(a, S_T, 4, 4)
        side = {}
        body, pack = e_order(exp_list(V_D1 + 16*par, lambda r: V_KN + r, V_PHI))
        for r in range(4): side.setdefault(1 + 3*r, []).append(ks4[r])
        if body:
            spread(with_kwait(body), 0, 22, side)
            spread(pack, 22, 24, side)
        side.setdefault(11 - D, []).extend(vadv)
        side.setdefault(23 - D, []).append(xs_adv(a))
        side.setdefault(KNPOS, []).append(kn_reads(lq))
        pend = run_stream(a, lq, seqZ(par), seqZ(1-par), side, 12, pend)
        stamp_idx(a, S_T, 4, 6)
        a.e(f"s_add_u32 s{S_T}, s{S_T}, 1")
    a.e(f"s_cmp_lt_u32 s{S_T}, 7\ns_cbranch_scc1 L_p1")
    stamp_idx(a, S_T, 4, 3)
    a.e("s_barrier")
    stamp_idx(a, S_T, 4, 4)
    side = {}
    el = exp_list(V_D1 + 16, lambda r: V_KN + r, V_PHI)
    for r in range(4): side.setdefault(1 + 3*r, []).append(ks4[r])
    if el:
        spread(with_kwait(el[:-8]), 0, 12, side)
        side.setdefault(11, []).extend(el[-8:])
    side.setdefault(11 - D, []).extend(vadv)
    pend = run_stream(a, lq, Bs, Bs, side, 12, pend)
    stamp_idx(a, S_T, 4, 6)
    a.e(f"v_mov_b32 v{V_T0}, {L_CNT}")
    lq.issue(f"ds_read_b64 v[{V_T0+0}:{V_T0+1}], v{V_T0} offset:8", ("N",))
    SP = S_WS if cfg.SCR_WS else S_OUT
    srd(a, SRD_O, SP, S_ROWOFF, 98304)
    a.e(f"s_mul_i32 s{S_T1}, s{S_HEAD}, 786432")
    srd(a, SRD_W, SP, S_T1, 786432)
    a.e(f"s_mul_i32 s{S_T1}, s{S_HEAD}, {PART_SZ}\ns_add_u32 s{S_T1}, s{S_T1}, {WS_FIN}")
    srd(a, SRD_F, S_WS, S_T1, PART_SZ)
    lq.wait(("N",))
    a.e(f"v_readfirstlane_b32 s{S_NONCE}, v{V_T0}\nv_readfirstlane_b32 s{S_FAST}, v{V_T0+1}")
    a.e(f"s_lshl_b32 s{S_VG}, s{S_WAVE}, 11")
    qsave = list(lq.q); psave = dict(pend)
    def final_b(pub):
        lq.q = list(qsave)
        TB = V_D1
        def pubtile(dt):
            L = []
            for jj in range(2):
                tb = TB + 4*((dt*2+jj) % 8)
                for i in range(4):
                    L.append(f"v_cvt_pk_bf16_f32 v{tb+i}, v{V_ACC+16*dt+8*jj+2*i}, v{V_ACC+16*dt+8*jj+2*i+1}")
                L.append(f"buffer_store_dwordx4 {vr(tb,4)}, v{V_L16}, s[{SRD_O}:{SRD_O+3}], s{S_VG} offen offset:{jj*1024} {pub}")
            if dt < 5: L.append(f"s_add_u32 s{S_VG}, s{S_VG}, 12288")
            return L
        side = {}
        for r in range(4): side.setdefault(1 + 2*r, []).append(ks4[r])
        for dt in range(4): side.setdefault(8 + dt, []).extend(pubtile(dt))
        run_stream(a, lq, Bs, None, side, 0, psave)
        for dt in (4, 5):
            for x in pubtile(dt): a.e(x)
        a.e(f"v_lshlrev_b32 v{V_T0+1}, 2, v{V_LANE}\ns_lshl_b32 s{S_T2}, s{S_WAVE}, 8\ns_add_u32 s{S_T2}, s{S_T2}, {PART_SZ}")
        a.e(f"buffer_store_dword v{V_KS4}, v{V_T0+1}, s[{SRD_O}:{SRD_O+3}], s{S_T2} offen {pub}")
    a.e(f"s_cmp_lg_u32 s{S_FAST}, 0\ns_cbranch_scc1 L_pubf")
    final_b(cfg.PUB)
    a.e("s_branch L_pubd")
    a.label("L_pubf")
    final_b("")
    a.label("L_pubd")
    lq.q = []
    stamp(a, 40)
    if cfg.DIAG: a.e("s_memrealtime s[76:77]\ns_memtime s[80:81]\ns_waitcnt lgkmcnt(0)\ns_mov_b32 s90, s76\ns_mov_b32 s91, s80")
    xs_addr(a, 0)
    V_ID = 206; V_SA = 192; V_KL = 196 - 196 + 64 + 0
    V_O8 = 204
    V_KL = 240
    a.e(f"""v_lshlrev_b32 v{V_XN}, 2, v176
v_add_u32 v{V_XN}, {L_XN + 8*128}, v{V_XN}
s_lshl_b32 s{S_T0}, s{S_WAVE}, 11
v_add_u32 v{V_PHW}, s{S_T0}, v{V_L16}
s_mul_i32 s{S_T0}, s{S_WAVE}, 12288
v_add_u32 v{V_PHR}, s{S_T0}, v{V_L16}
v_and_b32 v{V_T0}, 3, v{V_LANE}
v_mov_b32 v{V_T0+1}, 0x3f80
v_mov_b32 v{V_T0+2}, 0x3f800000
v_cmp_eq_u32 vcc, 0, v{V_T0}
v_cndmask_b32 v{V_ID}, 0, v{V_T0+1}, vcc
v_cmp_eq_u32 vcc, 1, v{V_T0}
v_cndmask_b32 v{V_ID}, v{V_ID}, v{V_T0+2}, vcc
v_cmp_eq_u32 vcc, 2, v{V_T0}
v_cndmask_b32 v{V_ID+1}, 0, v{V_T0+1}, vcc
v_cmp_eq_u32 vcc, 3, v{V_T0}
v_cndmask_b32 v{V_ID+1}, v{V_ID+1}, v{V_T0+2}, vcc
s_mul_i32 s{S_T0}, s{S_CHUNK}, 9216
s_mul_i32 s{S_T1}, s{S_WAVE}, 1536
s_add_u32 s{S_VG}, s{S_T0}, s{S_T1}
v_lshlrev_b32 v{V_O8}, 3, v{V_LANE}
v_add_u32 v{V_O8}, 1024, v{V_O8}""")
    stamp(a, 41)
    if cfg.SIGA_EARLY:
        a.e("s_waitcnt vmcnt(0)")
        stamp(a, 42)
        signal(a, 0, 6, 0, "A")
    a.e("s_barrier")
    stamp(a, 43)
    def qadv():
        for r in range(V_A, V_A+4): a.e(f"v_add_u32 v{r}, 12288, v{r}")
    Q0 = [itemA(j, V_D1, False) for j in range(12)]
    pend = prime(lq, Q0, 0)
    run_stream(a, lq, Q0, None, {}, 0, pend)
    qadv()
    if not cfg.SIGA_EARLY:
        a.e("s_waitcnt vmcnt(0)")
        stamp(a, 42)
        signal(a, 0, 6, 0, "A")
    a.e("s_barrier")
    def seqQ(par): return [itemA(j, V_D1 + 16*(1-par), False) for j in range(12)]
    pend = prime(lq, seqQ(0), 12)
    def sb_load_list(p0, p1):
        L = [f"s_add_u32 s{S_T2}, s{S_VG}, {p0*98304}"]
        for p in range(p0, p1):
            L.append(f"buffer_load_dwordx4 {vr(LAND+6*p,4)}, v{V_L16}, s[{SRD_W}:{SRD_W+3}], s{S_T2} offen {cfg.GET}")
            L.append(f"buffer_load_dwordx2 {vr(LAND+6*p+4,2)}, v{V_O8}, s[{SRD_W}:{SRD_W+3}], s{S_T2} offen {cfg.GET}")
            if p < p1 - 1: L.append(f"s_add_u32 s{S_T2}, s{S_T2}, 98304")
        return L
    def sb_sum_list():
        L = ["s_waitcnt vmcnt(8)"]
        for p in range(8):
            for c in range(3):
                cc = "0" if p == 0 else vr(V_SA+4*c, 4)
                L.append(f"v_mfma_f32_4x4x4_16b_bf16 {vr(V_SA+4*c,4)}, {vr(V_ID,2)}, {vr(LAND+6*p+2*c,2)}, {cc}")
        return L
    KL = [7, 8, 9, 205, V_KS4, 15, V_FL, V_T0+3]
    def ks_load_list():
        L = [f"v_lshlrev_b32 v{V_T0+2}, 2, v{V_LANE}", f"s_lshl_b32 s{S_T2}, s{S_WAVE}, 8", f"s_add_u32 s{S_T2}, s{S_T2}, {PART_SZ}"]
        for c in range(8):
            L.append(f"buffer_load_dword v{KL[c]}, v{V_T0+2}, s[{SRD_W}:{SRD_W+3}], s{S_T2} offen {cfg.GET}")
            if c < 7: L.append(f"s_add_u32 s{S_T2}, s{S_T2}, 98304")
        return L
    def ks_fin_list():
        K = KL[0]; K1 = KL[1]
        L = ["s_waitcnt vmcnt(0)"]
        for c in range(1, 8): L.append(f"v_add_f32 v{K}, v{K}, v{KL[c]}")
        L += [f"v_mov_b32 v{K1}, v{K}", "s_nop 1", f"v_permlane32_swap_b32 v{K}, v{K1}", "s_nop 1", f"v_add_f32 v{K}, v{K}, v{K1}",
              f"v_cvt_pk_bf16_f32 v{K}, v{K}, v{K}", f"v_and_b32 v{K1}, 31, v{V_LANE}", f"v_lshlrev_b32 v{K1}, 1, v{K1}",
              f"s_lshl_b32 s{S_T2}, s{S_WAVE}, 6", f"s_add_u32 s{S_T2}, s{S_T2}, {L_KS}", f"v_add_u32 v{K1}, s{S_T2}, v{K1}",
              lambda: lq.issue(f"ds_write_b16 v{K1}, v{K}", ("X",))]
        return L
    def sb_store(pub):
        a.e(f"buffer_store_dwordx4 {vr(LAND,4)}, v{V_L16}, s[{SRD_F}:{SRD_F+3}], s{S_VG} offen {pub}")
        a.e(f"buffer_store_dwordx2 {vr(LAND+4,2)}, v{V_O8}, s[{SRD_F}:{SRD_F+3}], s{S_VG} offen {pub}")
    def sigB():
        a.e("s_waitcnt vmcnt(0)")
        signal(a, 4, 6, 128, "B")
        lq.q = []
    for q in range(8):
        par = q % 2
        k0 = 12 if par == 0 else 0
        a.e("s_barrier")
        stamp(a, 44 + q)
        if 1 <= q <= 6:
            a.e(f"s_cmp_eq_u32 s{S_WAVE}, {q-1}\ns_cbranch_scc0 L_cpk_{q}")
            do_pickup(a)
            a.e("s_waitcnt lgkmcnt(0)")
            a.label(f"L_cpk_{q}")
        lq.issue(f"ds_read_b32 v{V_QN}, v{V_XN} offset:{q*128}", ("K", 0))
        side = {}
        el = exp_list(V_D1 + 16*par, lambda r: V_QN, V_PHI, cfg.QROUND)
        nlead = 16 if cfg.QROUND else 0
        el2 = el[:nlead] + [lambda: lq.wait(("K", 0))] + el[nlead:]
        spread(el2, 0 if cfg.QROUND else 1, 12, side)
        side.setdefault(11 - D, []).append(qadv)
        extra = []
        if q == cfg.QL1: extra = extra + sb_load_list(0, 4)
        if q == cfg.QL2: extra = extra + sb_load_list(4, 8) + ks_load_list()
        if q == cfg.QS: extra = extra + sb_sum_list()
        if q == cfg.QPB + 1: extra = extra + kv_load_list()
        if q == 7: extra = extra + kv_write_list()
        if extra: spread(extra, 0, 11, side)
        if q == cfg.QS + 1: side.setdefault(4, []).append(sigB)
        if q < 7:
            pend = run_stream(a, lq, seqQ(par), seqQ(1-par) if q < 6 else None, side, k0, pend)
        elif cfg.DENQ7:
            a.e(f"v_lshrrev_b32 v{V_A}, 5, v{V_LANE}\nv_lshlrev_b32 v{V_A}, 3, v{V_A}\nv_add_u32 v{V_A}, {L_KS}, v{V_A}")
            def itemD(f):
                o = 8*(f >> 1) + 4*(f & 1)
                def reads(b): return [f"ds_read2_b64 {vr(b,4)}, v{V_A} offset0:{o} offset1:{o+2}"]
                def mfma(b):
                    c = "0" if f == 0 else vr(V_D1, 16)
                    return f"v_mfma_f32_32x32x16_bf16 {vr(V_D1,16)}, {vr(b,4)}, {vr(V_PQ+4*f,4)}, {c}"
                return Item(("D", f), reads, mfma)
            Ds = [itemD(f) for f in range(12)]
            side[11 - D] = [x for x in side.get(11 - D, []) if x is not qadv]
            pd = prime(lq, Ds, 0)
            run_stream(a, lq, Ds, None, side, 0, pd)
        else:
            for p_ in range(12):
                for x in side.get(p_, []):
                    if x is qadv: continue
                    emit(a, x)
        stamp(a, 3 + 3*q, 3)
        for jj in range(2):
            lq.issue(f"ds_write_b128 v{V_PHW}, {vr(V_PHI+4*jj,4)} offset:{jj*1024}", ("W", jj))
        if q < 7: a.e(f"v_add_u32 v{V_PHW}, 12288, v{V_PHW}")
        if q == 0:
            a.e(f"s_cmp_lg_u32 s{S_WAVE}, 0\ns_cbranch_scc1 L_npa")
            poll_block(a, 0, "A")
            a.label("L_npa")
        if q == cfg.QS:
            for i in range(6): a.e(f"v_cvt_pk_bf16_f32 v{LAND+i}, v{V_SA+2*i}, v{V_SA+2*i+1}")
            for x in ks_fin_list(): emit(a, x)
            a.e(f"s_cmp_lg_u32 s{S_FAST}, 0\ns_cbranch_scc1 L_sbf")
            sb_store(cfg.PUB)
            a.e("s_branch L_sbd")
            a.label("L_sbf")
            sb_store("")
            a.label("L_sbd")
        if q == cfg.QPB:
            a.e(f"s_cmp_lg_u32 s{S_WAVE}, 0\ns_cbranch_scc1 L_npb")
            poll_block(a, 128, "B")
            a.label("L_npb")
        stamp(a, 4 + 3*q, 3)
        a.e("s_waitcnt lgkmcnt(0)")
        lq.q = []
    if cfg.DENQ7:
        a.e(f"v_add_f32 v144, {EPS}, v{V_D1}\nv_rcp_f32 v144, v144")
    stamp(a, 52)

def fin(a):
    a.label("L_fin")
    a.e("s_barrier")
    stamp(a, 54)
    a.e(f"s_cmp_eq_u32 s{S_WAVE}, 7\ns_cbranch_scc0 L_fpk")
    a.e(f"s_mul_i32 s{S_T0}, s{S_WAVE}, 12288\nv_add_u32 v{V_PHR}, s{S_T0}, v{V_L16}")
    do_pickup(a)
    a.e("s_waitcnt lgkmcnt(0)")
    a.label("L_fpk")
    stamp(a, 56)
    if cfg.DIAG: a.e("s_memrealtime s[76:77]\ns_memtime s[80:81]\ns_waitcnt lgkmcnt(0)\ns_mov_b32 s92, s76\ns_mov_b32 s93, s80")
    p2b(a)
    stamp(a, 57)
    if cfg.STAMPS: a.e("s_waitcnt vmcnt(0)")
    stamp(a, 58)
    stamp_flush(a)
    if cfg.DIAG:
        a.e("s_waitcnt vmcnt(0)")
        a.e("s_memrealtime s[76:77]\ns_memtime s[80:81]\ns_waitcnt lgkmcnt(0)\ns_mov_b32 s94, s76\ns_mov_b32 s95, s80")
        a.e(f"""s_cmp_lg_u32 s{S_WAVE}, 0
s_cbranch_scc1 L_end
s_cmp_lg_u32 s{S_CHUNK}, 3
s_cbranch_scc1 L_end
s_cmp_ge_u32 s{S_HEAD}, 8
s_cbranch_scc1 L_end
s_sub_u32 s88, s88, s86
s_sub_u32 s90, s90, s86
s_sub_u32 s92, s92, s86
s_sub_u32 s94, s94, s86
s_sub_u32 s89, s89, s87
s_sub_u32 s91, s91, s87
s_sub_u32 s93, s93, s87
s_sub_u32 s95, s95, s87
s_mov_b32 s96, s88
s_cmp_eq_u32 s{S_HEAD}, 1
s_cselect_b32 s96, s90, s96
s_cmp_eq_u32 s{S_HEAD}, 2
s_cselect_b32 s96, s92, s96
s_cmp_eq_u32 s{S_HEAD}, 3
s_cselect_b32 s96, s94, s96
s_cmp_eq_u32 s{S_HEAD}, 4
s_cselect_b32 s96, s89, s96
s_cmp_eq_u32 s{S_HEAD}, 5
s_cselect_b32 s96, s91, s96
s_cmp_eq_u32 s{S_HEAD}, 6
s_cselect_b32 s96, s93, s96
s_cmp_eq_u32 s{S_HEAD}, 7
s_cselect_b32 s96, s95, s96
s_lshl_b32 s97, s{S_HEAD}, 3
v_mov_b32 v2, s97
v_mov_b32 v3, s96
s_mov_b32 exec_lo, 1
s_mov_b32 exec_hi, 0
global_store_dword v2, v3, s[{S_DBG}:{S_DBG+1}] offset:4 sc1""")

def p2b(a):
    lq = LQ(a)
    V_O = 112
    V_DEN = 144
    V_KF = 148
    V_DN = 160
    V_T = 176
    V_R = 184
    srd(a, SRD_O, S_OUT, S_ROWOFF, 98304)
    a.e(f"""v_and_b32 v2, 31, v{V_LANE}
v_lshrrev_b32 v3, 5, v{V_LANE}
v_lshlrev_b32 v5, 3, v3
v_add_u32 v5, {L_KS}, v5
v_lshlrev_b32 v6, 4, v{V_LANE}
s_lshl_b32 s{S_T0}, s{S_WAVE}, 12
s_add_u32 s{S_T1}, s{S_T0}, {L_XS}
v_lshlrev_b32 v7, 7, v2
v_lshl_add_u32 v7, v3, 3, v7
v_add_u32 v7, s{S_T1}, v7
v_and_b32 v9, 7, v2
v_lshrrev_b32 v10, 3, v{V_LANE}
v_and_b32 v11, 7, v{V_LANE}
v_xor_b32 v12, v11, v10
v_lshlrev_b32 v8, 7, v10
v_lshl_add_u32 v8, v12, 4, v8
v_add_u32 v8, s{S_T1}, v8
s_lshl_b32 s{S_T0}, s{S_WAVE}, 5
v_add_u32 v4, s{S_T0}, v10
v_mul_u32_u24 v4, 384, v4
v_lshl_add_u32 v4, v11, 4, v4
v_lshl_add_u32 v7, v9, 4, v7""")
    def itemF(f, O):
        def reads(b): return [f"ds_read_b128 {vr(b,4)}, v6 offset:{f*1024}"]
        def mfma(b):
            c = "0" if f == 0 else vr(O, 16)
            return f"v_mfma_f32_32x32x16_bf16 {vr(O,16)}, {vr(b,4)}, {vr(V_PQ+4*f,4)}, {c}"
        return Item(("F", f), reads, mfma)
    def itemFn(f):
        def reads(b): return [f"ds_read_b128 {vr(b,4)}, v6 offset:{12288+f*1024}"]
        return Item(("F", f), reads, None)
    seq = lambda O: [itemF(f, O) for f in range(12)]
    nxt = [itemFn(f) for f in range(12)]
    def kread(f):
        o = 8*(f >> 1) + 4*(f & 1)
        lq.issue(f"ds_read2_b64 {vr(V_KF+4*(f%3),4)}, v5 offset0:{o} offset1:{o+2}", ("K", f))
    kread(0); kread(1)
    pend = prime(lq, seq(V_O), 0)
    for g in range(1, 8):
        a.e(f"v_xor_b32 v{199+g}, {g<<4}, v7")
    WA = lambda g: 7 if g == 0 else 199 + g
    if cfg.DENQ7: a.e(f"s_cmp_lt_u32 s{S_WAVE}, 6\ns_cbranch_scc1 L_noden")
    for f in range(12):
        lq.wait(("K", f))
        c = "0" if f == 0 else vr(V_DN, 16)
        a.e(f"v_mfma_f32_32x32x16_bf16 {vr(V_DN,16)}, {vr(V_KF+4*(f%3),4)}, {vr(V_PQ+4*f,4)}, {c}")
        if f + 2 < 12: kread(f + 2)
    a.e(f"s_nop 7\ns_nop 3\nv_add_f32 v{V_DEN}, {EPS}, v{V_DN}\nv_rcp_f32 v{V_DEN}, v{V_DEN}")
    if cfg.DENQ7:
        a.label("L_noden")
        a.e("s_waitcnt lgkmcnt(0)")
        lq.q = []
    pend = run_stream(a, lq, seq(V_O), nxt, {}, 0, pend)
    a.e(f"""v_add_u32 v6, 12288, v6""")
    def epi(O, odd):
        L = []
        for r in range(16): L.append(f"v_mul_f32 v{O+r}, v{O+r}, v{V_DEN}")
        for r in range(8): L.append(f"v_cvt_pk_bf16_f32 v{V_T+r}, v{O+2*r}, v{O+2*r+1}")
        for q in range(4):
            L.append(lambda q=q: lq.issue(f"ds_write_b64 v{WA(4*odd+q)}, {vr(V_T+2*q,2)}", ("W",)))
        if odd:
            for G in range(4):
                L.append(lambda G=G: lq.issue(f"ds_read_b128 {vr(V_R+4*G,4)}, v8 offset:{G*1024}", ("R", G)))
        return L
    def stores(pair):
        L = []
        for G in range(4):
            def st(G=G):
                lq.wait(("R", G))
                a.e(f"s_mov_b32 s{S_T}, {pair*128 + G*3072}")
                a.e(f"buffer_store_dwordx4 {vr(V_R+4*G,4)}, v4, s[{SRD_O}:{SRD_O+3}], s{S_T} offen {cfg.OUT_NT}")
            L.append(st)
        return L
    for dt in range(1, 6):
        O = V_O + 16*(dt % 2); Oprev = V_O + 16*((dt-1) % 2)
        side = {}
        if dt in (3, 5): spread(stores((dt-3)//2), 2, 6, side)
        spread(epi(Oprev, (dt-1) % 2), 1, 12, side)
        pend = run_stream(a, lq, seq(O), nxt if dt < 5 else None, side, 12*(dt % 2), pend)
        if dt < 5: a.e("v_add_u32 v6, 12288, v6")
    for x in epi(V_O+16, 1): emit(a, x)
    for x in stores(2): emit(a, x)
    a.e("s_waitcnt lgkmcnt(0)")

def kernel(a):
    a.e(f"""s_cmp_ge_u32 s2, 256
s_cbranch_scc1 L_end
s_load_dwordx8 s[8:15], s[0:1], 0
s_load_dwordx4 s[16:19], s[0:1], 32
s_load_dwordx2 s[20:21], s[0:1], 48
v_lshrrev_b32 v1, 6, v0
s_and_b32 s{S_HEAD}, s2, 31
s_lshr_b32 s{S_CHUNK}, s2, 5
v_readfirstlane_b32 s{S_WAVE}, v1
v_and_b32 v{V_LANE}, 63, v0
s_mul_i32 s{S_ROWOFF}, s{S_HEAD}, 786432
s_mul_i32 s26, s{S_CHUNK}, 98304
s_add_u32 s{S_ROWOFF}, s{S_ROWOFF}, s26
s_mov_b32 s{S_C12K}, 12288
s_mov_b32 s{S_CM24K}, -24576
s_lshl_b32 s{S_T0}, s{S_WAVE}, 2
s_lshr_b32 s{S_WAVE}, {hex(cfg.ROLEMAP)}, s{S_T0}
s_and_b32 s{S_WAVE}, s{S_WAVE}, 15
s_cmp_ge_u32 s{S_WAVE}, 6
s_waitcnt lgkmcnt(0)""")
    if cfg.STAMPS:
        a.e("v_mov_b32 v255, 0\nv_mov_b32 v254, 0"); stamp(a, 0); a.e(f"s_cmp_ge_u32 s{S_WAVE}, 6")
    if cfg.DIAG:
        a.e("s_memrealtime s[76:77]\ns_memtime s[80:81]\ns_waitcnt lgkmcnt(0)\ns_mov_b32 s86, s76\ns_mov_b32 s87, s80")
        a.e(f"s_cmp_ge_u32 s{S_WAVE}, 6")
    a.e("s_cbranch_scc1 L_prod")
    compute(a)
    a.e("s_branch L_fin")
    producer(a)
    fin(a)
    a.label("L_end")
    a.e("s_endpgm")

HEADER = open("standalone__linear_kernel_performer__prompt.s.ref").read().split("; Override launch")[0]

def main(path):
    a = Asm(); a.inprod = False; kernel(a)
    body = a.finalize()
    txt = HEADER + f"; @launch grid=(256,1,1) block=(512,1,1) lds={LDS_BYTES}\n"
    txt += f""".amdgcn_target "amdgcn-amd-amdhsa--gfx950"
.text
.globl {NAME}
.p2align 8
.type {NAME},@function
{NAME}:
{body}.section .rodata,"a"
.p2align 6
.amdhsa_kernel {NAME}
  .amdhsa_next_free_vgpr 256
  .amdhsa_next_free_sgpr 102
  .amdhsa_accum_offset 256
  .amdhsa_group_segment_fixed_size 0
  .amdhsa_kernarg_size 56
  .amdhsa_user_sgpr_count 2
  .amdhsa_user_sgpr_kernarg_segment_ptr 1
  .amdhsa_system_sgpr_workgroup_id_x 1
  .amdhsa_float_denorm_mode_32 3
.end_amdhsa_kernel
"""
    open(path, "w").write(txt)

if __name__ == "__main__":
    for arg in sys.argv[2:]:
        k, v = arg.split("=")
        cur = getattr(cfg, k)
        setattr(cfg, k, (v == "1") if isinstance(cur, bool) else (int(v, 0) if isinstance(cur, int) else v))
    main(sys.argv[1])
```

```python
import struct, sys
from asmlib import Asm, vr, sr

def f32hex(x): return "0x%08x" % struct.unpack("<I", struct.pack("<f", x))[0]
SCALE = f32hex(192 ** -0.25)
LOG2E = f32hex(1.4426950408889634)
EPS = f32hex(0.75e-6)

L_XS = 0x18000
XS_R = 3
L_XN = L_XS + 3*12288
L_KS = L_XN + 2048
L_CNT = L_KS + 512
LDS_BYTES = L_CNT + 64
PART_SZ = 73728
KSP_SZ = 1536
WS_FIN = 0x1900000
WS_FLG = 0x1D00000
WS_STAMP = 0x4000000

NAME = "standalone__linear_kernel_performer__prompt_kernel"
class Cfg:
    ROLEMAP = 0x75436210
    NT = "nt"
    STAMPS = 0
    GET = "sc1"
    DEPTH = 7
    OUT_NT = "sc1"
    QROUND = False
    CODEPF = True
    WAIT2 = True
    FASTEN = True
    QA = 1; QPA = 2; QL = 3; QS = 5; QPB = 7
    X_NOEXP = False
    START2 = True
    SCR_WS = False
    DIAG = False
    SIGA_EARLY = True
    DENQ7 = True
    PREF = False
    TOUCH = False
    EORD = 3
    PUBPRE = 3
    PUBPRO = 10
    PREF_POL = ""
    PUB = "sc1"
cfg = Cfg()

S_Q, S_K, S_V, S_P = 8, 10, 12, 14
S_OUT, S_DBG, S_WS = 16, 18, 20
S_HEAD, S_CHUNK, S_WAVE, S_ROWOFF = 22, 23, 24, 25
S_FLG = 26
SRD_X, SRD_V, SRD_P, SRD_O, SRD_W, SRD_Q, SRD_F = 28, 32, 36, 40, 44, 64, 68
S_VG, S_CAND, S_NONCE, S_SLOT = 52, 53, 54, 55
S_T, S_T0, S_T1, S_T2, S_T3, S_VB, S_FAST, S_SPIN = 56, 57, 58, 59, 60, 61, 62, 63
S_DLT, S_XCC = 72, 73
S_C12K, S_CM24K = 82, 83

V_LANE = 1
V_A = 2
V_XN = 6
V_VE, V_VO = 7, 8
V_FL = 10
V_L16 = 11
V_KS4 = 12
V_PHR = 13
V_PHW = 14
V_P = 16
V_ACC = 64
V_D1 = 160
V_KN = 192
V_PHI = 208
V_FB = 216
V_L2E = 248
V_QN = 249
V_T0 = 250
V_ONES = 252
V_PQ = 64
V_RAW = 16
LAND = 112
V_DENH = 149

class LQ:
    def __init__(self, a): self.a = a; self.q = []
    def issue(self, text, tag): self.a.e(text); self.q.append(tag)
    def wait(self, tag):
        if tag not in self.q: return
        i = len(self.q) - 1 - self.q[::-1].index(tag)
        n = len(self.q) - 1 - i
        assert n <= 15, (n, self.q)
        self.a.e(f"s_waitcnt lgkmcnt({n})")
        self.q = self.q[i+1:]

def _stamp(a, idx):
    a.e("s_memrealtime s[76:77]\ns_memtime s[80:81]\ns_waitcnt lgkmcnt(0)")
    a.e(f"s_mov_b32 m0, {idx}")
    a.e("v_writelane_b32 v255, s76, m0")
    a.e("v_writelane_b32 v254, s80, m0")
def stamp(a, idx, lvl=1):
    if cfg.STAMPS == 0 or (lvl > 1 and cfg.STAMPS != lvl and not (a.inprod and cfg.STAMPS > 1)): return
    _stamp(a, idx)
def stamp_idx(a, sreg, mul, add, lvl=2):
    if cfg.STAMPS == 0 or (lvl > 1 and cfg.STAMPS != lvl): return
    a.e(f"s_mul_i32 s78, s{sreg}, {mul}\ns_add_u32 s78, s78, {add}")
    _stamp(a, "s78")
def stamp_flush(a):
    if not cfg.STAMPS: return
    a.e(f"""s_mov_b64 exec, -1
s_lshl_b32 s72, s2, 3
s_add_u32 s72, s72, s{S_WAVE}
s_lshl_b32 s72, s72, 8
s_add_u32 s72, s72, {WS_STAMP}
s_add_u32 s74, s{S_WS}, s72
s_addc_u32 s75, s{S_WS+1}, 0
v_and_b32 v253, 63, v0
v_lshlrev_b32 v253, 2, v253
global_store_dword v253, v255, s[74:75]
s_add_u32 s74, s74, 0x100000
s_addc_u32 s75, s75, 0
global_store_dword v253, v254, s[74:75]""")

def srd(a, d, ptr, off, size):
    if off is None:
        a.e(f"s_mov_b32 s{d}, s{ptr}\ns_and_b32 s{d+1}, s{ptr+1}, 0xffff")
    else:
        a.e(f"s_add_u32 s{d}, s{ptr}, s{off}\ns_addc_u32 s{d+1}, s{ptr+1}, 0\ns_and_b32 s{d+1}, s{d+1}, 0xffff")
    a.e(f"s_mov_b32 s{d+2}, {size}\ns_mov_b32 s{d+3}, 0x20000")

def flag_base(a):
    a.e(f"""s_lshl_b32 s{S_T0}, s{S_HEAD}, 9
s_add_u32 s{S_T0}, s{S_T0}, {WS_FLG}
s_add_u32 s{S_FLG}, s{S_WS}, s{S_T0}
s_addc_u32 s{S_FLG+1}, s{S_WS+1}, 0""")

def exp_list(D, kn_of, phi, rnd=True):
    L = []
    if cfg.X_NOEXP: return L
    if rnd:
        for r in range(16): L.append(f"v_cvt_pk_bf16_f32 v{D+r}, 0, v{D+r}")
    for r in range(16): L.append(f"v_add_f32 v{D+r}, v{D+r}, v{kn_of(r)}")
    if rnd:
        for r in range(16): L.append(f"v_cvt_pk_bf16_f32 v{D+r}, 0, v{D+r}")
    for r in range(16): L.append(f"v_fma_f32 v{D+r}, v{D+r}, v{V_L2E}, -4.0")
    for r in range(16): L.append(f"v_exp_f32 v{D+r}, v{D+r}")
    for r in range(8): L.append(f"v_cvt_pk_bf16_f32 v{phi+r}, v{D+2*r}, v{D+2*r+1}")
    return L

def do_pickup(a):
    for f in range(12):
        a.e(f"ds_read_b128 {vr(V_PQ+4*f,4)}, v{V_PHR} offset:{f*1024}")

def kv_load_list():
    L = [f"s_mul_i32 s{S_T2}, s{S_WAVE}, 9216"]
    for i in range(9):
        L.append(f"buffer_load_dwordx4 {vr(LAND+4*i,4)}, v{V_L16}, s[{SRD_F}:{SRD_F+3}], s{S_T2} offen {cfg.GET}")
        if i < 8: L.append(f"s_add_u32 s{S_T2}, s{S_T2}, 1024")
    return L
def kv_write_list():
    L = [f"s_mul_i32 s{S_T1}, s{S_WAVE}, 9216", f"v_add_u32 v148, s{S_T1}, v{V_L16}"]
    for i in range(9):
        L.append(f"s_waitcnt vmcnt({8-i})")
        L.append(f"ds_write_b128 v148, {vr(LAND+4*i,4)} offset:{i*1024}")
    return L

P_SCHED = {
    "init": [("K",0), ("K",1), ("K",2), ("S",1), ("V",0), ("V",1)],
    ("c",0): [("K",3)], ("c",1): [("K",4)],
    ("b",2): [("S",3), ("V",2), ("K",5), ("V",3)],
    ("b",3): [("K",6), ("V",4)], ("b",4): [("K",7), ("V",5)], ("b",5): [("S",4), ("V",6), ("V",7)],
    ("b",6): [("Q",0), ("Q",1)], ("b",7): [("Q",2), ("Q",3)], ("b","7a"): [("Q",4), ("Q",5)], ("b","7b"): [("Q",6), ("Q",7)],
}

def producer(a):
    a.inprod = True
    if cfg.PREF:
        P_SCHED[("b",5)] = [("S",4), ("V",6), ("V",7), ("F",0)]
        P_SCHED[("b",6)] = [("Q",0), ("Q",1), ("F",1)]
        P_SCHED[("b",7)] = [("Q",2), ("Q",3), ("F",2)]
        P_SCHED[("b","7a")] = [("F",3), ("Q",4), ("Q",5)]
    if cfg.TOUCH:
        P_SCHED[("b",3)] = P_SCHED[("b",3)] + [("T",0)]
    if cfg.FASTEN:
        P_SCHED[("b","7b")] = [("S",6)] + P_SCHED[("b","7b")]
    if cfg.START2:
        P_SCHED["init"] = [("K",0), ("K",1), ("S",1)]
        P_SCHED[("c",0)] = [("K",2), ("V",0), ("K",3)]
        P_SCHED[("c",1)] = [("V",1), ("K",4)]
    TMP = 208; VSC = 224; VMK = 226; VDM = 227
    VS0, VS1, VS2, VS3 = 230, 232, 234, 236
    issued = []
    a.label("L_prod")
    srd(a, SRD_X, S_K, S_ROWOFF, 98304)
    a.e(f"""s_sub_u32 s{S_T0}, s{S_WAVE}, 6
s_lshl_b32 s{S_VG}, s{S_T0}, 1
s_lshl_b32 s{S_T0}, s{S_T0}, 4
v_lshrrev_b32 v7, 3, v{V_LANE}
v_and_b32 v8, 7, v{V_LANE}
v_add_u32 v9, s{S_T0}, v7
v_mul_u32_u24 v10, 384, v9
v_lshl_add_u32 v2, v8, 4, v10""")
    def sync_step(k):
        if k == 1: flag_base(a)
        a.e(f"s_cmp_lg_u32 s{S_WAVE}, 6\ns_cbranch_scc1 L_sy{k}")
        if k == 1:
            a.e(f"""v_lshlrev_b32 v{VS1}, 7, v7
v_lshl_add_u32 v{VS1}, v8, 2, v{VS1}
s_mov_b32 exec_lo, -1
s_mov_b32 exec_hi, 0
global_load_dword v{VS0}, v{VS1}, s[{S_FLG}:{S_FLG+1}] sc1
s_mov_b64 exec, -1""")
        elif k == 3:
            a.e(f"""v_subrev_u32 v{VS1}, 1, v{VS0}
v_mov_b32 v{VS1+1}, 1
v_lshlrev_b32 v{VS1+1}, v{VS1}, v{VS1+1}
v_mov_b32 v{VS2}, 0
v_mov_b32 v{VS2+1}, 0
v_cmp_gt_u32 vcc, 32, v{VS1}
s_nop 1
s_mov_b32 vcc_hi, 0
v_cndmask_b32 v{VS2}, 0, v{VS1+1}, vcc
v_subrev_u32 v{VS1}, 32, v{VS1}
v_cmp_gt_u32 vcc, 32, v{VS1}
s_nop 1
s_mov_b32 vcc_hi, 0
v_cndmask_b32 v{VS2+1}, 0, v{VS1+1}, vcc""")
            for r in (VS2, VS2+1):
                for sh in (1, 2, 4, 8):
                    a.e(f"v_or_b32_dpp v{r}, v{r}, v{r} row_shr:{sh} row_mask:0xf bank_mask:0xf")
            a.e(f"""v_readlane_b32 s74, v{VS2}, 15
v_readlane_b32 s{S_T0}, v{VS2}, 31
v_readlane_b32 s75, v{VS2+1}, 15
v_readlane_b32 s{S_T1}, v{VS2+1}, 31
s_or_b32 s74, s74, s{S_T0}
s_or_b32 s75, s75, s{S_T1}
s_ff0_i32_b64 s{S_CAND}, s[74:75]
s_add_u32 s{S_CAND}, s{S_CAND}, 1
s_getreg_b32 s{S_XCC}, hwreg(HW_REG_XCC_ID, 0, 4)
s_and_b32 s{S_XCC}, s{S_XCC}, 7
s_lshl_b32 s{S_XCC}, s{S_XCC}, 2
s_lshl_b32 s{S_T0}, 1, s{S_XCC}
v_mov_b32 v{VS2}, s{S_CAND}
v_mov_b32 v{VS2+1}, 0
s_lshl_b32 s{S_T1}, s{S_HEAD}, 3
v_mov_b32 v{VS3}, s{S_T1}
v_mov_b32 v{VS3+1}, s{S_T0}
s_mov_b32 exec_lo, 1
s_mov_b32 exec_hi, 0
global_atomic_cmpswap v{VS1}, v{VS3}, v[{VS2}:{VS2+1}], s[{S_DBG}:{S_DBG+1}] sc0 sc1
{"global_atomic_add v%d, v%d, s[%d:%d] offset:4 sc1" % (VS3, VS3+1, S_DBG, S_DBG+1) if cfg.FASTEN else "s_nop 0"}
s_mov_b64 exec, -1""")
        elif k == 4:
            a.e(f"""s_lshl_b32 s{S_T1}, s{S_HEAD}, 3
v_mov_b32 v{VS3}, s{S_T1}
s_mov_b32 exec_lo, 1
s_mov_b32 exec_hi, 0
global_load_dword v{VS0}, v{VS3}, s[{S_DBG}:{S_DBG+1}] offset:4 sc1
s_mov_b64 exec, -1""")
        elif k == 6:
            a.e(f"""v_and_b32 v{VS2}, 8, v{V_LANE}
v_lshlrev_b32 v{VS2}, 4, v{VS2}
v_add_u32 v{VS2}, 256, v{VS2}
s_mov_b32 exec_lo, 0xffff
s_mov_b32 exec_hi, 0
global_load_dword v{VS2+1}, v{VS2}, s[{S_FLG}:{S_FLG+1}]
s_mov_b64 exec, -1""")
        elif k == 5:
            a.e(f"""v_readfirstlane_b32 s{S_NONCE}, v{VS1}
v_readfirstlane_b32 s{S_T0}, v{VS0}
s_cmp_eq_u32 s{S_NONCE}, 0
s_cselect_b32 s{S_NONCE}, s{S_CAND}, s{S_NONCE}
s_lshl_b32 s{S_T1}, 8, s{S_XCC}
s_cmp_eq_u32 s{S_T0}, s{S_T1}
s_cselect_b32 s{S_FAST}, {1 if cfg.FASTEN else 0}, 0
v_mov_b32 v{VS2}, s{S_NONCE}
v_mov_b32 v{VS2+1}, s{S_FAST}
v_mov_b32 v{VS3}, {L_CNT}
ds_write_b64 v{VS3}, v[{VS2}:{VS2+1}] offset:8
s_waitcnt lgkmcnt(0)""")
        a.label(f"L_sy{k}")
    def issue(tok):
        kind, t = tok
        if kind == "S":
            sync_step(t); return
        if kind == "T":
            issued.append(tok)
            srd(a, SRD_O, S_OUT, S_ROWOFF, 98304)
            a.e(f"s_mul_i32 s{S_T1}, s{S_HEAD}, {PART_SZ}\ns_add_u32 s{S_T1}, s{S_T1}, {WS_FIN}")
            srd(a, SRD_F, S_WS, S_T1, PART_SZ)
            a.e(f"v_mov_b32 v228, 0")
            for off in (0, 32768, 65536, 98304-64):
                a.e(f"s_mov_b32 s{S_T1}, {off}\nbuffer_load_dword v240, v228, s[{SRD_O}:{SRD_O+3}], s{S_T1} offen nt")
            for off in (0, PART_SZ-64):
                a.e(f"s_mov_b32 s{S_T1}, {off}\nbuffer_load_dword v240, v228, s[{SRD_F}:{SRD_F+3}], s{S_T1} offen nt")
            return
        if kind == "F":
            issued.append(tok)
            if t == 0:
                SP = S_WS if cfg.SCR_WS else S_OUT
                srd(a, SRD_O, SP, S_ROWOFF, 98304)
                a.e(f"s_mul_i32 s{S_T1}, s{S_HEAD}, {PART_SZ}\ns_add_u32 s{S_T1}, s{S_T1}, {WS_FIN}")
                srd(a, SRD_F, S_WS, S_T1, PART_SZ)
                a.e(f"v_lshlrev_b32 v228, 4, v{V_LANE}\ns_sub_u32 s{S_SLOT}, s{S_WAVE}, 6\ns_mul_i32 s{S_SLOT}, s{S_SLOT}, 36864")
            if t < 3:
                for i in range(12):
                    a.e(f"s_add_u32 s{S_T1}, s{S_SLOT}, {(t*12+i)*1024}")
                    a.e(f"buffer_load_dwordx4 v[240:243], v228, s[{SRD_O}:{SRD_O+3}], s{S_T1} offen {cfg.PREF_POL}")
            else:
                a.e(f"s_mul_i32 s{S_T0}, s{S_CHUNK}, 9216")
                for i in range(12):
                    if i < 9:
                        a.e(f"s_add_u32 s{S_T1}, s{S_T0}, {i*1024}")
                        a.e(f"buffer_load_dwordx4 v[240:243], v228, s[{SRD_F}:{SRD_F+3}], s{S_T1} offen {cfg.PREF_POL}")
                    elif i < 11:
                        a.e(f"s_mov_b32 s{S_T1}, {PART_SZ + (i-9)*1024}")
                        a.e(f"buffer_load_dwordx4 v[240:243], v228, s[{SRD_O}:{SRD_O+3}], s{S_T1} offen {cfg.PREF_POL}")
            return
        issued.append(tok)
        if kind in "KQ":
            srdn = SRD_X if kind == "K" else SRD_Q
            a.e(f"s_mov_b32 s{S_T1}, {t*12288}")
            for g in range(2):
                for cb in range(3):
                    r = V_RAW + 24*t + 12*g + 4*cb
                    a.e(f"buffer_load_dwordx4 {vr(r,4)}, v2, s[{srdn}:{srdn+3}], s{S_T1} offen offset:{g*3072+cb*128} {cfg.NT}")
        else:
            for e in range(2):
                for cb in range(3):
                    a.e(f"s_add_u32 m0, s{S_VB}, {t*12288 + cb*4096 + e*1024}\ns_add_u32 s{S_T1}, s{S_VG}, {t*12288 + e*3072 + cb*128}")
                    a.e(f"buffer_load_dwordx4 v{VDM}, s[{SRD_V}:{SRD_V+3}], s{S_T1} offen {cfg.NT} lds")
    def wait_for(tok):
        wt = lambda t: (12 if t[1] < 3 else 11) if t[0] == "F" else 6
        n = sum(wt(t) for t in issued[issued.index(tok)+1:])
        n = min(n, 63)
        a.e(f"s_waitcnt vmcnt({n})")
    def ev(key):
        for tok in P_SCHED.get(key, []): issue(tok)
    ninit = 2 if cfg.START2 else 3
    for tok in P_SCHED["init"][:ninit]: issue(tok)
    srd(a, SRD_V, S_V, S_ROWOFF, 98304)
    a.e(f"""v_mul_u32_u24 v11, 384, v7
v_lshrrev_b32 v12, 2, v{V_LANE}
v_and_b32 v12, 4, v12
v_xor_b32 v12, v12, v8
v_lshl_add_u32 v{VDM}, v12, 4, v11
s_lshl_b32 s{S_VB}, s{S_VG}, 10
s_mul_i32 s{S_VG}, s{S_VG}, 3072""")
    for tok in P_SCHED["init"][ninit:]: issue(tok)
    if cfg.CODEPF:
        a.e(f"""s_getpc_b64 s[90:91]
L_pcbase:
s_sub_u32 s90, s90, L_pcbase - {NAME}
s_subb_u32 s91, s91, 0
s_lshr_b32 s{S_T0}, s2, 3
s_and_b32 s{S_T0}, s{S_T0}, 31
s_lshl_b32 s{S_T0}, s{S_T0}, 10
s_sub_u32 s{S_T1}, s{S_WAVE}, 6
s_lshl_b32 s{S_T1}, s{S_T1}, 15
s_add_u32 s{S_T0}, s{S_T0}, s{S_T1}
v_lshlrev_b32 v11, 4, v{V_LANE}
v_add_u32 v11, s{S_T0}, v11
v_min_u32 v11, L_end - {NAME} - 16, v11
global_load_dwordx4 v[240:243], v11, s[90:91]""")
    srd(a, SRD_Q, S_Q, S_ROWOFF, 98304)
    a.e(f"""v_lshrrev_b32 v11, 1, v7
v_xor_b32 v11, v11, v8
v_lshlrev_b32 v12, 4, v11
v_lshlrev_b32 v10, 7, v9
v_add_u32 v3, v10, v12
v_xor_b32 v4, 64, v3
v_add_u32 v4, 1024, v4
v_lshlrev_b32 v5, 2, v9
v_add_u32 v5, {L_XN}, v5
v_mov_b32 v{VSC}, {SCALE}
v_mov_b32 v{VSC+1}, {SCALE}
v_mov_b32 v{VMK}, 0xffff0000
v_add_u32 v13, {L_XS}, v3
v_add_u32 v14, {L_XS}, v4""")
    def convert(kind, t):
        T = t if kind == "K" else 8 + t
        b = V_RAW + 24*t
        wait_for((kind, t))
        stamp(a, 2 + 3*T, 2)
        if kind == "K": A0, off = 13, (t % 3)*12288
        else: A0, off = 3, 0
        for g in range(2):
            nreg = TMP + 8 + g
            a.e(f"v_mov_b32 v{nreg}, 0\nv_mov_b32 v{nreg+2}, 0")
            for c4 in range(3):
                xs_ = [b + 12*g + 4*c4 + i for i in range(4)]
                for i, x in enumerate(xs_): a.e(f"v_lshlrev_b32 v{TMP+2*i}, 16, v{x}")
                for i, x in enumerate(xs_): a.e(f"v_and_b32 v{TMP+2*i+1}, v{VMK}, v{x}")
                for i, x in enumerate(xs_): a.e(f"v_pk_mul_f32 v[{TMP+2*i}:{TMP+2*i+1}], v[{TMP+2*i}:{TMP+2*i+1}], v[{VSC}:{VSC+1}]")
                for i, x in enumerate(xs_): a.e(f"v_cvt_pk_bf16_f32 v{x}, v{TMP+2*i}, v{TMP+2*i+1}")
                for i, x in enumerate(xs_): a.e(f"v_dot2c_f32_bf16 v{nreg + 2*(i&1)}, v{x}, v{x}")
                a.e(f"ds_write_b128 v{A0+g}, {vr(b+12*g+4*c4,4)} offset:{off + c4*4096}")
            a.e(f"v_add_f32 v{nreg}, v{nreg}, v{nreg+2}")
        for perm in ("quad_perm:[1,0,3,2]", "quad_perm:[2,3,0,1]", "row_half_mirror"):
            for g in range(2):
                nreg = TMP + 8 + g
                a.e(f"v_add_f32_dpp v{nreg}, v{nreg}, v{nreg} {perm} row_mask:0xf bank_mask:0xf")
        for g in range(2): a.e(f"v_cvt_pk_bf16_f32 v{TMP+8+g}, 0, v{TMP+8+g}")
        for g in range(2): a.e(f"v_mul_f32 v{TMP+8+g}, -0.5, v{TMP+8+g}")
        for g in range(2): a.e(f"ds_write_b32 v5, v{TMP+8+g} offset:{T*128 + g*32}")
        if kind == "Q": a.e("v_add_u32 v3, 12288, v3\nv_add_u32 v4, 12288, v4")
        a.e("s_waitcnt lgkmcnt(0)")
        stamp(a, 3 + 3*T, 2)
    for T in range(8):
        convert("K", T)
        ev(("c", T))
        if T == 1: a.e("s_barrier")
        if T == 2: a.e("s_barrier")
        if T >= 2:
            wait_for(("V", T - 2))
            a.e("s_barrier")
        stamp(a, 4 + 3*T, 2)
        ev(("b", T))
    wait_for(("V", 6))
    sync_step(5)
    a.e("s_barrier")
    ev(("b", "7a"))
    convert("Q", 0)
    wait_for(("V", 7))
    a.e("s_barrier")
    ev(("b", "7b"))
    convert("Q", 1)
    convert("Q", 2)
    a.e("s_barrier\ns_barrier\ns_barrier")
    for t in range(3, 8):
        convert("Q", t)
        a.e("s_barrier")
        pass
    a.e(f"v_lshlrev_b32 v{V_L16}, 4, v{V_LANE}")
    a.e(f"s_mul_i32 s{S_T1}, s{S_HEAD}, {PART_SZ}\ns_add_u32 s{S_T1}, s{S_T1}, {WS_FIN}")
    srd(a, SRD_F, S_WS, S_T1, PART_SZ)
    assert cfg.QPB in (4, 5, 6, 7)
    a.e("s_barrier")
    if cfg.QPB <= 5:
        for x in kv_load_list(): a.e(x)
    a.e("s_barrier")
    if cfg.QPB == 6:
        for x in kv_load_list(): a.e(x)
    a.e(f"s_cmp_eq_u32 s{S_WAVE}, 6\ns_cbranch_scc0 L_pp6")
    a.e(f"s_mul_i32 s{S_T0}, s{S_WAVE}, 12288\nv_add_u32 v{V_PHR}, s{S_T0}, v{V_L16}")
    do_pickup(a)
    a.label("L_pp6")
    if cfg.QPB == 7:
        a.e("s_waitcnt lgkmcnt(0)\ns_barrier")
        for x in kv_load_list(): a.e(x)
    for x in kv_write_list(): a.e(x)
    a.e("s_waitcnt lgkmcnt(0)")
    a.e("s_branch L_fin")
    a.inprod = False

def FB(k): return V_FB + 4*(k % 8)
class Item:
    def __init__(self, tag, reads, mfma):
        self.tag = tag; self.reads = reads; self.mfma = mfma
def itemA(j, D, p1):
    def reads(b): return [f"ds_read_b128 {vr(b,4)}, v{V_A+(j&3)} offset:{(j>>2)*4096}"]
    def mfma(b):
        fp = vr(V_P+4*j, 4); c = "0" if j == 0 else vr(D, 16)
        return f"v_mfma_f32_32x32x16_bf16 {vr(D,16)}, {vr(b,4)}, {fp}, {c}" if p1 else f"v_mfma_f32_32x32x16_bf16 {vr(D,16)}, {fp}, {vr(b,4)}, {c}"
    return Item(("A", j), reads, mfma)
def itemB(idx):
    jj, dt = idx // 6, idx % 6
    base = V_VE if dt % 2 == 0 else V_VO
    def reads(b): return [f"ds_read_b64_tr_b16 {vr(b+2*u,2)}, v{base} offset:{(dt>>1)*4096+(16*jj+8*u)*128}" for u in range(2)]
    def mfma(b): return f"v_mfma_f32_32x32x16_bf16 {vr(V_ACC+16*dt,16)}, {vr(V_PHI+4*jj,4)}, {vr(b,4)}, {vr(V_ACC+16*dt,16)}"
    return Item(("B", idx), reads, mfma)
def issue_item(lq, it, k, uid):
    rs = it.reads(FB(k))
    for n, r in enumerate(rs): lq.issue(r, (uid, k, n))
    return (uid, k, len(rs)-1)
def emit(a, x):
    if callable(x): x()
    else: a.e(x)
def run_stream(a, lq, items, nxt, side, k0=0, pend=None, depth=None):
    D = depth or cfg.DEPTH
    n = len(items)
    pend = dict(pend or {})
    out = {}
    for k in range(n):
        if cfg.WAIT2 and k % 2 == 0 and k + 1 < n and (k + 1) in pend: lq.wait(pend[k + 1])
        lq.wait(pend[k])
        a.e(items[k].mfma(FB(k0 + k)))
        kk = k + D
        if kk < n:
            pend[kk] = issue_item(lq, items[kk], k0 + kk, "c")
        elif nxt is not None and kk - n < len(nxt):
            out[kk - n] = issue_item(lq, nxt[kk - n], k0 + kk, "n")
        for x in side.get(k, []): emit(a, x)
    return out
def prime(lq, items, k0=0, depth=None):
    D = depth or cfg.DEPTH
    return {k: issue_item(lq, items[k], k0 + k, "p") for k in range(D)}
def spread(L, lo, hi, side=None):
    side = side if side is not None else {}
    n = hi - lo
    k = 0
    for p in range(n):
        upto = (len(L) * (p + 1)) // n
        side.setdefault(lo + p, [])
        while k < upto:
            side[lo + p].append(L[k]); k += 1
    return side

def signal(a, lds_off, target, flag_off, name):
    a.e(f"""v_mov_b32 v{V_T0}, {L_CNT}
v_mov_b32 v{V_T0+1}, 1
s_mov_b32 exec_lo, 1
s_mov_b32 exec_hi, 0
ds_add_rtn_u32 v{V_T0+2}, v{V_T0}, v{V_T0+1} offset:{lds_off}
s_waitcnt lgkmcnt(0)
v_readfirstlane_b32 s{S_T0}, v{V_T0+2}
s_cmp_eq_u32 s{S_T0}, {target-1}
s_cbranch_scc0 L_sig_{name}
s_lshl_b32 s{S_T0}, s{S_CHUNK}, 2
v_mov_b32 v{V_T0}, s{S_T0}
v_mov_b32 v{V_T0+1}, s{S_NONCE}
s_cmp_lg_u32 s{S_FAST}, 0
s_cbranch_scc1 L_sigf_{name}
global_store_dword v{V_T0}, v{V_T0+1}, s[{S_FLG}:{S_FLG+1}] offset:{flag_off} sc1
s_branch L_sig_{name}""")
    a.label(f"L_sigf_{name}")
    a.e(f"global_store_dword v{V_T0}, v{V_T0+1}, s[{S_FLG}:{S_FLG+1}] offset:{flag_off+256}")
    a.label(f"L_sig_{name}")
    a.e("s_mov_b64 exec, -1")

def poll_block(a, flag_off, name):
    a.e(f"""s_mov_b32 s{S_SPIN}, 0
v_and_b32 v{V_T0}, 7, v{V_LANE}
v_lshlrev_b32 v{V_T0}, 2, v{V_T0}
v_and_b32 v{V_T0+1}, 8, v{V_LANE}
v_lshl_add_u32 v{V_T0}, v{V_T0+1}, 5, v{V_T0}""")
    a.label(f"L_poll_{name}")
    a.e(f"""s_mov_b32 exec_lo, 0xffff
s_mov_b32 exec_hi, 0
global_load_dword v{V_FL}, v{V_T0}, s[{S_FLG}:{S_FLG+1}] offset:{flag_off} sc1
s_mov_b64 exec, -1
s_waitcnt vmcnt(0)
v_cmp_eq_u32 vcc, s{S_NONCE}, v{V_FL}
s_nop 1
s_and_b32 s{S_T3}, vcc_lo, 0xffff
s_lshr_b32 s{S_T0}, s{S_T3}, 8
s_or_b32 s{S_T3}, s{S_T3}, s{S_T0}
s_and_b32 s{S_T3}, s{S_T3}, 0xff
s_cmp_eq_u32 s{S_T3}, 0xff
s_cbranch_scc1 L_polld_{name}
s_add_u32 s{S_SPIN}, s{S_SPIN}, 1
s_cmp_lt_u32 s{S_SPIN}, 0x80000
s_cbranch_scc1 L_poll_{name}""")
    a.label(f"L_polld_{name}")

def kn_reads(lq):
    def f():
        for q in range(4):
            lq.issue(f"ds_read_b128 {vr(V_KN+4*q,4)}, v{V_XN} offset:{q*32}", ("K", q))
        lq.a.e(f"v_add_u32 v{V_XN}, 128, v{V_XN}")
    return f
def xs_adv(a):
    def f():
        a.e(f"""s_add_u32 s{S_SLOT}, s{S_SLOT}, 1
s_cmp_eq_u32 s{S_SLOT}, {XS_R}
s_cselect_b32 s{S_DLT}, s{S_CM24K}, s{S_C12K}
s_cselect_b32 s{S_SLOT}, 0, s{S_SLOT}""")
        for r in range(V_A, V_A+4): a.e(f"v_add_u32 v{r}, s{S_DLT}, v{r}")
    return f
def xs_addr(a, base):
    a.e(f"""v_and_b32 v176, 31, v{V_LANE}
v_lshrrev_b32 v177, 5, v{V_LANE}
v_lshrrev_b32 v178, 1, v176
v_and_b32 v178, 7, v178
v_lshlrev_b32 v179, 7, v176
v_add_u32 v179, {base}, v179""")
    for k in range(4):
        a.e(f"""v_add_u32 v180, {2*k}, v177
v_xor_b32 v180, v180, v178
v_lshl_add_u32 v{V_A+k}, v180, 4, v179""")

def compute(a):
    lq = LQ(a)
    D = cfg.DEPTH
    a.e("s_setprio 3")
    a.e(f"""v_lshrrev_b32 v160, 3, v{V_LANE}
v_and_b32 v161, 7, v{V_LANE}
v_mul_u32_u24 v162, 384, v160
v_lshrrev_b32 v164, 1, v160
v_xor_b32 v164, v164, v161
v_lshl_add_u32 v164, v164, 4, v162
v_xor_b32 v165, 64, v164
s_mul_i32 s{S_T1}, s{S_WAVE}, 12288""")
    srd(a, SRD_P, S_P, S_T1, 12288)
    a.e(f"s_add_u32 s{S_T2}, s{S_T1}, 24576")
    for cb in range(3):
        for G in range(4):
            a.e(f"s_add_u32 m0, s{S_T2}, {cb*4096+G*1024}\ns_mov_b32 s{S_T3}, {G*3072+cb*128}")
            a.e(f"buffer_load_dwordx4 v{164+(G&1)}, s[{SRD_P}:{SRD_P+3}], s{S_T3} offen lds")
    a.e("s_setprio 0")
    xs_addr(a, L_XS)
    a.e(f"""v_lshlrev_b32 v{V_L16}, 4, v{V_LANE}
v_lshlrev_b32 v{V_XN}, 4, v177
v_add_u32 v{V_XN}, {L_XN}, v{V_XN}
v_and_b32 v178, 15, v{V_LANE}
v_lshrrev_b32 v179, 2, v178
v_lshl_add_u32 v179, v177, 2, v179
v_lshlrev_b32 v179, 7, v179
v_bfe_u32 v180, v{V_LANE}, 4, 1
v_lshl_add_u32 v179, v180, 5, v179
v_and_b32 v180, 3, v178
v_lshl_add_u32 v179, v180, 3, v179
v_bfe_u32 v180, v178, 3, 1
v_lshl_add_u32 v{V_VE}, v180, 6, v179
v_xor_b32 v180, 1, v180
v_lshl_add_u32 v{V_VO}, v180, 6, v179
v_mov_b32 v{V_L2E}, {LOG2E}
v_mov_b32 v181, {L_CNT}
v_mov_b32 v182, 0
v_mov_b32 v183, 0
ds_write_b64 v181, v[182:183]
v_mov_b32 v{V_ONES}, 0x3f803f80
v_mov_b32 v{V_ONES+1}, 0x3f803f80
s_mov_b32 s{S_SLOT}, 0""")
    for r in range(4): a.e(f"v_mov_b32 v{V_KS4+r}, 0")
    for r in range(96): a.e(f"v_mov_b32 v{V_ACC+r}, 0")
    for r in range(8): a.e(f"v_mov_b32 v{V_PHI+r}, 0")
    a.e(f"s_mul_i32 s{S_T1}, s{S_WAVE}, 12288\ns_add_u32 s{S_T1}, s{S_T1}, {24576 - L_XS}")
    for k in range(4): a.e(f"v_add_u32 v{184+k}, s{S_T1}, v{V_A+k}")
    flag_base(a)
    a.e("s_waitcnt vmcnt(0)")
    for j in range(12):
        a.e(f"ds_read_b128 {vr(V_P+4*j,4)}, v{184+(j&3)} offset:{(j>>2)*4096}")
    a.e("s_waitcnt lgkmcnt(0)")
    stamp(a, 1)
    a.e("s_barrier")
    stamp(a, 2)
    if cfg.DIAG: a.e("s_memrealtime s[76:77]\ns_memtime s[80:81]\ns_waitcnt lgkmcnt(0)\ns_mov_b32 s88, s76\ns_mov_b32 s89, s80")
    A0 = [itemA(j, V_D1, True) for j in range(12)]
    pend = prime(lq, A0, 0)
    run_stream(a, lq, A0, None, {}, 0, pend)
    xs_adv(a)()
    a.e("s_barrier")
    a.e(f"s_mov_b32 s{S_T}, 0")
    Bs = [itemB(i) for i in range(12)]
    ks4 = [f"v_mfma_f32_4x4x4_16b_bf16 {vr(V_KS4,4)}, {vr(V_ONES,2)}, {vr(V_PHI+2*r,2)}, {vr(V_KS4,4)}" for r in range(4)]
    def seqZ(par): return Bs + [itemA(j, V_D1 + 16*(1-par), True) for j in range(12)]
    vadv = [f"v_add_u32 v{V_VE}, 12288, v{V_VE}", f"v_add_u32 v{V_VO}, 12288, v{V_VO}"]
    def e_order(el):
        if not el: return [], []
        if cfg.EORD == 0: return el[:-8], el[-8:]
        d = cfg.EORD
        items = []
        for k in range(2, 5):
            for r in range(16): items.append((r + k*d, k, el[16*k + r]))
        items.sort(key=lambda t: (t[0], -t[1]))
        return el[:32] + [x[2] for x in items], el[-8:]
    KNPOS = 12
    kwait = lambda: lq.wait(("K", 3))
    def with_kwait(body):
        idx = next(n for n, x in enumerate(body) if x.startswith("v_add_f32"))
        return body[:idx] + [kwait] + body[idx:]
    kn_reads(lq)()
    A1 = [itemA(j, V_D1 + 16, True) for j in range(12)]
    pend = prime(lq, A1, 0)
    stamp_idx(a, S_T, 4, 3)
    a.e("s_barrier")
    stamp_idx(a, S_T, 4, 4)
    el = exp_list(V_D1, lambda r: V_KN + r, V_PHI)
    side = {}
    if el:
        e0 = el[:16] + [kwait] + el[16:]
        spread(e0[:33], 0, 4, side)
        spread(e0[33:], 5, 12, side)
    side.setdefault(4, []).append(kn_reads(lq))
    side.setdefault(11 - D, []).append(xs_adv(a))
    assert 11 - D == 4
    pend = run_stream(a, lq, A1, seqZ(1), side, 0, pend)
    stamp_idx(a, S_T, 4, 6)
    a.e(f"s_mov_b32 s{S_T}, 1")
    a.label("L_p1")
    for par in (1, 0):
        stamp_idx(a, S_T, 4, 3)
        a.e("s_barrier")
        stamp_idx(a, S_T, 4, 4)
        side = {}
        body, pack = e_order(exp_list(V_D1 + 16*par, lambda r: V_KN + r, V_PHI))
        for r in range(4): side.setdefault(1 + 3*r, []).append(ks4[r])
        if body:
            spread(with_kwait(body), 0, 22, side)
            spread(pack, 22, 24, side)
        side.setdefault(11 - D, []).extend(vadv)
        side.setdefault(23 - D, []).append(xs_adv(a))
        side.setdefault(KNPOS, []).append(kn_reads(lq))
        pend = run_stream(a, lq, seqZ(par), seqZ(1-par), side, 12, pend)
        stamp_idx(a, S_T, 4, 6)
        a.e(f"s_add_u32 s{S_T}, s{S_T}, 1")
    a.e(f"s_cmp_lt_u32 s{S_T}, 7\ns_cbranch_scc1 L_p1")
    stamp_idx(a, S_T, 4, 3)
    a.e("s_barrier")
    stamp_idx(a, S_T, 4, 4)
    side = {}
    el = exp_list(V_D1 + 16, lambda r: V_KN + r, V_PHI)
    for r in range(4): side.setdefault(1 + 3*r, []).append(ks4[r])
    if el:
        spread(with_kwait(el[:-8]), 0, 12, side)
        side.setdefault(11, []).extend(el[-8:])
    side.setdefault(11 - D, []).extend(vadv)
    pend = run_stream(a, lq, Bs, Bs, side, 12, pend)
    stamp_idx(a, S_T, 4, 6)
    a.e(f"v_mov_b32 v{V_T0}, {L_CNT}")
    lq.issue(f"ds_read_b64 v[{V_T0+0}:{V_T0+1}], v{V_T0} offset:8", ("N",))
    SP = S_WS if cfg.SCR_WS else S_OUT
    srd(a, SRD_O, SP, S_ROWOFF, 98304)
    a.e(f"s_mul_i32 s{S_T1}, s{S_HEAD}, 786432")
    srd(a, SRD_W, SP, S_T1, 786432)
    a.e(f"s_mul_i32 s{S_T1}, s{S_HEAD}, {PART_SZ}\ns_add_u32 s{S_T1}, s{S_T1}, {WS_FIN}")
    srd(a, SRD_F, S_WS, S_T1, PART_SZ)
    lq.wait(("N",))
    a.e(f"v_readfirstlane_b32 s{S_NONCE}, v{V_T0}\nv_readfirstlane_b32 s{S_FAST}, v{V_T0+1}")
    PK = V_ACC
    def pack(dt):
        return [f"v_cvt_pk_bf16_f32 v{PK+8*dt+i}, v{V_ACC+16*dt+2*i}, v{V_ACC+16*dt+2*i+1}" for i in range(8)]
    side = {}
    for r in range(4): side.setdefault(1 + 2*r, []).append(ks4[r])
    for dt in range(3): side.setdefault(9 + dt, []).extend(pack(dt))
    run_stream(a, lq, Bs, None, side, 0, pend)
    for dt in (3, 4, 5):
        for x in pack(dt): a.e(x)
    lq.q = []
    stamp(a, 40)
    def pub_list():
        L = [f"s_lshl_b32 s{S_VB}, s{S_WAVE}, 11"]
        for dt in range(6):
            for jj in range(2):
                L.append(f"buffer_store_dwordx4 {vr(PK+8*dt+4*jj,4)}, v{V_L16}, s[{SRD_O}:{SRD_O+3}], s{S_VB} offen offset:{jj*1024} {cfg.PUB}")
            if dt < 5: L.append(f"s_add_u32 s{S_VB}, s{S_VB}, 12288")
        L += [f"v_lshlrev_b32 v{V_T0+1}, 2, v{V_LANE}", f"s_lshl_b32 s{S_VB}, s{S_WAVE}, 8", f"s_add_u32 s{S_VB}, s{S_VB}, {PART_SZ}",
              f"buffer_store_dword v{V_KS4}, v{V_T0+1}, s[{SRD_O}:{SRD_O+3}], s{S_VB} offen {cfg.PUB}"]
        return L
    PUBL = pub_list()
    npro = cfg.PUBPRO
    xs_addr(a, 0)
    V_ID = 206; V_SA = 192; V_O8 = 204
    a.e(f"""v_lshlrev_b32 v{V_XN}, 2, v176
v_add_u32 v{V_XN}, {L_XN + 8*128}, v{V_XN}
s_lshl_b32 s{S_T0}, s{S_WAVE}, 11
v_add_u32 v{V_PHW}, s{S_T0}, v{V_L16}
s_mul_i32 s{S_T0}, s{S_WAVE}, 12288
v_add_u32 v{V_PHR}, s{S_T0}, v{V_L16}
v_and_b32 v{V_T0}, 3, v{V_LANE}
v_mov_b32 v{V_T0+1}, 0x3f80
v_mov_b32 v{V_T0+2}, 0x3f800000
v_cmp_eq_u32 vcc, 0, v{V_T0}
v_cndmask_b32 v{V_ID}, 0, v{V_T0+1}, vcc
v_cmp_eq_u32 vcc, 1, v{V_T0}
v_cndmask_b32 v{V_ID}, v{V_ID}, v{V_T0+2}, vcc
v_cmp_eq_u32 vcc, 2, v{V_T0}
v_cndmask_b32 v{V_ID+1}, 0, v{V_T0+1}, vcc
v_cmp_eq_u32 vcc, 3, v{V_T0}
v_cndmask_b32 v{V_ID+1}, v{V_ID+1}, v{V_T0+2}, vcc
s_mul_i32 s{S_T0}, s{S_CHUNK}, 9216
s_mul_i32 s{S_T1}, s{S_WAVE}, 1536
s_add_u32 s{S_VG}, s{S_T0}, s{S_T1}
v_lshlrev_b32 v{V_O8}, 3, v{V_LANE}
v_add_u32 v{V_O8}, 1024, v{V_O8}""")
    for x in PUBL[:cfg.PUBPRE]: a.e(x)
    stamp(a, 41)
    a.e("s_barrier")
    stamp(a, 43)
    def qadv():
        for r in range(V_A, V_A+4): a.e(f"v_add_u32 v{r}, 12288, v{r}")
    Q0 = [itemA(j, V_D1, False) for j in range(12)]
    pend = prime(lq, Q0, 0)
    run_stream(a, lq, Q0, None, spread(PUBL[cfg.PUBPRE:npro], 0, 12), 0, pend)
    qadv()
    a.e("s_barrier")
    def seqQ(par): return [itemA(j, V_D1 + 16*(1-par), False) for j in range(12)]
    pend = prime(lq, seqQ(0), 12)
    def sb_load_list():
        L = [f"s_mov_b32 s{S_T2}, s{S_VG}"]
        for p in range(8):
            L.append(f"buffer_load_dwordx4 {vr(LAND+6*p,4)}, v{V_L16}, s[{SRD_W}:{SRD_W+3}], s{S_T2} offen {cfg.GET}")
            L.append(f"buffer_load_dwordx2 {vr(LAND+6*p+4,2)}, v{V_O8}, s[{SRD_W}:{SRD_W+3}], s{S_T2} offen {cfg.GET}")
            if p < 7: L.append(f"s_add_u32 s{S_T2}, s{S_T2}, 98304")
        return L
    def sb_sum_list():
        L = ["s_waitcnt vmcnt(0)"]
        for p in range(8):
            for c in range(3):
                cc = "0" if p == 0 else vr(V_SA+4*c, 4)
                L.append(f"v_mfma_f32_4x4x4_16b_bf16 {vr(V_SA+4*c,4)}, {vr(V_ID,2)}, {vr(LAND+6*p+2*c,2)}, {cc}")
        return L
    KL = [7, 8, 9, 205, 12, 15, V_T0+2, V_T0+3]
    def ks_load_list():
        L = [f"v_lshlrev_b32 v{V_FL}, 2, v{V_LANE}", f"s_lshl_b32 s{S_T2}, s{S_WAVE}, 8", f"s_add_u32 s{S_T2}, s{S_T2}, {PART_SZ}"]
        for c in range(8):
            L.append(f"buffer_load_dword v{KL[c]}, v{V_FL}, s[{SRD_W}:{SRD_W+3}], s{S_T2} offen {cfg.GET}")
            if c < 7: L.append(f"s_add_u32 s{S_T2}, s{S_T2}, 98304")
        return L
    def ks_fin_list():
        K = KL[0]; K1 = KL[1]
        L = []
        for c in range(1, 8): L.append(f"v_add_f32 v{K}, v{K}, v{KL[c]}")
        L += [f"v_mov_b32 v{K1}, v{K}", "s_nop 1", f"v_permlane32_swap_b32 v{K}, v{K1}", "s_nop 1", f"v_add_f32 v{K}, v{K}, v{K1}",
              f"v_cvt_pk_bf16_f32 v{K}, v{K}, v{K}", f"v_and_b32 v{K1}, 31, v{V_LANE}", f"v_lshlrev_b32 v{K1}, 1, v{K1}",
              f"s_lshl_b32 s{S_T2}, s{S_WAVE}, 6", f"s_add_u32 s{S_T2}, s{S_T2}, {L_KS}", f"v_add_u32 v{K1}, s{S_T2}, v{K1}",
              lambda: lq.issue(f"ds_write_b16 v{K1}, v{K}", ("X",))]
        return L
    def sigB():
        a.e("s_waitcnt vmcnt(0)")
        signal(a, 4, 6, 128, "B")
        lq.q = []
    assert cfg.QS <= 6
    for q in range(8):
        par = q % 2
        k0 = 12 if par == 0 else 0
        a.e("s_barrier")
        stamp(a, 44 + q)
        if 1 <= q <= 6:
            a.e(f"s_cmp_eq_u32 s{S_WAVE}, {q-1}\ns_cbranch_scc0 L_cpk_{q}")
            do_pickup(a)
            a.e("s_waitcnt lgkmcnt(0)")
            a.label(f"L_cpk_{q}")
        lq.issue(f"ds_read_b32 v{V_QN}, v{V_XN} offset:{q*128}", ("K", 0))
        side = {}
        el = exp_list(V_D1 + 16*par, lambda r: V_QN, V_PHI, cfg.QROUND)
        nlead = 16 if cfg.QROUND else 0
        el2 = el[:nlead] + [lambda: lq.wait(("K", 0))] + el[nlead:]
        spread(el2, 0 if cfg.QROUND else 1, 12, side)
        side.setdefault(11 - D, []).append(qadv)
        extra = []
        if q == 0: extra = extra + PUBL[npro:]
        if q == cfg.QL: extra = extra + sb_load_list() + ks_load_list()
        if q == cfg.QS: extra = extra + sb_sum_list()
        if cfg.QPB < 7 and q == cfg.QPB + 1: extra = extra + kv_load_list()
        if cfg.QPB < 7 and q == 7: extra = extra + kv_write_list()
        if extra: spread(extra, 0, 11, side)
        if q == cfg.QS + 1: side.setdefault(2, []).append(sigB)
        if q < 7:
            pend = run_stream(a, lq, seqQ(par), seqQ(1-par) if q < 6 else None, side, k0, pend)
        else:
            a.e(f"v_lshrrev_b32 v{V_A}, 5, v{V_LANE}\nv_lshlrev_b32 v{V_A}, 3, v{V_A}\nv_add_u32 v{V_A}, {L_KS}, v{V_A}")
            def itemD(f):
                o = 8*(f >> 1) + 4*(f & 1)
                def reads(b): return [f"ds_read2_b64 {vr(b,4)}, v{V_A} offset0:{o} offset1:{o+2}"]
                def mfma(b):
                    c = "0" if f == 0 else vr(V_D1, 16)
                    return f"v_mfma_f32_32x32x16_bf16 {vr(V_D1,16)}, {vr(b,4)}, {vr(V_PQ+4*f,4)}, {c}"
                return Item(("D", f), reads, mfma)
            Ds = [itemD(f) for f in range(12)]
            side[11 - D] = [x for x in side.get(11 - D, []) if x is not qadv]
            pd = prime(lq, Ds, 0)
            run_stream(a, lq, Ds, None, side, 0, pd)
        stamp(a, 3 + 3*q, 3)
        for jj in range(2):
            lq.issue(f"ds_write_b128 v{V_PHW}, {vr(V_PHI+4*jj,4)} offset:{jj*1024}", ("W", jj))
        if q < 7: a.e(f"v_add_u32 v{V_PHW}, 12288, v{V_PHW}")
        if q == cfg.QA:
            a.e("s_waitcnt vmcnt(0)")
            stamp(a, 42)
            signal(a, 0, 6, 0, "A")
            lq.q = []
        if q == cfg.QPA:
            a.e(f"s_cmp_lg_u32 s{S_WAVE}, 0\ns_cbranch_scc1 L_npa")
            poll_block(a, 0, "A")
            a.label("L_npa")
        if q == cfg.QS:
            for i in range(6): a.e(f"v_cvt_pk_bf16_f32 v{LAND+i}, v{V_SA+2*i}, v{V_SA+2*i+1}")
            a.e(f"buffer_store_dwordx4 {vr(LAND,4)}, v{V_L16}, s[{SRD_F}:{SRD_F+3}], s{S_VG} offen {cfg.PUB}")
            a.e(f"buffer_store_dwordx2 {vr(LAND+4,2)}, v{V_O8}, s[{SRD_F}:{SRD_F+3}], s{S_VG} offen {cfg.PUB}")
            for x in ks_fin_list(): emit(a, x)
        if q == cfg.QPB:
            a.e(f"s_cmp_lg_u32 s{S_WAVE}, 0\ns_cbranch_scc1 L_npb")
            poll_block(a, 128, "B")
            a.label("L_npb")
        stamp(a, 4 + 3*q, 3)
        a.e("s_waitcnt lgkmcnt(0)")
        lq.q = []
    a.e(f"s_nop 3\nv_add_f32 v{V_DENH}, {EPS}, v{V_D1}\nv_rcp_f32 v{V_DENH}, v{V_DENH}")
    stamp(a, 52)
    if cfg.QPB == 7:
        a.e("s_barrier")
        for x in kv_load_list(): a.e(x)
        for x in kv_write_list(): a.e(x)
        a.e("s_waitcnt lgkmcnt(0)")

def fin(a):
    a.label("L_fin")
    a.e("s_barrier")
    stamp(a, 54)
    a.e(f"s_cmp_eq_u32 s{S_WAVE}, 7\ns_cbranch_scc0 L_fpk")
    a.e(f"s_mul_i32 s{S_T0}, s{S_WAVE}, 12288\nv_add_u32 v{V_PHR}, s{S_T0}, v{V_L16}")
    do_pickup(a)
    a.e("s_waitcnt lgkmcnt(0)")
    a.label("L_fpk")
    stamp(a, 56)
    if cfg.DIAG: a.e("s_memrealtime s[76:77]\ns_memtime s[80:81]\ns_waitcnt lgkmcnt(0)\ns_mov_b32 s92, s76\ns_mov_b32 s93, s80")
    p2b(a)
    stamp(a, 57)
    if cfg.STAMPS: a.e("s_waitcnt vmcnt(0)")
    stamp(a, 58)
    stamp_flush(a)
    if cfg.DIAG:
        a.e("s_waitcnt vmcnt(0)")
        a.e("s_memrealtime s[76:77]\ns_memtime s[80:81]\ns_waitcnt lgkmcnt(0)\ns_mov_b32 s94, s76\ns_mov_b32 s95, s80")
        a.e(f"""s_cmp_lg_u32 s{S_WAVE}, 0
s_cbranch_scc1 L_end
s_cmp_lg_u32 s{S_CHUNK}, 3
s_cbranch_scc1 L_end
s_cmp_ge_u32 s{S_HEAD}, 8
s_cbranch_scc1 L_end
s_sub_u32 s88, s88, s86
s_sub_u32 s90, s90, s86
s_sub_u32 s92, s92, s86
s_sub_u32 s94, s94, s86
s_sub_u32 s89, s89, s87
s_sub_u32 s91, s91, s87
s_sub_u32 s93, s93, s87
s_sub_u32 s95, s95, s87
s_mov_b32 s96, s88
s_cmp_eq_u32 s{S_HEAD}, 1
s_cselect_b32 s96, s90, s96
s_cmp_eq_u32 s{S_HEAD}, 2
s_cselect_b32 s96, s92, s96
s_cmp_eq_u32 s{S_HEAD}, 3
s_cselect_b32 s96, s94, s96
s_cmp_eq_u32 s{S_HEAD}, 4
s_cselect_b32 s96, s89, s96
s_cmp_eq_u32 s{S_HEAD}, 5
s_cselect_b32 s96, s91, s96
s_cmp_eq_u32 s{S_HEAD}, 6
s_cselect_b32 s96, s93, s96
s_cmp_eq_u32 s{S_HEAD}, 7
s_cselect_b32 s96, s95, s96
s_lshl_b32 s97, s{S_HEAD}, 3
v_mov_b32 v2, s97
v_mov_b32 v3, s96
s_mov_b32 exec_lo, 1
s_mov_b32 exec_hi, 0
global_store_dword v2, v3, s[{S_DBG}:{S_DBG+1}] offset:4 sc1""")

def p2b(a):
    lq = LQ(a)
    V_O = 112
    V_DEN = V_DENH
    KFB = [144, 150, 154]
    V_DN = 160
    V_T = 176
    V_R = 184
    srd(a, SRD_O, S_OUT, S_ROWOFF, 98304)
    a.e(f"""v_and_b32 v2, 31, v{V_LANE}
v_lshrrev_b32 v3, 5, v{V_LANE}
v_lshlrev_b32 v5, 3, v3
v_add_u32 v5, {L_KS}, v5
v_lshlrev_b32 v6, 4, v{V_LANE}
s_lshl_b32 s{S_T0}, s{S_WAVE}, 12
s_add_u32 s{S_T1}, s{S_T0}, {L_XS}
v_lshlrev_b32 v7, 7, v2
v_lshl_add_u32 v7, v3, 3, v7
v_add_u32 v7, s{S_T1}, v7
v_and_b32 v9, 7, v2
v_lshrrev_b32 v10, 3, v{V_LANE}
v_and_b32 v11, 7, v{V_LANE}
v_xor_b32 v12, v11, v10
v_lshlrev_b32 v8, 7, v10
v_lshl_add_u32 v8, v12, 4, v8
v_add_u32 v8, s{S_T1}, v8
s_lshl_b32 s{S_T0}, s{S_WAVE}, 5
v_add_u32 v4, s{S_T0}, v10
v_mul_u32_u24 v4, 384, v4
v_lshl_add_u32 v4, v11, 4, v4
v_lshl_add_u32 v7, v9, 4, v7""")
    def itemF(f, O):
        def reads(b): return [f"ds_read_b128 {vr(b,4)}, v6 offset:{f*1024}"]
        def mfma(b):
            c = "0" if f == 0 else vr(O, 16)
            return f"v_mfma_f32_32x32x16_bf16 {vr(O,16)}, {vr(b,4)}, {vr(V_PQ+4*f,4)}, {c}"
        return Item(("F", f), reads, mfma)
    def itemFn(f):
        def reads(b): return [f"ds_read_b128 {vr(b,4)}, v6 offset:{12288+f*1024}"]
        return Item(("F", f), reads, None)
    seq = lambda O: [itemF(f, O) for f in range(12)]
    nxt = [itemFn(f) for f in range(12)]
    def kread(f):
        o = 8*(f >> 1) + 4*(f & 1)
        lq.issue(f"ds_read2_b64 {vr(KFB[f%3],4)}, v5 offset0:{o} offset1:{o+2}", ("K", f))
    kread(0); kread(1)
    pend = prime(lq, seq(V_O), 0)
    for g in range(1, 8):
        a.e(f"v_xor_b32 v{199+g}, {g<<4}, v7")
    WA = lambda g: 7 if g == 0 else 199 + g
    if cfg.DENQ7: a.e(f"s_cmp_lt_u32 s{S_WAVE}, 6\ns_cbranch_scc1 L_noden")
    for f in range(12):
        lq.wait(("K", f))
        c = "0" if f == 0 else vr(V_DN, 16)
        a.e(f"v_mfma_f32_32x32x16_bf16 {vr(V_DN,16)}, {vr(KFB[f%3],4)}, {vr(V_PQ+4*f,4)}, {c}")
        if f + 2 < 12: kread(f + 2)
    a.e(f"s_nop 7\ns_nop 3\nv_add_f32 v{V_DEN}, {EPS}, v{V_DN}\nv_rcp_f32 v{V_DEN}, v{V_DEN}")
    if cfg.DENQ7:
        a.label("L_noden")
        a.e("s_waitcnt lgkmcnt(0)")
        lq.q = []
    pend = run_stream(a, lq, seq(V_O), nxt, {}, 0, pend)
    a.e(f"""v_add_u32 v6, 12288, v6""")
    def epi(O, odd):
        L = []
        for r in range(16): L.append(f"v_mul_f32 v{O+r}, v{O+r}, v{V_DEN}")
        for r in range(8): L.append(f"v_cvt_pk_bf16_f32 v{V_T+r}, v{O+2*r}, v{O+2*r+1}")
        for q in range(4):
            L.append(lambda q=q: lq.issue(f"ds_write_b64 v{WA(4*odd+q)}, {vr(V_T+2*q,2)}", ("W",)))
        if odd:
            for G in range(4):
                L.append(lambda G=G: lq.issue(f"ds_read_b128 {vr(V_R+4*G,4)}, v8 offset:{G*1024}", ("R", G)))
        return L
    def stores(pair):
        L = []
        for G in range(4):
            def st(G=G):
                lq.wait(("R", G))
                a.e(f"s_mov_b32 s{S_T}, {pair*128 + G*3072}")
                a.e(f"buffer_store_dwordx4 {vr(V_R+4*G,4)}, v4, s[{SRD_O}:{SRD_O+3}], s{S_T} offen {cfg.OUT_NT}")
            L.append(st)
        return L
    for dt in range(1, 6):
        O = V_O + 16*(dt % 2); Oprev = V_O + 16*((dt-1) % 2)
        side = {}
        if dt in (3, 5): spread(stores((dt-3)//2), 2, 6, side)
        spread(epi(Oprev, (dt-1) % 2), 1, 12, side)
        pend = run_stream(a, lq, seq(O), nxt if dt < 5 else None, side, 12*(dt % 2), pend)
        if dt < 5: a.e("v_add_u32 v6, 12288, v6")
    for x in epi(V_O+16, 1): emit(a, x)
    for x in stores(2): emit(a, x)
    a.e("s_waitcnt lgkmcnt(0)")

def kernel(a):
    a.e(f"""s_cmp_ge_u32 s2, 256
s_cbranch_scc1 L_end
s_load_dwordx8 s[8:15], s[0:1], 0
s_load_dwordx4 s[16:19], s[0:1], 32
s_load_dwordx2 s[20:21], s[0:1], 48
v_lshrrev_b32 v1, 6, v0
s_and_b32 s{S_HEAD}, s2, 31
s_lshr_b32 s{S_CHUNK}, s2, 5
v_readfirstlane_b32 s{S_WAVE}, v1
v_and_b32 v{V_LANE}, 63, v0
s_mul_i32 s{S_ROWOFF}, s{S_HEAD}, 786432
s_mul_i32 s26, s{S_CHUNK}, 98304
s_add_u32 s{S_ROWOFF}, s{S_ROWOFF}, s26
s_mov_b32 s{S_C12K}, 12288
s_mov_b32 s{S_CM24K}, -24576
s_lshl_b32 s{S_T0}, s{S_WAVE}, 2
s_lshr_b32 s{S_WAVE}, {hex(cfg.ROLEMAP)}, s{S_T0}
s_and_b32 s{S_WAVE}, s{S_WAVE}, 15
s_cmp_ge_u32 s{S_WAVE}, 6
s_waitcnt lgkmcnt(0)""")
    if cfg.STAMPS:
        a.e("v_mov_b32 v255, 0\nv_mov_b32 v254, 0"); stamp(a, 0); a.e(f"s_cmp_ge_u32 s{S_WAVE}, 6")
    if cfg.DIAG:
        a.e("s_memrealtime s[76:77]\ns_memtime s[80:81]\ns_waitcnt lgkmcnt(0)\ns_mov_b32 s86, s76\ns_mov_b32 s87, s80")
        a.e(f"s_cmp_ge_u32 s{S_WAVE}, 6")
    a.e("s_cbranch_scc1 L_prod")
    compute(a)
    a.e("s_branch L_fin")
    producer(a)
    fin(a)
    a.label("L_end")
    a.e("s_endpgm")

HEADER = open("standalone__linear_kernel_performer__prompt.s.ref").read().split("; Override launch")[0]

def main(path):
    a = Asm(); a.inprod = False; kernel(a)
    body = a.finalize()
    txt = HEADER + f"; @launch grid=(256,1,1) block=(512,1,1) lds={LDS_BYTES}\n"
    txt += f""".amdgcn_target "amdgcn-amd-amdhsa--gfx950"
.text
.globl {NAME}
.p2align 8
.type {NAME},@function
{NAME}:
{body}.section .rodata,"a"
.p2align 6
.amdhsa_kernel {NAME}
  .amdhsa_next_free_vgpr 256
  .amdhsa_next_free_sgpr 102
  .amdhsa_accum_offset 256
  .amdhsa_group_segment_fixed_size 0
  .amdhsa_kernarg_size 56
  .amdhsa_user_sgpr_count 2
  .amdhsa_user_sgpr_kernarg_segment_ptr 1
  .amdhsa_system_sgpr_workgroup_id_x 1
  .amdhsa_float_denorm_mode_32 3
.end_amdhsa_kernel
"""
    open(path, "w").write(txt)

if __name__ == "__main__":
    for arg in sys.argv[2:]:
        k, v = arg.split("=")
        cur = getattr(cfg, k)
        setattr(cfg, k, (v == "1") if isinstance(cur, bool) else (int(v, 0) if isinstance(cur, int) else v))
    main(sys.argv[1])
```
